```python
import torch

def _softmax(x, axis=-1):
    return torch.softmax(x, dim=axis)
def _gelu(x):
    return torch.nn.functional.gelu(x, approximate="tanh")
def _silu(x):
    return torch.nn.functional.silu(x)
def _sigmoid(x):
    return torch.sigmoid(x)
def _layernorm(x, axis=-1, eps=1e-5):
    m = x.mean(dim=axis, keepdim=True)
    v = x.var(dim=axis, keepdim=True, unbiased=False)
    return (x - m) / torch.sqrt(v + eps)
def _scatter_add(tgt, idx, src, axis=0):
    return tgt.clone().index_add_(axis, idx, src)
def _segment_sum(src, seg, n):
    out = torch.zeros((n,) + src.shape[1:], dtype=src.dtype)
    return out.index_add_(0, seg, src)
def _pad(x, pw):
    flat = tuple(v for pair in reversed(pw) for v in pair)
    return torch.nn.functional.pad(x, flat)

kernel_name = 'interleave_layers__softmax_full_mha__ssm_conv_h3__prompt'

def setup_inputs():

    _w = (lambda a: (lambda t: t.to(torch.bfloat16) if t.is_floating_point() else t)(torch.as_tensor(a)))
    def _A_setup():
        B, S, D = 1, 2048, 576
        return {
            "x": _w((lambda *s: torch.randn(*s, dtype=torch.bfloat16) * 0.05)(B, S, D)),
            "wqkv": _w((lambda *s: torch.randn(*s, dtype=torch.bfloat16) * 0.05)(D, 3 * D)),
            "wo": _w((lambda *s: torch.randn(*s, dtype=torch.bfloat16) * 0.05)(D, D)),
        }
    _A_in = _A_setup()

    def _B_setup():
        B, S, D = 1, 2048, 576
        ks = 4
        return {
            "q": _w((lambda *s: torch.randn(*s, dtype=torch.bfloat16) * 0.05)(B, S, D)),
            "k": _w((lambda *s: torch.randn(*s, dtype=torch.bfloat16) * 0.4)(B, S, D)),
            "v": _w((lambda *s: torch.randn(*s, dtype=torch.bfloat16) * 0.4)(B, S, D)),
            "shift_k": _w((lambda *s: torch.randn(*s, dtype=torch.bfloat16) * 0.4)(D, ks) * 0.5),
            "ssm_k": _w((lambda *s: torch.randn(*s, dtype=torch.bfloat16) * 0.8)(D, S) * (1.0 / S ** 0.5)),
            "ssm_D": _w((lambda *s: torch.randn(*s, dtype=torch.bfloat16) * 0.4)(D)),
        }
    _B_in = _B_setup()

    return {
        "A_x": _A_in["x"],
        "A_wqkv": _A_in["wqkv"],
        "A_wo": _A_in["wo"],
        "B_q": _B_in["q"],
        "B_k": _B_in["k"],
        "B_v": _B_in["v"],
        "B_shift_k": _B_in["shift_k"],
        "B_ssm_k": _B_in["ssm_k"],
        "B_ssm_D": _B_in["ssm_D"],
    }

def reference(A_x, A_wqkv, A_wo, B_q, B_k, B_v, B_shift_k, B_ssm_k, B_ssm_D):
    def _A_ref(x, wqkv, wo):
        B, S, D = x.shape
        H = 32; Dh = D // H
        qkv = (lambda x, *d: x.permute(*d))((x @ wqkv).reshape(B, S, 3, H, Dh), 2, 0, 3, 1, 4)
        q, k, v = qkv[0], qkv[1], qkv[2]
        scale = Dh ** -0.5
        scores = torch.einsum("bhqd,bhkd->bhqk", q, k) * scale
        p = _softmax(scores, axis=-1)
        o = torch.einsum("bhqk,bhkd->bhqd", p, v)
        return (lambda x, *d: x.permute(*d))(o, 0, 2, 1, 3).reshape(B, S, D) @ wo

    def _B_ref(q, k, v, shift_k, ssm_k, ssm_D):
        B, S, D = q.shape
        ks = shift_k.shape[-1]
        k_pad = _pad(k, ((0, 0), (ks - 1, 0), (0, 0)))
        k_shift = torch.zeros_like(k)
        for t in range(ks):
            k_shift = k_shift + k_pad[:, t:t + S, :] * shift_k[:, ks - 1 - t][None, None, :]
        kv = k_shift * v
        L = 2 * S
        kv_pad = _pad(kv, ((0, 0), (0, S), (0, 0)))
        kf_pad = _pad(ssm_k, ((0, 0), (0, S)))
        kv_f = (lambda x, axes=(-2,-1): torch.fft.rfft2(x.float(), dim=axes))(kv_pad[:, None, :, :], axes=(1, 2))
        kf_f = (lambda x, axes=(-2,-1): torch.fft.rfft2(x.float(), dim=axes))(kf_pad[:, None, :], axes=(1, 2))
        kf_f = (lambda x, *d: x.permute(*d))(kf_f, 1, 2, 0)
        y_f = kv_f * kf_f[None, :, :, :]
        y = (lambda x, s, axes=(-2,-1): torch.fft.irfft2(x, s=s, dim=axes).to(torch.bfloat16))(y_f, (1, L), axes=(1, 2))[:, 0, :S, :]
        y = y + kv * ssm_D[None, None, :]
        return q * y

    x = A_x
    x = x + _A_ref(_layernorm(x, axis=-1), A_wqkv, A_wo)
    x = x + _B_ref(_layernorm(x, axis=-1), B_k, B_v, B_shift_k, B_ssm_k, B_ssm_D)
    x = x + _A_ref(_layernorm(x, axis=-1), A_wqkv, A_wo)
    x = x + _B_ref(_layernorm(x, axis=-1), B_k, B_v, B_shift_k, B_ssm_k, B_ssm_D)
    return x
```

```python
class Asm:
    def __init__(self):
        self.lines = []
        self._lab = 0
    def __call__(self, s=""):
        for ln in s.split("\n"):
            t = ln.strip()
            if not t:
                continue
            if t.endswith(":") and " " not in t:
                self.lines.append(t)
            else:
                self.lines.append("    " + t)
    def label(self, name):
        self.lines.append(name + ":")
    def newlabel(self, base="L"):
        self._lab += 1
        return f"{base}_{self._lab}"
    def comment(self, s):
        self.lines.append("    ; " + s)
    def text(self):
        return "\n".join(self.lines) + "\n"

def vr(a, n=1):
    return f"v{a}" if n == 1 else f"v[{a}:{a+n-1}]"
def sr(a, n=1):
    return f"s{a}" if n == 1 else f"s[{a}:{a+n-1}]"
def ar(a, n=1):
    return f"a{a}" if n == 1 else f"a[{a}:{a+n-1}]"

SRD_W3 = 0x00020000

def srd(A, dst, base_lo, size, off=0):
    if off:
        A(f"s_add_u32 s{dst}, s{base_lo}, {hex(off)}")
        A(f"s_addc_u32 s{dst+1}, s{base_lo+1}, 0")
    else:
        A(f"s_mov_b32 s{dst}, s{base_lo}")
        A(f"s_mov_b32 s{dst+1}, s{base_lo+1}")
    A(f"s_mov_b32 s{dst+2}, {hex(size)}")
    A(f"s_mov_b32 s{dst+3}, {hex(SRD_W3)}")

def kernel_header(name):
    return f""".globl {name}
.p2align 8
.type {name},@function
{name}:
"""

def kernel_desc(name, vgpr, sgpr=102, accum=None, agpr=0):
    if accum is None:
        accum = (vgpr + 3) // 4 * 4
    nfv = accum + agpr if agpr else vgpr
    return f""".amdhsa_kernel {name}
  .amdhsa_next_free_vgpr {nfv}
  .amdhsa_next_free_sgpr {sgpr}
  .amdhsa_accum_offset {accum}
  .amdhsa_group_segment_fixed_size 0
  .amdhsa_kernarg_size 96
  .amdhsa_user_sgpr_count 2
  .amdhsa_user_sgpr_kernarg_segment_ptr 1
  .amdhsa_system_sgpr_workgroup_id_x 1
.end_amdhsa_kernel
"""
```

```python
import sys, importlib
sys.path.insert(0, "gen")
from layout import *

HEADER = open("interleave_layers__softmax_full_mha__ssm_conv_h3__prompt.s.ref").read().split("; Override launch geometry")[0]

def build(kernels, launches):
    out = HEADER
    for l in launches: out += l + "\n"
    out += '.amdgcn_target "amdgcn-amd-amdhsa--gfx950"\n.text\n'
    for c, d in kernels: out += c + "\n"
    out += '.section .rodata,"a"\n'
    for c, d in kernels: out += ".p2align 6\n" + d
    return out
```

```python
from asmlib import *
from layout import *
import struct
def f2u(x): return struct.unpack("<I", struct.pack("<f", x))[0]

L_KM, L_KE, L_VT = 0, 65536, 73728
LDS_ATT = 73728 + 80*1024
vK, vKX, vV = 2, 3, 4
Q, QX = 8, 12
KF, KX, V0, V1 = 16, 20, 24, 28
PR = 32
O = 48
SB = [64, 80]

def mf16(A, d, a, b, c=None):
    c = f"v[{d}:{d+15}]" if c is None else c
    A(f"v_mfma_f32_32x32x16_bf16 v[{d}:{d+15}], v[{a}:{a+3}], v[{b}:{b+3}], {c}")
def mf8(A, d, a, b, c):
    A(f"v_mfma_f32_32x32x8_bf16 v[{d}:{d+15}], v[{a}:{a+1}], v[{b}:{b+1}], {c}")

def gen_att(name="att_kernel", P="AT_"):
    A = Asm()
    A("s_cmp_ge_u32 s2, 256")
    A(f"s_cbranch_scc1 {P}END")
    A("s_load_dwordx2 s[6:7], s[0:1], %d" % KA_WS)
    A("v_lshrrev_b32 v5, 6, v0")
    A("v_and_b32 v1, 63, v0             ; lane")
    A("v_readfirstlane_b32 s22, v5      ; wave")
    A("s_and_b32 s20, s2, 7")
    A("s_lshr_b32 s21, s2, 3")
    A("s_lshl_b32 s20, s20, 2")
    A("s_and_b32 s23, s21, 3")
    A("s_add_u32 s20, s20, s23          ; head")
    A("s_lshr_b32 s21, s21, 2           ; qb")
    A("s_lshl_b32 s21, s21, 3")
    A("s_add_u32 s21, s21, s22          ; q tile (0..63)")
    A("v_lshlrev_b32 v6, 4, v1          ; lane*16")
    A("v_and_b32 v7, 31, v1             ; r32")
    A("v_lshrrev_b32 v5, 5, v1          ; g")
    A("s_waitcnt lgkmcnt(0)")
    srd(A, 12, 6, WS_USED)
    A("s_lshl_b32 s24, s20, 16          ; head*65536")
    A("s_lshl_b32 s25, s21, 10")
    A("s_add_u32 s25, s25, s24")
    A(f"s_add_u32 s25, s25, {QM}")
    A(f"buffer_load_dwordx4 v[{Q}:{Q+3}], v6, s[12:15], s25 offen")
    A("s_lshl_b32 s26, s20, 13          ; head*8192")
    A("s_lshl_b32 s25, s21, 7")
    A("s_add_u32 s25, s25, s26")
    A(f"s_add_u32 s25, s25, {QE}")
    A("v_lshlrev_b32 v40, 2, v7         ; r32*4")
    A(f"buffer_load_dword v{QX}, v40, s[12:15], s25 offen")
    A(f"s_add_u32 s27, s24, {KM}")
    A(f"s_add_u32 s28, s26, {KE}")
    A(f"s_mul_i32 s29, s20, {VT_HEAD}")
    A(f"s_add_u32 s29, s29, {VT}")
    A("s_lshl_b32 s30, s22, 10          ; wave*1024")
    A("s_add_u32 s27, s27, s30")
    A("s_add_u32 s28, s28, s30")
    A("s_add_u32 s29, s29, s30")
    def slot(kind, i):
        gb, lb = {"K":(27, L_KM), "E":(28, L_KE), "V":(29, L_VT)}[kind]
        A(f"s_add_u32 s31, s30, {lb + 8192*i}")
        A("s_mov_b32 m0, s31")
        A(f"s_add_u32 s32, s{gb}, {8192*i}")
        A("buffer_load_dwordx4 v6, s[12:15], s32 offen lds")
    order = [("K",0),("V",0),("E",0),("V",1), ("K",1),("V",2), ("K",2),("V",3), ("K",3),("V",4),
             ("K",4),("V",5),("V",6),("K",5),("V",7),("K",6),("V",8),("K",7),("V",9)]
    for kind, i in order: slot(kind, i)
    A(f"v_mov_b32 v{vK}, v6")
    A(f"v_add_u32 v{vKX}, {L_KE}, v40")
    A("v_mul_u32_u24 v41, 304, v5")
    A("v_lshl_add_u32 v41, v7, 4, v41")
    A(f"v_add_u32 v{vV}, {L_VT}, v41")
    A(f"v_mov_b32 v{KX+1}, 0x3f803f80")
    A(f"v_mov_b32 v{QX+1}, 0")
    A("s_mov_b32 s40, 0")
    A("s_waitcnt vmcnt(15)")
    A("v_cmp_eq_u32 vcc, 0, v5")
    A("s_barrier")
    A("s_nop 0")
    A(f"v_cndmask_b32 v{QX}, 0, v{QX}, vcc")
    A.label(f"{P}PASS")
    for i in range(16): A(f"v_mov_b32 v{O+i}, 0")
    for i in range(4):
        A(f"v_mov_b32 v{PR+4+i}, 0")
        A(f"v_mov_b32 v{V1+i}, 0")
    A(f"ds_read_b128 v[{KF}:{KF+3}], v{vK}")
    A(f"ds_read_b32 v{KX}, v{vKX}")
    A("s_waitcnt lgkmcnt(0)")
    mf8(A, SB[0], KX, QX, "0")
    mf16(A, SB[0], KF, Q)
    A(f"ds_read_b128 v[{KF}:{KF+3}], v{vK} offset:1024")
    A(f"ds_read_b32 v{KX}, v{vKX} offset:128")
    A(f"ds_read_b128 v[{V0}:{V0+3}], v{vV}")
    A("s_mov_b32 s41, 0                 ; iteration")
    A("s_nop 7")
    A("s_nop 7")
    A.label(f"{P}LOOP")
    for t in range(8):
        X = SB[t & 1]; Y = SB[(t+1) & 1]
        if t == 6:
            A("s_cmp_lg_u32 s40, 0")
            A(f"s_cbranch_scc1 {P}NOSYNC")
            A("s_cmp_gt_u32 s41, 3")
            A(f"s_cbranch_scc1 {P}NOSYNC")
            for it, n in ((0,13),(1,11),(2,9)):
                A(f"s_cmp_lg_u32 s41, {it}")
                A(f"s_cbranch_scc1 {P}SY{it}")
                A(f"s_waitcnt vmcnt({n})")
                A(f"s_branch {P}SYB")
                A.label(f"{P}SY{it}")
            A("s_waitcnt vmcnt(0)")
            A.label(f"{P}SYB")
            A("s_barrier")
            A.label(f"{P}NOSYNC")
        A(f"v_exp_f32 v{X+0}, v{X+0}")
        A(f"v_exp_f32 v{X+1}, v{X+1}")
        A("s_waitcnt lgkmcnt(3)")
        mf16(A, O, V1, PR+4)
        A(f"ds_read_b128 v[{V1}:{V1+3}], v{vV} offset:{t*1216+608}")
        A(f"v_exp_f32 v{X+2}, v{X+2}")
        A(f"v_exp_f32 v{X+3}, v{X+3}")
        A("s_waitcnt lgkmcnt(2)")
        mf8(A, Y, KX, QX, "0")
        for i in range(4,8): A(f"v_exp_f32 v{X+i}, v{X+i}")
        A(f"v_cvt_pk_bf16_f32 v{PR+0}, v{X+0}, v{X+1}")
        A(f"v_cvt_pk_bf16_f32 v{PR+1}, v{X+2}, v{X+3}")
        mf16(A, Y, KF, Q)
        A(f"ds_read_b128 v[{KF}:{KF+3}], v{vK} offset:{(t+2)*1024}")
        A(f"ds_read_b32 v{KX}, v{vKX} offset:{(t+2)*128}")
        A(f"v_cvt_pk_bf16_f32 v{PR+2}, v{X+4}, v{X+5}")
        A(f"v_cvt_pk_bf16_f32 v{PR+3}, v{X+6}, v{X+7}")
        for i in range(8,12): A(f"v_exp_f32 v{X+i}, v{X+i}")
        A("s_waitcnt lgkmcnt(3)")
        mf16(A, O, V0, PR)
        A(f"ds_read_b128 v[{V0}:{V0+3}], v{vV} offset:{(t+1)*1216}")
        for i in range(12,16): A(f"v_exp_f32 v{X+i}, v{X+i}")
        A(f"v_cvt_pk_bf16_f32 v{PR+4}, v{X+8}, v{X+9}")
        A(f"v_cvt_pk_bf16_f32 v{PR+5}, v{X+10}, v{X+11}")
        A(f"v_cvt_pk_bf16_f32 v{PR+6}, v{X+12}, v{X+13}")
        A(f"v_cvt_pk_bf16_f32 v{PR+7}, v{X+14}, v{X+15}")
    A(f"v_add_u32 v{vK}, 8192, v{vK}")
    A(f"v_add_u32 v{vKX}, 1024, v{vKX}")
    A(f"v_add_u32 v{vV}, {8*1216}, v{vV}")
    A("s_add_u32 s41, s41, 1")
    A("s_cmp_lt_u32 s41, 8")
    A(f"s_cbranch_scc1 {P}LOOP")
    A("s_waitcnt lgkmcnt(3)")
    mf16(A, O, V1, PR+4)
    A(f"v_subrev_u32 v{vK}, 65536, v{vK}")
    A(f"v_subrev_u32 v{vKX}, 8192, v{vKX}")
    A(f"v_subrev_u32 v{vV}, {64*1216}, v{vV}")
    A("s_waitcnt lgkmcnt(0)")
    A("s_nop 15")
    A(f"v_mov_b32 v40, v{O+10}")
    A(f"v_mov_b32 v41, v{O+10}")
    A("s_nop 1")
    A("v_permlane32_swap_b32 v40, v41")
    A("s_cmp_lg_u32 s40, 0")
    A(f"s_cbranch_scc1 {P}STORE")
    A(f"v_max3_f32 v42, |v{O+0}|, |v{O+1}|, |v{O+2}|")
    A(f"v_max3_f32 v42, |v{O+3}|, |v{O+4}|, v42")
    A(f"v_max3_f32 v42, |v{O+5}|, |v{O+6}|, v42")
    A(f"v_max_f32 v42, |v{O+7}|, v42")
    A(f"v_max_f32 v43, |v{O+8}|, |v{O+9}|")
    A("v_cmp_eq_u32 vcc, 0, v5")
    A(f"s_mov_b32 s42, {hex(f2u(2.0**-40))}")
    A(f"s_mov_b32 s43, {hex(f2u(2.0**60))}")
    A("v_cndmask_b32 v43, 0, v43, vcc")
    A("v_max_f32 v42, v42, v43")
    A("v_cmp_le_f32 s[44:45], s42, v40")
    A("v_cmp_ge_f32 s[46:47], s43, v40")
    A(f"s_mov_b32 s43, {hex(f2u(2.0**120))}")
    A("v_cmp_ge_f32 s[48:49], s43, v42")
    A("s_nop 1")
    A("s_and_b64 s[44:45], s[44:45], s[46:47]")
    A("s_and_b64 s[44:45], s[44:45], s[48:49]")
    for r in list(range(8)):
        A(f"v_cmp_o_f32 s[46:47], v{O+r}, v{O+r}")
        A("s_nop 1")
        A("s_and_b64 s[44:45], s[44:45], s[46:47]")
    A("s_cmp_eq_u64 s[44:45], -1")
    A(f"s_cbranch_scc1 {P}STORE")
    A(f"v_mov_b32 v44, 0xff800000")
    A("s_mov_b32 s41, 0")
    A(f"v_mov_b32 v45, v{vK}")
    A(f"v_mov_b32 v46, v{vKX}")
    A.label(f"{P}MAXL")
    A(f"ds_read_b128 v[{KF}:{KF+3}], v45")
    A(f"ds_read_b32 v{KX}, v46")
    A("s_waitcnt lgkmcnt(0)")
    mf8(A, SB[0], KX, QX, "0")
    mf16(A, SB[0], KF, Q)
    A("v_add_u32 v45, 1024, v45")
    A("v_add_u32 v46, 128, v46")
    A("s_nop 15")
    for i in range(0,16,2):
        A(f"v_max3_f32 v44, v{SB[0]+i}, v{SB[0]+i+1}, v44")
    A("s_add_u32 s41, s41, 1")
    A("s_cmp_lt_u32 s41, 64")
    A(f"s_cbranch_scc1 {P}MAXL")
    A("v_mov_b32 v45, v44")
    A("s_nop 1")
    A("v_permlane32_swap_b32 v44, v45")
    A("s_nop 1")
    A("v_max_f32 v44, v44, v45")
    A("v_sub_f32 v44, 0, v44")
    A("v_and_b32 v45, 0xffff0000, v44")
    A("v_sub_f32 v46, v44, v45            ; remainder")
    A("v_cmp_eq_u32 vcc, 0, v5")
    A("v_lshrrev_b32 v45, 16, v45")
    A("v_and_b32 v46, 0xffff0000, v46")
    A("v_or_b32 v45, v45, v46")
    A(f"v_cndmask_b32 v{QX+1}, 0, v45, vcc")
    A("s_mov_b32 s40, 1")
    A(f"s_branch {P}PASS")
    A.label(f"{P}STORE")
    A("v_rcp_f32 v40, v40")
    A("s_nop 0")
    for r in range(10): A(f"v_mul_f32 v{O+r}, v40, v{O+r}")
    for j in range(5): A(f"v_cvt_pk_bf16_f32 v{PR+j}, v{O+2*j}, v{O+2*j+1}")
    A("v_lshlrev_b32 v41, 5, v7")
    A("v_lshl_add_u32 v41, v5, 4, v41")
    A("s_lshl_b32 s25, s21, 10")
    A("s_add_u32 s25, s25, s24")
    A(f"s_add_u32 s25, s25, {OM}")
    A(f"buffer_store_dwordx4 v[{PR}:{PR+3}], v41, s[12:15], s25 offen")
    A("s_lshr_b32 s26, s20, 2")
    A("s_lshl_b32 s26, s26, 15")
    A("s_and_b32 s27, s20, 3")
    A("s_lshl_b32 s27, s27, 2")
    A("s_add_u32 s26, s26, s27")
    A("s_lshl_b32 s27, s21, 9")
    A("s_add_u32 s26, s26, s27")
    A(f"s_add_u32 s26, s26, {OE}")
    A("v_lshlrev_b32 v42, 4, v7")
    A("s_mov_b32 exec_hi, 0")
    A(f"buffer_store_dword v{PR+4}, v42, s[12:15], s26 offen")
    A("s_waitcnt vmcnt(0)")
    A.label(f"{P}END")
    A("s_endpgm")
    return kernel_header(name) + A.text(), kernel_desc(name, 96), f"; @launch kernel={name} grid=(256,1,1) block=(512,1,1) lds={LDS_ATT}"
```

```python
from asmlib import *
from layout import *

CP = 4160
XROFF = 4*CP
WPITCH = 21248
NWG = 144

def gen_conv(name="conv_kernel"):
    A = Asm()
    A(f"s_cmp_ge_u32 s2, {NWG}")
    A("s_cbranch_scc1 CV_END")
    A("s_load_dwordx2 s[4:5], s[0:1], %d" % KA_SSMK)
    A("s_load_dwordx2 s[6:7], s[0:1], %d" % KA_WS)
    A("s_load_dwordx2 s[16:17], s[0:1], %d" % KA_SSMD)
    A("v_lshrrev_b32 v2, 6, v0")
    A("v_and_b32 v1, 63, v0             ; lane")
    A("v_readfirstlane_b32 s22, v2      ; wave")
    A("s_nop 3")
    A("s_lshl_b32 s20, s2, 2")
    A("s_add_u32 s20, s20, s22          ; channel")
    A(f"s_mul_i32 s21, s22, {WPITCH}")
    A("s_lshl_b32 s23, s20, 12          ; ch*4096")
    A("s_waitcnt lgkmcnt(0)")
    srd(A, 8, 4, SZ_SSMK)
    srd(A, 12, 6, XR_SZ, off=XR)
    srd(A, 24, 6, YT_SZ, off=YT)
    srd(A, 28, 16, SZ_SSMD)
    A("v_lshlrev_b32 v3, 4, v1          ; lane*16")
    for q in range(4):
        A(f"s_add_u32 s36, s21, {XROFF + 1024*q}")
        A("s_mov_b32 m0, s36")
        A(f"s_add_u32 s37, s23, {1024*q}")
        A("buffer_load_dwordx4 v3, s[12:15], s37 offen lds")
    for q in range(4):
        A(f"s_add_u32 s37, s23, {1024*q}")
        A(f"buffer_load_dwordx4 v[{96+8*q}:{99+8*q}], v3, s[8:11], s37 offen")
        A(f"buffer_load_dwordx2 v[{100+8*q}:{101+8*q}], v3, s[8:11], s37 offen offset:16")
    A("s_lshl_b32 s37, s20, 1")
    A("v_mov_b32 v4, s37")
    A("buffer_load_ushort v5, v4, s[28:31], 0 offen")
    for j in range(4): A(f"v_mov_b32 v{8+j}, 0")
    A(f"v_add_u32 v6, s21, v3")
    A("v_cmp_gt_u32 vcc, 30, v1")
    A("s_and_saveexec_b64 s[32:33], vcc")
    A(f"ds_write_b128 v6, v[8:11] offset:{XROFF+4096}")
    A("s_mov_b64 exec, s[32:33]")
    for q in range(4):
        b = 96+8*q
        A(f"s_waitcnt vmcnt({7-2*q})")
        A(f"ds_write_b128 v6, v[{b}:{b+3}] offset:{32+1024*q}")
        A(f"v_alignbit_b32 v12, v{b+1}, v{b}, 16")
        A(f"v_alignbit_b32 v13, v{b+2}, v{b+1}, 16")
        A(f"v_alignbit_b32 v14, v{b+3}, v{b+2}, 16")
        A(f"v_alignbit_b32 v15, v{b+4}, v{b+3}, 16")
        A(f"ds_write_b128 v6, v[12:15] offset:{CP+32+1024*q}")
        A(f"v_mov_b32 v16, v13")
        A(f"v_mov_b32 v17, v14")
        A(f"v_mov_b32 v18, v15")
        A(f"v_alignbit_b32 v19, v{b+5}, v{b+4}, 16")
        A(f"ds_write_b128 v6, v[16:19] offset:{3*CP+32+1024*q}")
        A(f"v_mov_b32 v20, v{b+1}")
        A(f"v_mov_b32 v21, v{b+2}")
        A(f"v_mov_b32 v22, v{b+3}")
        A(f"v_mov_b32 v23, v{b+4}")
        A(f"ds_write_b128 v6, v[20:23] offset:{2*CP+32+1024*q}")
        if q == 0:
            A(f"v_lshlrev_b32 v27, 16, v{b}          ; k0<<16")
            A("v_mov_b32 v24, 0")
            A("v_mov_b32 v25, 0")
            A("v_mov_b32 v26, 0")
            A("v_mov_b32 v28, 0")
            A("v_mov_b32 v29, 0")
            A("v_mov_b32 v30, 0")
            A(f"v_mov_b32 v31, v{b}")
            A("v_mov_b32 v32, 0")
            A("v_mov_b32 v33, 0")
            A("v_mov_b32 v34, v27")
            A("v_mov_b32 v35, v12               ; alignbit(D1,D0,16) = (k1,k2)")
            A("s_mov_b64 s[32:33], exec")
            A("s_mov_b64 exec, 1")
            for s_ in range(4):
                A(f"ds_write_b128 v6, v[8:11] offset:{s_*CP}")
            A(f"ds_write_b128 v6, v[8:11] offset:{16}")
            A(f"ds_write_b128 v6, v[24:27] offset:{CP+16}")
            A(f"ds_write_b128 v6, v[28:31] offset:{2*CP+16}")
            A(f"ds_write_b128 v6, v[32:35] offset:{3*CP+16}")
            A("s_mov_b64 exec, s[32:33]")
        A("s_nop 1")
    A("v_and_b32 v40, 15, v1            ; b / n")
    A("v_lshrrev_b32 v41, 4, v1         ; kg")
    A("v_add_u32 v42, 1, v40")
    A("v_and_b32 v43, 3, v42            ; s")
    A("v_sub_u32 v42, v42, v43          ; j0")
    A("v_lshl_add_u32 v42, v41, 3, v42  ; j0+8kg")
    A("v_lshlrev_b32 v42, 1, v42")
    A(f"v_mul_u32_u24 v43, {CP}, v43")
    A("v_add3_u32 v44, v42, v43, s21    ; vA")
    A("v_lshlrev_b32 v42, 5, v40        ; 32n")
    A("v_lshlrev_b32 v43, 4, v41        ; 16kg")
    A("v_sub_u32 v45, v43, v42")
    A(f"s_add_u32 s36, s21, {XROFF + 2*2032 - 3584}")
    A("v_add_u32 v45, s36, v45          ; vB")
    A("v_lshlrev_b32 v43, 3, v41        ; 8*q4")
    A("v_add_u32 v46, v42, v43          ; 32n + 8q4")
    A(f"s_add_u32 s36, s21, {XROFF + 2*2044 - 3584}")
    A("v_sub_u32 v47, s36, v46          ; vKV")
    for j in range(32): A(f"v_mov_b32 v{64+j}, 0")
    A("s_waitcnt vmcnt(0) lgkmcnt(0)")
    A("v_lshlrev_b32 v5, 16, v5         ; D as f32")
    SETS = [(96,128),(160,192)]
    def loads(r, st):
        Bb, Ab = SETS[st]
        for i in range(8):
            A(f"ds_read_b128 v[{Bb+4*i}:{Bb+4*i+3}], v45 offset:{64*r+512*(7-i)}")
        for mu in range(8):
            m = 8*mu + r
            A(f"ds_read_b64 v[{Ab+4*mu}:{Ab+4*mu+1}], v44 offset:{64*m}")
            A(f"ds_read_b64 v[{Ab+4*mu+2}:{Ab+4*mu+3}], v44 offset:{64*m+8}")
    loads(0, 0)
    for r in range(8):
        st = r & 1
        Bb, Ab = SETS[st]
        A("s_waitcnt lgkmcnt(0)")
        if r < 7: loads(r+1, st^1)
        for mu in range(8):
            for j in range(mu, 8):
                i = j - mu
                A(f"v_mfma_f32_16x16x32_bf16 v[{64+4*j}:{67+4*j}], v[{Ab+4*mu}:{Ab+4*mu+3}], v[{Bb+4*i}:{Bb+4*i+3}], v[{64+4*j}:{67+4*j}]")
    for j in range(8):
        A(f"ds_read_b64 v[{96+2*j}:{97+2*j}], v47 offset:{512*(7-j)}")
    A("v_add_u32 v48, s23, v46          ; ch*4096 + 32n + 8q4")
    A("s_nop 7")
    A("s_waitcnt lgkmcnt(0)")
    for j in range(8):
        r0, r1 = 96+2*j, 97+2*j
        a = 64+4*j
        A(f"v_and_b32 v50, 0xffff0000, v{r1}     ; kv[t]")
        A(f"v_lshlrev_b32 v51, 16, v{r1}         ; kv[t+1]")
        A(f"v_and_b32 v52, 0xffff0000, v{r0}     ; kv[t+2]")
        A(f"v_lshlrev_b32 v53, 16, v{r0}         ; kv[t+3]")
        for rr in range(4):
            A(f"v_fmac_f32 v{a+rr}, v{50+rr}, v5")
        A(f"v_cvt_pk_bf16_f32 v{112+2*j}, v{a}, v{a+1}")
        A(f"v_cvt_pk_bf16_f32 v{113+2*j}, v{a+2}, v{a+3}")
        A(f"buffer_store_dwordx2 v[{112+2*j}:{113+2*j}], v48, s[24:27], 0 offen offset:{512*j}")
    A("s_waitcnt vmcnt(0)")
    A.label("CV_END")
    A("s_endpgm")
    return kernel_header(name) + A.text(), kernel_desc(name, 224), f"; @launch kernel={name} grid=({NWG},1,1) block=(256,1,1) lds={4*WPITCH}"
```

```python
from asmlib import *
from layout import *
import struct
def f2u(x): return struct.unpack("<I", struct.pack("<f", x))[0]

L_OF, L_XT, L_YT, L_PS, L_MR = 0, 36864, 46080, 55296, 57600
LDS_OPG = 57856
WF = 64
ACC = 8
SPIN_MAX = 1 << 22

def red4(A, v, t):
    A(f"v_mov_b32 v{t}, v{v}")
    A("s_nop 1")
    A(f"v_permlane16_swap_b32 v{v}, v{t}")
    A("s_nop 1")
    A(f"v_add_f32 v{v}, v{v}, v{t}")
    A(f"v_mov_b32 v{t}, v{v}")
    A("s_nop 1")
    A(f"v_permlane32_swap_b32 v{v}, v{t}")
    A("s_nop 1")
    A(f"v_add_f32 v{v}, v{v}, v{t}")

def gen_opg(layer):
    name = f"opg{layer}_kernel"
    P = f"G{layer}_"
    A = Asm()
    A("s_cmp_ge_u32 s2, 256")
    A(f"s_cbranch_scc1 {P}END")
    if layer == 0:
        A("s_load_dwordx2 s[4:5], s[0:1], %d" % KA_X)
    else:
        A("s_load_dwordx2 s[4:5], s[0:1], %d" % KA_OUT)
    A("s_load_dwordx2 s[6:7], s[0:1], %d" % KA_WS)
    A("v_lshrrev_b32 v2, 6, v0")
    A("v_and_b32 v1, 63, v0             ; lane")
    A("v_readfirstlane_b32 s22, v2")
    A("s_and_b32 s20, s2, 7")
    A("s_lshr_b32 s21, s2, 3")
    A("s_lshl_b32 s20, s20, 3")
    A("s_lshr_b32 s23, s21, 2")
    A("s_add_u32 s20, s20, s23          ; rb (0..63)")
    A("s_and_b32 s21, s21, 3            ; cgo")
    A("v_and_b32 v3, 15, v1             ; n")
    A("v_lshrrev_b32 v4, 4, v1          ; kg")
    A("v_lshlrev_b32 v5, 4, v1          ; lane*16")
    A("s_waitcnt lgkmcnt(0)")
    srd(A, 12, 6, WS_USED)
    if layer == 0:
        srd(A, 8, 4, SZ_X)
        srd(A, 16, 6, X2_SZ, off=X2)
    else:
        srd(A, 8, 6, X2_SZ, off=X2)
        srd(A, 16, 4, SZ_X)
    A("s_cmp_eq_u32 s22, 8")
    A(f"s_cbranch_scc1 {P}EXT")
    A("v_lshrrev_b32 v6, 1, v4")
    A("v_lshlrev_b32 v6, 16, v6         ; (kg>>1)*65536")
    A("v_lshl_add_u32 v6, v3, 5, v6     ; + n*32")
    A("v_and_b32 v7, 1, v4")
    A("v_lshl_add_u32 v6, v7, 4, v6     ; + (kg&1)*16")
    A("s_lshl_b32 s24, s22, 18          ; 2w*131072")
    A("s_lshl_b32 s25, s20, 10          ; rb*32*32")
    A("s_add_u32 s24, s24, s25")
    A(f"s_add_u32 s24, s24, {OM}")
    A("s_mov_b32 s26, 131072")
    A("s_mov_b32 s27, 512")
    A(f"s_branch {P}ODMA")
    A.label(f"{P}EXT")
    A("v_lshlrev_b32 v6, 15, v4         ; kg*32768")
    A("v_lshl_add_u32 v6, v3, 4, v6     ; + n*16")
    A("s_lshl_b32 s24, s20, 9           ; rb*32*16")
    A(f"s_add_u32 s24, s24, {OE}")
    A("s_mov_b32 s26, 131072")
    A("s_mov_b32 s27, 256")
    A.label(f"{P}ODMA")
    A("s_lshl_b32 s28, s22, 11")
    for rt in range(2):
        for kk in range(2):
            A(f"s_add_u32 s29, s28, {L_OF + rt*18432 + kk*1024}")
            A("s_mov_b32 m0, s29")
            A("s_mov_b32 s30, s24")
            if kk: A("s_add_u32 s30, s30, s26")
            if rt: A("s_add_u32 s30, s30, s27")
            A("buffer_load_dwordx4 v6, s[12:15], s30 offen lds")
    A("s_mov_b32 s31, %d" % ((2**32+17)//18))
    A("v_mul_hi_u32 v7, v0, s31         ; row")
    A("v_mul_u32_u24 v8, 18, v7")
    A("v_sub_u32 v8, v0, v8             ; chunk")
    A("v_mul_u32_u24 v9, 1152, v7")
    A("v_lshl_add_u32 v9, v8, 4, v9")
    A("v_mov_b32 v60, v9")
    A("s_mul_i32 s32, s20, %d" % (32*1152))
    A("s_mul_i32 s33, s21, 288")
    A("s_add_u32 s32, s32, s33")
    A("s_lshl_b32 s34, s22, 10")
    A(f"s_add_u32 s29, s34, {L_XT}")
    A("s_mov_b32 m0, s29")
    A("s_nop 0")
    A("buffer_load_dwordx4 v60, s[8:11], s32 offen lds")
    A("v_lshrrev_b32 v7, 2, v0")
    A("v_lshlrev_b32 v7, 12, v7")
    A("v_and_b32 v8, 3, v0")
    A("v_lshl_add_u32 v7, v8, 4, v7")
    A("s_mul_i32 s33, s21, %d" % (144*4096))
    A("s_lshl_b32 s35, s20, 6")
    A("s_add_u32 s33, s33, s35")
    A(f"s_add_u32 s33, s33, {YT}")
    A(f"s_add_u32 s29, s34, {L_YT}")
    A("s_mov_b32 m0, s29")
    A("s_nop 0")
    A("buffer_load_dwordx4 v7, s[12:15], s33 offen lds")
    A("s_mul_i32 s33, s21, 9")
    A("s_add_u32 s33, s33, s22")
    A("s_mul_i32 s33, s33, %d" % (18*1024))
    A(f"s_add_u32 s33, s33, {WOP}")
    for ks in range(18):
        if ks and ks % 4 == 0: A("s_add_u32 s33, s33, 4096")
        A(f"buffer_load_dwordx4 v[{WF+4*ks}:{WF+4*ks+3}], v5, s[12:15], s33 offen offset:{(ks%4)*1024}")
    for i in range(8): A(f"v_mov_b32 v{ACC+i}, 0")
    A("s_waitcnt vmcnt(18)")
    A("s_barrier")
    def rd(ks, st):
        b = 16 + 8*st
        A(f"ds_read_b128 v[{b}:{b+3}], v5 offset:{L_OF + ks*1024}")
        A(f"ds_read_b128 v[{b+4}:{b+7}], v5 offset:{L_OF + 18432 + ks*1024}")
    rd(0,0); rd(1,1)
    for ks in range(18):
        st = ks % 3
        if ks + 2 < 18: rd(ks+2, (ks+2) % 3)
        A(f"s_waitcnt vmcnt({17-ks}) lgkmcnt({4 if ks+2<18 else (2 if ks+1<18 else 0)})")
        b = 16 + 8*st
        A(f"v_mfma_f32_16x16x32_bf16 v[{ACC}:{ACC+3}], v[{WF+4*ks}:{WF+4*ks+3}], v[{b}:{b+3}], v[{ACC}:{ACC+3}]")
        A(f"v_mfma_f32_16x16x32_bf16 v[{ACC+4}:{ACC+7}], v[{WF+4*ks}:{WF+4*ks+3}], v[{b+4}:{b+7}], v[{ACC+4}:{ACC+7}]")
    A("v_mul_u32_u24 v40, 288, v3")
    A("v_lshl_add_u32 v40, v4, 3, v40")
    A("s_lshl_b32 s33, s22, 5")
    A("v_add_u32 v40, s33, v40")
    A(f"ds_read_b64 v[44:45], v40 offset:{L_XT}")
    A(f"ds_read_b64 v[46:47], v40 offset:{L_XT + 16*288}")
    A("v_lshrrev_b32 v41, 2, v3         ; r")
    A("v_lshl_add_u32 v41, v4, 2, v41   ; 4kg + r")
    A("v_lshlrev_b32 v41, 6, v41")
    A("v_and_b32 v42, 3, v1")
    A("v_lshl_add_u32 v41, v42, 3, v41")
    A("s_lshl_b32 s33, s22, 10")
    A("v_add_u32 v41, s33, v41")
    A(f"ds_read_b64_tr_b16 v[48:49], v41 offset:{L_YT}")
    A(f"ds_read_b64_tr_b16 v[50:51], v41 offset:{L_YT + 32}")
    A("s_waitcnt lgkmcnt(0)")
    A("s_nop 3")
    for rt in range(2):
        x = 44+2*rt; a = ACC+4*rt
        A(f"v_lshlrev_b32 v52, 16, v{x}")
        A(f"v_and_b32 v53, 0xffff0000, v{x}")
        A(f"v_lshlrev_b32 v54, 16, v{x+1}")
        A(f"v_and_b32 v55, 0xffff0000, v{x+1}")
        for r in range(4): A(f"v_add_f32 v{a+r}, v{a+r}, v{52+r}")
        A(f"v_cvt_pk_bf16_f32 v56, v{a}, v{a+1}")
        A(f"v_cvt_pk_bf16_f32 v57, v{a+2}, v{a+3}")
        A(f"v_lshlrev_b32 v{a}, 16, v56")
        A(f"v_and_b32 v{a+1}, 0xffff0000, v56")
        A(f"v_lshlrev_b32 v{a+2}, 16, v57")
        A(f"v_and_b32 v{a+3}, 0xffff0000, v57")
    def partial_stats(tag):
        for rt in range(2):
            a = ACC+4*rt; s1 = 16+2*rt; s2 = s1+1
            A(f"v_add_f32 v{s1}, v{a}, v{a+1}")
            A(f"v_add_f32 v52, v{a+2}, v{a+3}")
            A(f"v_add_f32 v{s1}, v{s1}, v52")
            A(f"v_mul_f32 v{s2}, v{a}, v{a}")
            for r in range(1,4): A(f"v_fmac_f32 v{s2}, v{a+r}, v{a+r}")
        for v in (16,17,18,19): red4(A, v, 52)
        A("s_lshl_b32 s33, s22, 8")
        A("v_lshl_add_u32 v53, v3, 3, s33")
        A("s_mov_b64 exec, 0xffff")
        A(f"ds_write_b64 v53, v[16:17] offset:{L_PS}")
        A(f"ds_write_b64 v53, v[18:19] offset:{L_PS+128}")
        A("s_mov_b64 exec, -1")
        A("s_waitcnt lgkmcnt(0)")
        A("s_barrier")
    def wg_sum():
        A("v_and_b32 v54, 31, v1")
        A("v_lshlrev_b32 v54, 3, v54")
        for w in range(9):
            A(f"ds_read_b64 v[{22+2*w}:{23+2*w}], v54 offset:{L_PS + 256*w}")
        A("s_waitcnt lgkmcnt(0)")
        A("v_add_f32 v20, v22, v24")
        A("v_add_f32 v21, v23, v25")
        for w in range(2,9):
            A(f"v_add_f32 v20, v20, v{22+2*w}")
            A(f"v_add_f32 v21, v21, v{23+2*w}")
    partial_stats("a")
    A("s_cmp_lg_u32 s22, 0")
    A(f"s_cbranch_scc1 {P}WAITST")
    wg_sum()
    exb = EX0 if layer == 0 else EX1
    A("v_cmp_eq_u32 vcc, -1, v20")
    A("v_cmp_eq_u32 s[36:37], -1, v21")
    A("v_mov_b32 v55, 0x7fc00000")
    A("s_lshl_b32 s33, s20, 10          ; rb*4*256")
    A(f"s_add_u32 s33, s33, {exb}")
    A("v_cndmask_b32 v20, v20, v55, vcc")
    A("v_cndmask_b32 v21, v21, v55, s[36:37]")
    A("s_lshl_b32 s35, s21, 8")
    A("s_add_u32 s35, s35, s33")
    A("s_mov_b32 exec_hi, 0")
    A("buffer_store_dwordx2 v[20:21], v54, s[12:15], s35 offen sc0 sc1")
    A("s_mov_b32 exec_hi, -1")
    A("v_lshrrev_b32 v55, 5, v1")
    A("v_lshl_add_u32 v55, v55, 8, v54")
    A("s_mov_b32 s38, 0")
    A.label(f"{P}POLL")
    A("buffer_load_dwordx2 v[22:23], v55, s[12:15], s33 offen sc0 sc1")
    A("buffer_load_dwordx2 v[24:25], v55, s[12:15], s33 offen offset:512 sc0 sc1")
    A("s_waitcnt vmcnt(0)")
    A("v_cmp_ne_u32 vcc, -1, v22")
    A("v_cmp_ne_u32 s[36:37], -1, v23")
    A("v_cmp_ne_u32 s[40:41], -1, v24")
    A("v_cmp_ne_u32 s[42:43], -1, v25")
    A("s_nop 1")
    A("s_and_b64 s[36:37], s[36:37], vcc")
    A("s_and_b64 s[40:41], s[40:41], s[42:43]")
    A("s_and_b64 s[36:37], s[36:37], s[40:41]")
    A("s_cmp_eq_u64 s[36:37], -1")
    A(f"s_cbranch_scc1 {P}GOT")
    A("s_add_u32 s38, s38, 1")
    A(f"s_cmp_lt_u32 s38, {SPIN_MAX}")
    A(f"s_cbranch_scc1 {P}POLL")
    A.label(f"{P}GOT")
    A("v_add_f32 v22, v22, v24")
    A("v_add_f32 v23, v23, v25")
    for v in (22,23):
        A(f"v_mov_b32 v24, v{v}")
        A("s_nop 1")
        A(f"v_permlane32_swap_b32 v{v}, v24")
        A("s_nop 1")
        A(f"v_add_f32 v{v}, v{v}, v24")
    A(f"v_mul_f32 v22, {hex(f2u(1.0/576))}, v22     ; mu")
    A(f"v_mul_f32 v23, {hex(f2u(1.0/576))}, v23")
    A("v_fma_f32 v23, -v22, v22, v23")
    A("v_max_f32 v23, 0, v23")
    A(f"v_add_f32 v23, {hex(f2u(1e-5))}, v23")
    A("v_rsq_f32 v23, v23")
    A("s_nop 0")
    A(f"ds_write_b64 v54, v[22:23] offset:{L_MR}")
    A("s_waitcnt lgkmcnt(0)")
    A.label(f"{P}WAITST")
    A("s_barrier")
    A("v_lshlrev_b32 v53, 3, v3")
    A(f"ds_read_b64 v[24:25], v53 offset:{L_MR}")
    A(f"ds_read_b64 v[26:27], v53 offset:{L_MR+128}")
    A("s_waitcnt lgkmcnt(0)")
    for rt in range(2):
        a = ACC+4*rt; y = 48+2*rt; mu = 24+2*rt; rs = mu+1
        A(f"v_lshlrev_b32 v52, 16, v{y}")
        A(f"v_and_b32 v53, 0xffff0000, v{y}")
        A(f"v_lshlrev_b32 v54, 16, v{y+1}")
        A(f"v_and_b32 v55, 0xffff0000, v{y+1}")
        for r in range(4):
            A(f"v_sub_f32 v56, v{a+r}, v{mu}")
            A(f"v_mul_f32 v56, v56, v{rs}")
            A(f"v_fmac_f32 v{a+r}, v56, v{52+r}")
        A(f"v_cvt_pk_bf16_f32 v{44+2*rt}, v{a}, v{a+1}")
        A(f"v_cvt_pk_bf16_f32 v{45+2*rt}, v{a+2}, v{a+3}")
    A(f"ds_write_b64 v40, v[44:45] offset:{L_XT}")
    A(f"ds_write_b64 v40, v[46:47] offset:{L_XT + 16*288}")
    if layer == 0:
        for rt in range(2):
            a = ACC+4*rt; x = 44+2*rt
            A(f"v_lshlrev_b32 v{a}, 16, v{x}")
            A(f"v_and_b32 v{a+1}, 0xffff0000, v{x}")
            A(f"v_lshlrev_b32 v{a+2}, 16, v{x+1}")
            A(f"v_and_b32 v{a+3}, 0xffff0000, v{x+1}")
        partial_stats("b")
    else:
        A("s_waitcnt lgkmcnt(0)")
        A("s_barrier")
    A("v_lshlrev_b32 v53, 4, v0")
    A(f"ds_read_b128 v[28:31], v53 offset:{L_XT}")
    A("s_waitcnt lgkmcnt(0)")
    A("buffer_store_dwordx4 v[28:31], v60, s[16:19], s32 offen")
    if layer == 0:
        A("s_cmp_lg_u32 s22, 0")
        A(f"s_cbranch_scc1 {P}FIN")
        wg_sum()
        A("v_and_b32 v54, 31, v1")
        A("v_lshlrev_b32 v54, 5, v54")
        A("s_lshl_b32 s33, s20, 10")
        A("s_lshl_b32 s35, s21, 3")
        A("s_add_u32 s33, s33, s35")
        A(f"s_add_u32 s33, s33, {ST1}")
        A("s_mov_b32 exec_hi, 0")
        A("buffer_store_dwordx2 v[20:21], v54, s[12:15], s33 offen")
    A.label(f"{P}FIN")
    A("s_waitcnt vmcnt(0)")
    A.label(f"{P}END")
    A("s_endpgm")
    return kernel_header(name) + A.text(), kernel_desc(name, 136), f"; @launch kernel={name} grid=(256,1,1) block=(576,1,1) lds={LDS_OPG}"
```

```python
from asmlib import *
from layout import *

N_WP, N_WO, N_ST, N_T, N_ONES, N_EX = 64, 36, 64, 288, 32, 32
B_WP = 0; B_WO = B_WP+N_WP; B_ST = B_WO+N_WO; B_T = B_ST+N_ST; B_ONES = B_T+N_T; B_EX = B_ONES+N_ONES; B_END = B_EX+N_EX
OOB = 0x40000000

def swap_add32(A, v, t):
    A(f"v_mov_b32 v{t}, v{v}")
    A("s_nop 1")
    A(f"v_permlane32_swap_b32 v{v}, v{t}")
    A("s_nop 1")
    A(f"v_add_f32 v{v}, v{v}, v{t}")

def role_wpack(A):
    A("s_load_dwordx2 s[4:5], s[0:1], %d" % KA_WQKV)
    A("s_load_dwordx2 s[6:7], s[0:1], %d" % KA_WS)
    A("s_lshr_b32 s20, s2, 2            ; cg")
    A("s_and_b32 s21, s2, 3             ; t")
    A("v_and_b32 v1, 63, v0             ; lane")
    A("v_lshrrev_b32 v2, 6, v0          ; wave")
    A("v_and_b32 v3, 31, v1             ; f")
    A("v_readfirstlane_b32 s22, v2")
    A("v_lshrrev_b32 v4, 5, v1          ; g")
    A("s_mul_i32 s23, s20, 36           ; a*18 = 2cg*18")
    A("v_lshrrev_b32 v5, 4, v3")
    A("v_mul_u32_u24 v5, 18, v5")
    L3, L2, Ld = "PW_T3", "PW_T2", "PW_D"
    A("s_cmp_eq_u32 s21, 3")
    A(f"s_cbranch_scc1 {L3}")
    A("s_cmp_eq_u32 s21, 2")
    A(f"s_cbranch_scc1 {L2}")
    A("v_bfe_u32 v6, v3, 2, 1")
    A("v_lshlrev_b32 v6, 3, v6")
    A("v_bfe_u32 v7, v3, 3, 1")
    A("v_lshl_add_u32 v6, v7, 2, v6")
    A("v_and_b32 v7, 3, v3")
    A("v_add3_u32 v6, v6, v7, v5        ; 18*(f>>4)+dim")
    A("s_mul_i32 s24, s21, 576")
    A("s_add_u32 s24, s24, s23")
    A("v_add_u32 v6, s24, v6            ; col")
    A("v_lshlrev_b32 v6, 1, v6")
    A(f"s_branch {Ld}")
    A.label(L2)
    A("v_and_b32 v6, 15, v3")
    A("v_add_u32 v6, v6, v5")
    A("s_add_u32 s24, s23, 1152")
    A("v_add_u32 v6, s24, v6")
    A("v_lshlrev_b32 v6, 1, v6")
    A(f"s_branch {Ld}")
    A.label(L3)
    A("v_lshrrev_b32 v6, 2, v3")
    A("v_mul_u32_u24 v6, 576, v6")
    A("v_bfe_u32 v7, v3, 1, 1")
    A("v_mul_u32_u24 v7, 18, v7")
    A("v_and_b32 v8, 1, v3")
    A("v_add3_u32 v6, v6, v7, v8")
    A("s_add_u32 s24, s23, 16")
    A("v_add_u32 v6, s24, v6")
    A("v_lshlrev_b32 v6, 1, v6")
    A("v_cmp_gt_u32 vcc, 12, v3")
    A(f"v_mov_b32 v7, {hex(OOB)}")
    A("s_nop 0")
    A("v_cndmask_b32 v6, v7, v6, vcc")
    A.label(Ld)
    A("v_mul_u32_u24 v7, 27648, v4")
    A("v_add_u32 v6, v6, v7")
    A("s_waitcnt lgkmcnt(0)")
    srd(A, 8, 4, SZ_WQKV)
    srd(A, 12, 6, WP_SZ + 0x3000, off=WP)
    A("s_mul_i32 s25, s22, %d" % (9*16*3456))
    for ks in range(9):
        for i in range(8):
            A(f"s_add_u32 s26, s25, {(16*ks+i)*3456}")
            A(f"buffer_load_ushort v{16+8*ks+i}, v6, s[8:11], s26 offen")
    A("s_mul_i32 s27, s2, 36")
    A("s_mul_i32 s28, s22, 9")
    A("s_add_u32 s27, s27, s28")
    A("s_lshl_b32 s27, s27, 10")
    A("v_lshlrev_b32 v9, 4, v1")
    A("v_mov_b32 v10, 0")
    A("s_mov_b32 s29, 0x3f803f80")
    A("s_waitcnt vmcnt(0)")
    for ks in range(9):
        b = 16+8*ks
        for j in range(4):
            A(f"v_lshl_or_b32 v{96+j}, v{b+2*j+1}, 16, v{b+2*j}")
        for j in range(4):
            A(f"v_dot2_f32_bf16 v10, v{96+j}, s29, v10")
        A(f"buffer_store_dwordx4 v[96:99], v9, s[12:15], s27 offen")
        A("s_add_u32 s27, s27, 1024")
        A("s_nop 1")
    swap_add32(A, 10, 11)
    A("v_lshlrev_b32 v12, 2, v0         ; tid*4")
    A("ds_write_b32 v12, v10")
    A("s_waitcnt lgkmcnt(0)")
    A("s_barrier")
    A("v_lshlrev_b32 v12, 2, v3         ; f*4")
    A("ds_read_b32 v20, v12")
    A("ds_read_b32 v21, v12 offset:256")
    A("ds_read_b32 v22, v12 offset:512")
    A("ds_read_b32 v23, v12 offset:768")
    A("s_waitcnt lgkmcnt(0)")
    A("v_add_f32 v20, v20, v21")
    A("v_add_f32 v22, v22, v23")
    A("v_add_f32 v20, v20, v22")
    A("s_lshl_b32 s27, s2, 7")
    A(f"s_add_u32 s27, s27, {CS-WP}")
    A("v_cmp_gt_u32 vcc, 32, v0")
    A("s_and_saveexec_b64 s[30:31], vcc")
    A("s_cbranch_execz PW_END")
    A("buffer_store_dword v20, v12, s[12:15], s27 offen")
    A.label("PW_END")
    A("s_waitcnt vmcnt(0)")
    A("s_endpgm")

def role_wopack(A):
    A("s_load_dwordx2 s[4:5], s[0:1], %d" % KA_WO)
    A("s_load_dwordx2 s[6:7], s[0:1], %d" % KA_WS)
    A(f"s_sub_u32 s20, s2, {B_WO}       ; j")
    A("v_and_b32 v1, 63, v0")
    A("v_lshrrev_b32 v2, 6, v0")
    A("v_and_b32 v3, 15, v1             ; f")
    A("v_readfirstlane_b32 s22, v2      ; wave")
    A("v_lshrrev_b32 v4, 4, v1          ; kg")
    A("s_lshl_b32 s23, s20, 4           ; n0")
    A("v_add_u32 v5, s23, v3")
    A("v_lshlrev_b32 v5, 1, v5          ; n*2")
    A("v_lshrrev_b32 v6, 1, v4")
    A("v_mul_u32_u24 v6, 18, v6")
    A("v_and_b32 v7, 1, v4")
    A("v_lshl_add_u32 v6, v7, 2, v6")
    A("v_mul_u32_u24 v6, 1152, v6")
    A("v_add_u32 v6, v6, v5")
    A("v_mul_u32_u24 v7, %d, v4" % (72*1152))
    A("v_add_u32 v7, v7, v5")
    A("s_waitcnt lgkmcnt(0)")
    srd(A, 8, 4, SZ_WO)
    srd(A, 12, 6, WOP_SZ, off=WOP)
    A("s_mul_i32 s25, s22, %d" % (36*1152))
    for m in range(4):
        for i in range(8):
            A(f"s_add_u32 s26, s25, {(36*4*m + (i&3) + 8*(i>>2))*1152}")
            A(f"buffer_load_ushort v{16+8*m+i}, v6, s[8:11], s26 offen")
    A("s_and_b32 s24, s22, 1")
    A("s_mul_i32 s25, s24, %d" % (288*1152))
    for i in range(8):
        A(f"s_add_u32 s26, s25, {(18*(i>>1)+16+(i&1))*1152}")
        A(f"buffer_load_ushort v{48+i}, v7, s[8:11], s26 offen")
    A("v_lshlrev_b32 v9, 4, v1")
    A("s_mul_i32 s27, s20, 18")
    A("s_add_u32 s27, s27, s22")
    A("s_lshl_b32 s27, s27, 10          ; (j*18 + wave)*1024")
    A("s_waitcnt vmcnt(0)")
    for m in range(4):
        b = 16+8*m
        for j in range(4):
            A(f"v_lshl_or_b32 v{96+j}, v{b+2*j+1}, 16, v{b+2*j}")
        A(f"buffer_store_dwordx4 v[96:99], v9, s[12:15], s27 offen")
        A("s_add_u32 s27, s27, 4096")
        A("s_nop 1")
    A("s_cmp_ge_u32 s22, 2")
    A("s_cbranch_scc1 PO_END")
    for j in range(4):
        A(f"v_lshl_or_b32 v{96+j}, v{48+2*j+1}, 16, v{48+2*j}")
    A("s_mul_i32 s27, s20, 18")
    A("s_add_u32 s27, s27, s22")
    A("s_add_u32 s27, s27, 16")
    A("s_lshl_b32 s27, s27, 10")
    A(f"buffer_store_dwordx4 v[96:99], v9, s[12:15], s27 offen")
    A.label("PO_END")
    A("s_waitcnt vmcnt(0)")
    A("s_endpgm")

def dpp_sum8(A, v):
    A("s_nop 1")
    A(f"v_add_f32_dpp v{v}, v{v}, v{v} quad_perm:[1,0,3,2] row_mask:0xf bank_mask:0xf")
    A("s_nop 1")
    A(f"v_add_f32_dpp v{v}, v{v}, v{v} quad_perm:[2,3,0,1] row_mask:0xf bank_mask:0xf")
    A("s_nop 1")
    A(f"v_add_f32_dpp v{v}, v{v}, v{v} row_half_mirror row_mask:0xf bank_mask:0xf")

def role_stats(A):
    A("s_load_dwordx2 s[4:5], s[0:1], %d" % KA_X)
    A("s_load_dwordx2 s[6:7], s[0:1], %d" % KA_WS)
    A(f"s_sub_u32 s20, s2, {B_ST}")
    A("s_lshl_b32 s20, s20, 5          ; row0 = 32*j")
    A("v_lshrrev_b32 v1, 3, v0")
    A("v_add_u32 v1, s20, v1           ; row")
    A("v_and_b32 v2, 7, v0             ; c")
    A("v_mul_u32_u24 v3, 1152, v1")
    A("v_lshl_add_u32 v3, v2, 4, v3")
    A("s_waitcnt lgkmcnt(0)")
    srd(A, 8, 4, SZ_X)
    srd(A, 12, 6, ST_SZ, off=ST0)
    for m in range(9):
        A(f"buffer_load_dwordx4 v[{16+4*m}:{19+4*m}], v3, s[8:11], 0 offen offset:{128*m}")
    A("v_mov_b32 v4, 0")
    A("v_mov_b32 v5, 0")
    A("s_mov_b32 s29, 0x3f803f80")
    for m in range(9):
        A(f"s_waitcnt vmcnt({8-m})")
        for j in range(4):
            A(f"v_dot2_f32_bf16 v4, v{16+4*m+j}, s29, v4")
            A(f"v_dot2_f32_bf16 v5, v{16+4*m+j}, v{16+4*m+j}, v5")
    dpp_sum8(A, 4)
    dpp_sum8(A, 5)
    A("v_cmp_eq_u32 vcc, 0, v2")
    A("v_lshlrev_b32 v6, 5, v1")
    A("v_lshl_add_u32 v6, v2, 3, v6")
    A("v_cndmask_b32 v4, 0, v4, vcc")
    A("v_cndmask_b32 v5, 0, v5, vcc")
    A("v_cmp_gt_u32 vcc, 4, v2")
    A("s_and_saveexec_b64 s[30:31], vcc")
    A("s_cbranch_execz PS_END")
    A("buffer_store_dwordx2 v[4:5], v6, s[12:15], 0 offen")
    A.label("PS_END")
    A("s_waitcnt vmcnt(0)")
    A("s_endpgm")

def role_T(A):
    A("s_load_dwordx2 s[4:5], s[0:1], %d" % KA_BK)
    A("s_load_dwordx2 s[6:7], s[0:1], %d" % KA_BV)
    A("s_load_dwordx2 s[16:17], s[0:1], %d" % KA_SHIFT)
    A("s_load_dwordx2 s[18:19], s[0:1], %d" % KA_WS)
    A(f"s_sub_u32 s20, s2, {B_T}        ; j")
    A("s_mul_hi_u32 s21, s20, %d        ; tb = j/9" % ((2**32+8)//9))
    A("s_mul_i32 s22, s21, 9")
    A("s_sub_u32 s22, s20, s22          ; cb")
    A("v_and_b32 v1, 7, v0              ; tg")
    A("v_lshrrev_b32 v2, 3, v0          ; cp (0..31)")
    A("s_lshl_b32 s23, s21, 6           ; t0")
    A("v_lshl_add_u32 v3, v1, 3, s23    ; T = t0 + 8*tg")
    A("s_lshl_b32 s24, s22, 5")
    A("v_add_u32 v4, s24, v2")
    A("v_mul_u32_u24 v5, 1152, v3")
    A("v_lshl_add_u32 v5, v4, 2, v5")
    A("v_cmp_eq_u32 vcc, 0, v3")
    A(f"v_mov_b32 v9, {hex(OOB)}")
    for j in range(3):
        A(f"v_subrev_u32 v{6+j}, {(3-j)*1152}, v5")
        A(f"v_cndmask_b32 v{6+j}, v{6+j}, v9, vcc")
    for m in range(8):
        A(f"s_mov_b32 s{40+m}, {m*1152}")
    A("v_lshlrev_b32 v10, 4, v4")
    A("s_waitcnt lgkmcnt(0)")
    srd(A, 8, 4, SZ_X)
    srd(A, 12, 6, SZ_X)
    srd(A, 24, 16, SZ_SHIFT)
    srd(A, 28, 18, XR_SZ, off=XR)
    A("buffer_load_dwordx4 v[12:15], v10, s[24:27], 0 offen")
    for j in range(3):
        A(f"buffer_load_dword v{16+j}, v{6+j}, s[8:11], 0 offen")
    for m in range(8):
        A(f"buffer_load_dword v{19+m}, v5, s[8:11], s{40+m} offen")
    for m in range(8):
        A(f"buffer_load_dword v{28+m}, v5, s[12:15], s{40+m} offen")
    A("s_waitcnt vmcnt(0)")
    for c in range(2):
        A(f"v_lshlrev_b32 v{40+4*c}, 16, v{12+2*c}")
        A(f"v_and_b32 v{41+4*c}, 0xffff0000, v{12+2*c}")
        A(f"v_lshlrev_b32 v{42+4*c}, 16, v{13+2*c}")
        A(f"v_and_b32 v{43+4*c}, 0xffff0000, v{13+2*c}")
    for j in range(11):
        A(f"v_lshlrev_b32 v{48+j}, 16, v{16+j}")
        A(f"v_and_b32 v{60+j}, 0xffff0000, v{16+j}")
    for m in range(8):
        A(f"v_lshlrev_b32 v{72+m}, 16, v{28+m}")
        A(f"v_and_b32 v{80+m}, 0xffff0000, v{28+m}")
    for c in range(2):
        kb = 48+12*c; wb = 40+4*c; vb = 72+8*c
        for m in range(8):
            A(f"v_mul_f32 v90, v{kb+m}, v{wb+3}")
            A(f"v_fmac_f32 v90, v{kb+m+1}, v{wb+2}")
            A(f"v_fmac_f32 v90, v{kb+m+2}, v{wb+1}")
            A(f"v_fmac_f32 v90, v{kb+m+3}, v{wb+0}")
            A(f"v_mul_f32 v{vb+m}, v90, v{vb+m}")
        for mm in range(4):
            A(f"v_cvt_pk_bf16_f32 v{92+4*c+mm}, v{vb+7-2*mm}, v{vb+6-2*mm}")
    A("v_sub_u32 v6, 2040, v3")
    A("v_lshlrev_b32 v6, 1, v6")
    A("v_lshl_add_u32 v6, v4, 13, v6    ; cp*2*4096")
    A("buffer_store_dwordx4 v[92:95], v6, s[28:31], 0 offen")
    A("v_add_u32 v7, 4096, v6")
    A("buffer_store_dwordx4 v[96:99], v7, s[28:31], 0 offen")
    A("s_waitcnt vmcnt(0)")
    A("s_endpgm")

def role_ones(A):
    A("s_load_dwordx2 s[6:7], s[0:1], %d" % KA_WS)
    A(f"s_sub_u32 s20, s2, {B_ONES}      ; head")
    A("v_lshrrev_b32 v1, 1, v0          ; group 0..127")
    A("v_and_b32 v2, 1, v0              ; g")
    A("v_mul_u32_u24 v1, 608, v1")
    A("v_mul_u32_u24 v2, 304, v2")
    A("v_add3_u32 v1, v1, v2, 0")
    A(f"s_mul_i32 s21, s20, {VT_HEAD}")
    A("s_add_u32 s21, s21, 288")
    for j in range(4):
        A(f"v_mov_b32 v{4+j}, 0x3f803f80")
    A("s_waitcnt lgkmcnt(0)")
    srd(A, 12, 6, VT_SZ, off=VT)
    A("buffer_store_dwordx4 v[4:7], v1, s[12:15], s21 offen")
    A("s_waitcnt vmcnt(0)")
    A("s_endpgm")

def role_ex(A):
    A("s_load_dwordx2 s[6:7], s[0:1], %d" % KA_WS)
    A(f"s_sub_u32 s20, s2, {B_EX}")
    A("s_lshl_b32 s20, s20, 12")
    A("v_lshlrev_b32 v1, 4, v0")
    for j in range(4):
        A(f"v_mov_b32 v{4+j}, -1")
    A("s_waitcnt lgkmcnt(0)")
    assert EX1 == EX0 + EX_SZ
    srd(A, 12, 6, 2*EX_SZ, off=EX0)
    A("buffer_store_dwordx4 v[4:7], v1, s[12:15], s20 offen")
    A("s_waitcnt vmcnt(0)")
    A("s_endpgm")

def gen_prep(name="prep_kernel"):
    A = Asm()
    for b, lab in ((B_WO,"R_WP"),(B_ST,"R_WO"),(B_T,"R_ST"),(B_ONES,"R_T"),(B_EX,"R_ONES"),(B_END,"R_EX")):
        A(f"s_cmp_lt_u32 s2, {b}")
        A(f"s_cbranch_scc1 {lab}")
    A("s_endpgm")
    A.label("R_WP");  role_wpack(A)
    A.label("R_WO");  role_wopack(A)
    A.label("R_ST");  role_stats(A)
    A.label("R_T");   role_T(A)
    A.label("R_ONES"); role_ones(A)
    A.label("R_EX");  role_ex(A)
    return kernel_header(name) + A.text(), kernel_desc(name, 104), f"; @launch kernel={name} grid=({B_END},1,1) block=(256,1,1) lds=1024"
```

```python
from asmlib import *
from layout import *
import struct
def f2u(x): return struct.unpack("<I", struct.pack("<f", x))[0]

XL = 147456
L_MU = 0
L_RS = 512
L_TV = 1024
XB = 2048
LDS_QKV = XB + XL

ACC = 64
XF = [128, 144]
V_F = 8
V_X0, V_X1 = 12, 13
V_W = 14
V_MU = 16
V_RS = 20
V_CS = 24

def gen_qkv(layer):
    name = f"qkv{layer}_kernel"
    P = f"Q{layer}_"
    A = Asm()
    A("s_cmp_ge_u32 s2, 256")
    A(f"s_cbranch_scc1 {P}END")
    if layer == 0:
        A("s_load_dwordx2 s[4:5], s[0:1], %d" % KA_X)
    A("s_load_dwordx2 s[6:7], s[0:1], %d" % KA_WS)
    A("v_lshrrev_b32 v2, 6, v0")
    A("v_and_b32 v1, 63, v0             ; lane")
    A("v_readfirstlane_b32 s22, v2")
    A("s_and_b32 s20, s2, 7             ; xcd")
    A("s_lshr_b32 s21, s2, 3            ; j")
    A("s_lshr_b32 s23, s20, 1")
    A("s_lshl_b32 s23, s23, 2")
    A("s_lshr_b32 s24, s21, 3")
    A("s_add_u32 s23, s23, s24          ; rb")
    A("s_and_b32 s24, s20, 1")
    A("s_lshl_b32 s24, s24, 3")
    A("s_and_b32 s25, s21, 7")
    A("s_add_u32 s24, s24, s25          ; cg")
    A("v_lshrrev_b32 v3, 3, v1")
    A("s_lshl_b32 s25, s22, 5")
    A("v_add_u32 v3, s25, v3")
    A("v_mul_u32_u24 v3, 1152, v3")
    A("v_lshrrev_b32 v4, 4, v1          ; l>>4")
    A("v_and_b32 v5, 7, v1")
    A("v_xor_b32 v6, v5, v4")
    A(f"v_lshl_add_u32 v{V_X0}, v6, 4, v3")
    A("v_xor_b32 v6, 4, v6")
    A(f"v_lshl_add_u32 v{V_X1}, v6, 4, v3")
    A(f"v_lshlrev_b32 v{V_W}, 4, v1")
    A("v_and_b32 v3, 31, v1             ; r32")
    A("v_lshrrev_b32 v4, 5, v1          ; g")
    A("v_bfe_u32 v5, v3, 1, 3           ; sw2")
    for kk in range(4):
        A(f"v_add_u32 v6, {2*kk}, v4")
        A("v_xor_b32 v6, v6, v5")
        A("v_lshlrev_b32 v6, 4, v6")
        A(f"v_lshl_add_u32 v{V_F+kk}, v3, 7, v6")
    A("s_waitcnt lgkmcnt(0)")
    if layer == 0:
        srd(A, 8, 4, SZ_X)
    else:
        srd(A, 8, 6, X2_SZ, off=X2)
    srd(A, 12, 6, WS_USED)
    A("s_mul_i32 s26, s23, %d           ; rb*128*1152" % (128*1152))
    A("s_lshl_b32 s27, s24, 2")
    A("s_add_u32 s27, s27, s22          ; cg*4+t")
    A("s_mul_i32 s28, s27, %d" % (36*1024))
    if WP: A(f"s_add_u32 s28, s28, {WP}")
    A("s_lshl_b32 s29, s22, 12")
    def issue_chunk(kc):
        for i in range(4):
            A(f"s_add_u32 s30, s29, {XB + kc*16384 + i*1024}")
            A("s_mov_b32 m0, s30")
            A(f"s_add_u32 s31, s26, {8*i*1152 + kc*128}")
            A(f"buffer_load_dwordx4 v{V_X0 if i%2==0 else V_X1}, s[8:11], s31 offen lds")
        A(f"s_add_u32 s31, s28, {4*kc*1024}")
        for kk in range(4):
            ks = 4*kc+kk
            A(f"buffer_load_dwordx4 a[{4*ks}:{4*ks+3}], v{V_W}, s[12:15], s31 offen offset:{kk*1024}")
    stb = ST0 if layer == 0 else ST1
    A("s_lshl_b32 s32, s23, 12          ; rb*128*32")
    A(f"s_add_u32 s32, s32, {stb}")
    A("v_lshlrev_b32 v40, 5, v3         ; r32*32")
    for rt in range(4):
        A(f"buffer_load_dwordx4 v[{128+8*rt}:{131+8*rt}], v40, s[12:15], s32 offen offset:{rt*1024}")
        A(f"buffer_load_dwordx4 v[{132+8*rt}:{135+8*rt}], v40, s[12:15], s32 offen offset:{rt*1024+16}")
    A("s_lshl_b32 s33, s27, 7")
    A(f"s_add_u32 s33, s33, {CS}")
    A("v_lshlrev_b32 v41, 4, v4         ; g*16")
    A("v_lshlrev_b32 v42, 2, v3         ; f*4")
    for j in range(4):
        A(f"buffer_load_dwordx4 v[{V_CS+4*j}:{V_CS+4*j+3}], v41, s[12:15], s33 offen offset:{32*j}")
    A("buffer_load_dword v43, v42, s[12:15], s33 offen")
    NPRE = 6
    for kc in range(NPRE): issue_chunk(kc)
    for i in range(64): A(f"v_mov_b32 v{ACC+i}, 0")
    A(f"s_waitcnt vmcnt({8*NPRE + 5})")
    for rt in range(4):
        b = 128+8*rt
        A(f"v_add_f32 v{b}, v{b}, v{b+2}")
        A(f"v_add_f32 v{b+4}, v{b+4}, v{b+6}")
        A(f"v_add_f32 v{b+1}, v{b+1}, v{b+3}")
        A(f"v_add_f32 v{b+5}, v{b+5}, v{b+7}")
        A(f"v_add_f32 v{b}, v{b}, v{b+4}          ; sum")
        A(f"v_add_f32 v{b+1}, v{b+1}, v{b+5}      ; sumsq")
        A(f"v_mul_f32 v{V_MU+rt}, {hex(f2u(1.0/576))}, v{b}")
        A(f"v_mul_f32 v{b+1}, {hex(f2u(1.0/576))}, v{b+1}")
        A(f"v_fma_f32 v{b+1}, -v{V_MU+rt}, v{V_MU+rt}, v{b+1}   ; var")
        A(f"v_max_f32 v{b+1}, 0, v{b+1}")
        A(f"v_add_f32 v{b+1}, {hex(f2u(1e-5))}, v{b+1}")
        A(f"v_rsq_f32 v{V_RS+rt}, v{b+1}")
    A("s_cmp_eq_u32 s22, 2")
    A(f"s_cbranch_scc0 {P}NOPUB")
    A("s_nop 0")
    for rt in range(4):
        A(f"ds_write_b32 v42, v{V_MU+rt} offset:{L_MU+128*rt}")
        A(f"ds_write_b32 v42, v{V_RS+rt} offset:{L_RS+128*rt}")
    A.label(f"{P}NOPUB")

    def reads(kc, kk, st):
        off = XB + (kc % 4)*16384
        for rt in range(4):
            A(f"ds_read_b128 v[{XF[st]+4*rt}:{XF[st]+4*rt+3}], v{V_F+kk} offset:{off+rt*4096}")
    def wait_chunk(kc):
        issued = min(kc+NPRE, 9)
        A(f"s_waitcnt vmcnt({8*(issued-(kc+1))})")
        A("s_barrier")
    def mainloop(swap, tag):
        wait_chunk(0)
        reads(0, 0, 0)
        for kc in range(9):
            if kc + NPRE < 9: issue_chunk(kc+NPRE)
            for kk in range(4):
                ks = 4*kc+kk
                st = ks & 1
                if kk < 3:
                    A("s_waitcnt lgkmcnt(0)")
                    reads(kc, kk+1, st^1)
                else:
                    A("s_waitcnt lgkmcnt(0)")
                    if kc < 8:
                        issued = min(kc+1+NPRE, 9) if kc+NPRE >= 9 else kc+1+NPRE
                        issued = min(kc+NPRE+1, 9)
                        A(f"s_waitcnt vmcnt({8*(issued-(kc+2))})")
                        A("s_barrier")
                        if (kc+1) % 4 == 0:
                            for q in range(4): A(f"v_add_u32 v{V_F+q}, 0x10000, v{V_F+q}")
                        reads(kc+1, 0, st^1)
                for rt in range(4):
                    w = f"a[{4*ks}:{4*ks+3}]"; x = f"v[{XF[st]+4*rt}:{XF[st]+4*rt+3}]"
                    d = f"v[{ACC+16*rt}:{ACC+16*rt+15}]"
                    if swap: A(f"v_mfma_f32_32x32x16_bf16 {d}, {x}, {w}, {d}")
                    else:    A(f"v_mfma_f32_32x32x16_bf16 {d}, {w}, {x}, {d}")
    A("s_cmp_eq_u32 s22, 2")
    A(f"s_cbranch_scc1 {P}T2")
    mainloop(False, "a")
    A("s_nop 15")
    A("s_cmp_eq_u32 s22, 3")
    A(f"s_cbranch_scc1 {P}T3")
    A("s_cmp_eq_u32 s22, 0")
    A(f"s_cselect_b32 s34, {hex(f2u(QSCALE))}, 1.0")
    A(f"s_mov_b32 s36, {KM}")
    A(f"s_cselect_b32 s35, {QM}, s36")
    A("s_lshl_b32 s36, s24, 17")
    A("s_add_u32 s35, s35, s36")
    A("s_lshl_b32 s36, s23, 12")
    A("s_add_u32 s35, s35, s36")
    for rt in range(4):
        A(f"v_mul_f32 v44, s34, v{V_RS+rt}")
        a = ACC+16*rt
        for r in range(16):
            A(f"v_fma_f32 v{a+r}, -v{V_MU+rt}, v{V_CS+r}, v{a+r}")
        for r in range(16):
            A(f"v_mul_f32 v{a+r}, v44, v{a+r}")
        for hh in range(2):
            t = 128+8*rt+4*hh
            for j in range(4):
                A(f"v_cvt_pk_bf16_f32 v{t+j}, v{a+8*hh+2*j}, v{a+8*hh+2*j+1}")
            A(f"s_add_u32 s37, s35, {rt*1024 + hh*65536}")
            A(f"buffer_store_dwordx4 v[{t}:{t+3}], v{V_W}, s[12:15], s37 offen")
    A(f"s_branch {P}FIN")
    A.label(f"{P}T3")
    A("v_cmp_eq_u32 vcc, 0, v4          ; g==0")
    A(f"v_mov_b32 v45, {hex(f2u(QSCALE))}")
    A(f"v_mov_b32 v46, {KE}")
    A(f"v_mov_b32 v47, {QE}")
    A("v_cndmask_b32 v45, 1.0, v45, vcc")
    A("v_cndmask_b32 v46, v46, v47, vcc")
    A("s_lshl_b32 s35, s24, 14          ; head a*8192")
    A("s_lshl_b32 s36, s23, 9           ; rb*128*4")
    A("s_add_u32 s35, s35, s36")
    A("v_add_u32 v46, v46, v42          ; + r32*4")
    A("v_bfe_u32 v48, v3, 2, 1")
    A("v_bfe_u32 v49, v3, 3, 1")
    A("v_and_b32 v50, 0x13, v3")
    A("v_lshl_add_u32 v50, v48, 3, v50")
    A("v_lshl_add_u32 v50, v49, 2, v50")
    A("v_lshlrev_b32 v50, 1, v50")
    for rt in range(4):
        a = ACC+16*rt
        for r in range(8):
            A(f"v_fma_f32 v{a+r}, -v{V_MU+rt}, v{V_CS+r}, v{a+r}")
        A(f"v_mul_f32 v44, v45, v{V_RS+rt}")
        for r in range(4):
            A(f"v_mul_f32 v{a+r}, v44, v{a+r}")
        for r in range(4,8):
            A(f"v_mul_f32 v{a+r}, v{V_RS+rt}, v{a+r}")
        t = 128+4*rt
        for j in range(4):
            A(f"v_cvt_pk_bf16_f32 v{t+j}, v{a+2*j}, v{a+2*j+1}")
        A(f"s_add_u32 s37, s35, {rt*128}")
        A(f"buffer_store_dword v{t}, v46, s[12:15], s37 offen")
        A(f"s_add_u32 s37, s35, {rt*128+8192}")
        A(f"buffer_store_dword v{t+1}, v46, s[12:15], s37 offen")
        A("s_mov_b32 exec_hi, 0")
        A(f"ds_write_b16 v50, v{t+2} offset:{L_TV+rt*64}")
        A(f"ds_write_b16_d16_hi v50, v{t+2} offset:{L_TV+256+rt*64}")
        A(f"ds_write_b16 v50, v{t+3} offset:{L_TV+512+rt*64}")
        A(f"ds_write_b16_d16_hi v50, v{t+3} offset:{L_TV+768+rt*64}")
        A("s_mov_b64 exec, -1")
    A("s_waitcnt lgkmcnt(0)")
    A(f"ds_read_b128 v[144:147], v{V_W} offset:{L_TV}")
    A("v_lshrrev_b32 v51, 5, v1         ; j>>1")
    A(f"v_mul_u32_u24 v51, {VT_HEAD}, v51")
    A("v_bfe_u32 v52, v1, 4, 1          ; j&1")
    A("v_lshl_add_u32 v51, v52, 4, v51")
    A("v_bfe_u32 v52, v1, 1, 3          ; q>>1")
    A("v_mul_u32_u24 v52, 608, v52")
    A("v_add_u32 v51, v51, v52")
    A("v_and_b32 v52, 1, v1")
    A("v_mul_u32_u24 v52, 304, v52")
    A("v_add_u32 v51, v51, v52")
    A(f"s_mul_i32 s35, s24, {2*VT_HEAD}")
    A(f"s_mul_i32 s36, s23, {8*608}")
    A("s_add_u32 s35, s35, s36")
    A(f"s_add_u32 s35, s35, {VT + 16*16}")
    A("s_waitcnt lgkmcnt(0)")
    A("buffer_store_dwordx4 v[144:147], v51, s[12:15], s35 offen")
    A(f"s_branch {P}FIN")
    A.label(f"{P}T2")
    mainloop(True, "b")
    A("v_lshlrev_b32 v41, 4, v4         ; g*16")
    A(f"s_mul_i32 s35, s24, {2*VT_HEAD}")
    A(f"s_mul_i32 s36, s23, {8*608}")
    A("s_add_u32 s35, s35, s36")
    A(f"s_add_u32 s35, s35, {VT}")
    A("v_lshrrev_b32 v51, 4, v3")
    A(f"v_mul_u32_u24 v51, {VT_HEAD}, v51")
    A("v_mul_u32_u24 v52, 304, v4")
    A("v_and_b32 v53, 15, v3")
    A("v_lshl_add_u32 v52, v53, 4, v52")
    A("v_add_u32 v51, v51, v52")
    A("s_nop 7")
    for rt in range(4):
        for j in range(4):
            A(f"ds_read_b128 v[{128+4*j}:{131+4*j}], v41 offset:{L_MU+rt*128+32*j}")
            A(f"ds_read_b128 v[{144+4*j}:{147+4*j}], v41 offset:{L_RS+rt*128+32*j}")
        A("s_waitcnt lgkmcnt(0)")
        a = ACC+16*rt
        for r in range(16):
            A(f"v_fma_f32 v{a+r}, -v{128+r}, v43, v{a+r}")
        for r in range(16):
            A(f"v_mul_f32 v{a+r}, v{144+r}, v{a+r}")
        for hh in range(2):
            t = 44 if False else (160+4*hh)
            for j in range(4):
                A(f"v_cvt_pk_bf16_f32 v{t+j}, v{a+8*hh+2*j}, v{a+8*hh+2*j+1}")
            A(f"s_add_u32 s37, s35, {(2*rt+hh)*608}")
            A(f"buffer_store_dwordx4 v[{t}:{t+3}], v51, s[12:15], s37 offen")
        A("s_nop 1")
    A.label(f"{P}FIN")
    A("s_waitcnt vmcnt(0)")
    A.label(f"{P}END")
    A("s_endpgm")
    return kernel_header(name) + A.text(), kernel_desc(name, 168, accum=168, agpr=144), f"; @launch kernel={name} grid=(256,1,1) block=(256,1,1) lds={LDS_QKV}"
```

```python
S = 2048; D = 576; H = 32; DH = 18
KA_X, KA_WQKV, KA_WO, KA_BQ, KA_BK, KA_BV, KA_SHIFT, KA_SSMK, KA_SSMD, KA_OUT, KA_DBG, KA_WS = [8*i for i in range(12)]
SZ_X = S*D*2
SZ_WQKV = D*3*D*2
SZ_WO = D*D*2
SZ_SHIFT = D*4*2
SZ_SSMK = D*S*2
SZ_SSMD = D*2

def _al(x, a=4096): return (x + a - 1)//a*a
_off = 0
def _alloc(n):
    global _off
    o = _off
    _off = _al(_off + n)
    return o
WP_SZ  = 16*4*36*1024;  WP  = _alloc(WP_SZ)
CS_SZ  = 16*4*32*4;     CS  = _alloc(CS_SZ)
WOP_SZ = 4*9*18*1024;   WOP = _alloc(WOP_SZ)
ST_SZ  = 2048*4*2*4;    ST0 = _alloc(ST_SZ); ST1 = _alloc(ST_SZ)
XR_SZ  = D*S*2;         XR  = _alloc(XR_SZ)
YT_SZ  = D*S*2;         YT  = _alloc(YT_SZ)
QM_SZ  = H*S*32;        QM  = _alloc(QM_SZ)
QE_SZ  = H*S*4;         QE  = _alloc(QE_SZ)
KM_SZ  = H*S*32;        KM  = _alloc(KM_SZ)
KE_SZ  = H*S*4;         KE  = _alloc(KE_SZ)
VT_HEAD = 128*608
VT_SZ  = H*VT_HEAD;     VT  = _alloc(VT_SZ + 4096)
OM_SZ  = H*S*32;        OM  = _alloc(OM_SZ)
OE_SZ  = 8*S*16;        OE  = _alloc(OE_SZ)
X2_SZ  = S*D*2;         X2  = _alloc(X2_SZ)
EX_SZ  = 64*4*32*2*4;   EX0 = _alloc(EX_SZ); EX1 = _alloc(EX_SZ)
WS_USED = _off
WS_SIZE = 268435456
QSCALE = (DH ** -0.5) * 1.4426950408889634
if __name__ == "__main__":
    for k,v in list(globals().items()):
        if k.isupper(): print(k, v, hex(v) if isinstance(v,int) else "")
```

```python
import sys
sys.path.insert(0, "gen")
from build import build
import k_prep, k_conv
which = sys.argv[1].split(",")
out = sys.argv[2]
ks = {}; ls = []
def add(t):
    c,d,l = t
    name = l.split("kernel=")[1].split()[0]
    if name not in ks: ks[name] = (c,d)
    ls.append(l)
for w in which:
    if w == "prep": add(k_prep.gen_prep())
    elif w == "conv": add(k_conv.gen_conv())
    elif w == "qkv0":
        import k_qkv; add(k_qkv.gen_qkv(0))
    elif w == "qkv1":
        import k_qkv; add(k_qkv.gen_qkv(1))
    elif w == "att":
        import k_att; add(k_att.gen_att())
    elif w == "opg0":
        import k_opg; add(k_opg.gen_opg(0))
    elif w == "opg1":
        import k_opg; add(k_opg.gen_opg(1))
    else: raise SystemExit("unknown "+w)
open(out,"w").write(build(list(ks.values()), ls))
print("wrote", out)
```

```python
from asmlib import *
from layout import *
import stamps
import struct
def f2u(x): return struct.unpack("<I", struct.pack("<f", x))[0]

HALF = 4*KV_CHUNK
L_FL = 160000
LDS_ATT = L_FL + 64
vK, vKX, vV, vG, vL16, vR = 2, 3, 4, 5, 6, 7
QA, QXA, QXB, QB = 8, 12, 14, 16
KF = [20, 24]; KX = [28, 30]; V0 = [32, 36]; V1 = [40, 44]
PA, PB = 48, 56
OA, OB = 64, 80
SA = [96, 112]; SB = [128, 144]
T = 160

def mf16(A, d, a, b, c=None):
    c = f"v[{d}:{d+15}]" if c is None else c
    A(f"v_mfma_f32_32x32x16_bf16 v[{d}:{d+15}], v[{a}:{a+3}], v[{b}:{b+3}], {c}")
def mf8(A, d, a, b, c="0"):
    A(f"v_mfma_f32_32x32x8_bf16 v[{d}:{d+15}], v[{a}:{a+1}], v[{b}:{b+1}], {c}")
def koff(t): return t*KV_TILE + (1024 if t >= 8 else 0)
def kxoff(t): return t*128 if t < 8 else KV_CHUNK + (t-8)*128

def body(A, P, opt, fused=False, hook_after_s0=None, hook_loop_end=None):
    LF = "sc1" if fused else ""
    PRIO_IT, PRIO_T = 3, 4
    for o in opt:
        if o.startswith("pi"): PRIO_IT, PRIO_T = int(o[2]), int(o[3])
    A("v_and_b32 v1, 63, v0             ; lane")
    A(f"v_lshlrev_b32 v{vL16}, 4, v1")
    A(f"v_and_b32 v{vR}, 31, v1")
    A(f"v_lshrrev_b32 v{vG}, 5, v1")
    A("s_and_b32 s23, s22, 3            ; qp")
    A("s_lshr_b32 s24, s22, 2           ; kh")
    A("s_lshl_b32 s25, s21, 3")
    A("s_lshl_b32 s26, s23, 1")
    A("s_add_u32 s25, s25, s26          ; q tile a")
    A(f"s_mul_i32 s27, s20, {KV_HEAD}")
    A("s_lshl_b32 s28, s22, 10")
    A("s_add_u32 s27, s27, s28")
    A(f"s_add_u32 s27, s27, {KV}")
    if fused: A("s_add_u32 s27, s27, s62")
    def slot():
        A("s_mov_b32 m0, s28")
        A(f"s_add_u32 s30, s27, {HALF}")
        A(f"buffer_load_dwordx4 v{vL16}, s[12:15], s27 offen lds {LF}")
        A(f"s_add_u32 m0, s28, {HALF}")
        A("s_add_u32 s27, s27, 8192")
        A(f"buffer_load_dwordx4 v{vL16}, s[12:15], s30 offen lds {LF}")
        A("s_add_u32 s28, s28, 8192")
    A("s_lshl_b32 s31, s20, 16")
    A("s_lshl_b32 s32, s25, 10")
    A("s_add_u32 s31, s31, s32")
    A(f"s_add_u32 s31, s31, {QM}")
    if fused: A("s_add_u32 s31, s31, s63")
    A("s_lshl_b32 s33, s20, 13")
    A("s_lshl_b32 s32, s25, 7")
    A("s_add_u32 s33, s33, s32")
    A(f"s_add_u32 s33, s33, {QE}")
    if fused: A("s_add_u32 s33, s33, s64")
    A(f"v_lshlrev_b32 v{T}, 2, v{vR}      ; r32*4")
    slot()
    A(f"buffer_load_dwordx4 v[{QA}:{QA+3}], v{vL16}, s[12:15], s31 offen {LF}")
    A(f"buffer_load_dwordx4 v[{QB}:{QB+3}], v{vL16}, s[12:15], s31 offen offset:1024 {LF}")
    A(f"buffer_load_dword v{QXA}, v{T}, s[12:15], s33 offen {LF}")
    A(f"buffer_load_dword v{QXB}, v{T}, s[12:15], s33 offen offset:128 {LF}")
    slot(); slot()
    A(f"s_mul_i32 s34, s24, {HALF}")
    A(f"s_add_u32 s35, s34, 1024")
    A(f"v_add_u32 v{vK}, s35, v{vL16}")
    A(f"v_add_u32 v{vKX}, s34, v{T}")
    A(f"v_mul_u32_u24 v{T+1}, 320, v{vG}")
    A(f"v_min_u32 v{T+2}, 19, v{vR}")
    A(f"v_lshl_add_u32 v{T+1}, v{T+2}, 4, v{T+1}")
    A(f"s_add_u32 s35, s34, 2048")
    A(f"v_add_u32 v{vV}, s35, v{T+1}")
    for k in KX: A(f"v_mov_b32 v{k+1}, 0x3f803f80")
    A(f"v_mov_b32 v{QXA+1}, 0")
    A(f"v_mov_b32 v{QXB+1}, 0")
    for i in range(16):
        A(f"v_mov_b32 v{OA+i}, 0")
        A(f"v_mov_b32 v{OB+i}, 0")
    for i in range(4):
        A(f"v_mov_b32 v{PA+4+i}, 0")
        A(f"v_mov_b32 v{PB+4+i}, 0")
        A(f"v_mov_b32 v{V1[1]+i}, 0")
        A(f"v_mov_b32 v{SB[1]+12+i}, 0")
    if "prio" in opt:
        A("s_cmp_eq_u32 s24, 0")
        A(f"s_cbranch_scc1 {P}PR0")
        A("s_setprio 1")
        A("s_mov_b32 s51, 99")
        A(f"s_branch {P}PR1")
        A.label(f"{P}PR0")
        A("s_setprio 2")
        A(f"s_mov_b32 s51, {PRIO_IT}")
        A.label(f"{P}PR1")
    stamps.stamp(A, 0)
    A("s_waitcnt vmcnt(4)               ; slot 0 + Q")
    A(f"v_cmp_eq_u32 vcc, 0, v{vG}")
    A("s_barrier")
    if hook_after_s0: hook_after_s0(A)
    A(f"ds_read_b128 v[{KF[0]}:{KF[0]+3}], v{vK}")
    A(f"ds_read_b32 v{KX[0]}, v{vKX}")
    A(f"v_cndmask_b32 v{QXA}, 0, v{QXA}, vcc")
    A(f"v_cndmask_b32 v{QXB}, 0, v{QXB}, vcc")
    stamps.stamp(A, 1)
    A("s_waitcnt lgkmcnt(0)")
    A(f"ds_read_b128 v[{KF[1]}:{KF[1]+3}], v{vK} offset:{koff(1)}")
    A(f"ds_read_b32 v{KX[1]}, v{vKX} offset:{kxoff(1)}")
    A(f"ds_read_b128 v[{V0[0]}:{V0[0]+3}], v{vV}")
    mf8(A, SA[0], KX[0], QXA)
    mf8(A, SB[0], KX[0], QXB)
    mf16(A, SA[0], KF[0], QA)
    mf16(A, SB[0], KF[0], QB)
    A("s_mov_b32 s41, 0                 ; iteration")
    A("s_nop 15")
    A_real = A
    class Filt:
        def __call__(self, x):
            if "nopv" in opt and "v_mfma" in x and (x.split()[1].startswith(f"v[{OA}:") or x.split()[1].startswith(f"v[{OB}:")): return
            if "noexp" in opt and "v_exp" in x: x = x.replace("v_exp_f32", "v_mov_b32")
            A_real(x)
        def label(self, n): A_real.label(n)
    F = Filt()
    E = lambda X, j: [F(f"v_exp_f32 v{X+4*j+i}, v{X+4*j+i}") for i in range(4)]
    def C(Pp, X, j):
        F(f"v_cvt_pk_bf16_f32 v{Pp+2*j}, v{X+4*j}, v{X+4*j+1}")
        F(f"v_cvt_pk_bf16_f32 v{Pp+2*j+1}, v{X+4*j+2}, v{X+4*j+3}")
    def step(t, first):
        p = t & 1; q = p ^ 1
        if first and t == 1:
            A("s_waitcnt vmcnt(0)           ; slots 1,2")
            A("s_barrier")
        F("s_waitcnt lgkmcnt(0)")
        F(f"ds_read_b128 v[{KF[p]}:{KF[p]+3}], v{vK} offset:{koff(t+2)}")
        F(f"ds_read_b32 v{KX[p]}, v{vKX} offset:{kxoff(t+2)}")
        F(f"ds_read_b128 v[{V0[q]}:{V0[q]+3}], v{vV} offset:{koff(t+1)}")
        F(f"ds_read_b128 v[{V1[p]}:{V1[p]+3}], v{vV} offset:{koff(t)+640}")
        if first and t >= 1: slot()
        XA, YA, XB, YB = SA[p], SA[q], SB[p], SB[q]
        C(PB, YB, 3)
        mf16(F, OA, V1[q], PA+4); E(XA, 0)
        mf16(F, OB, V1[q], PB+4); E(XA, 1); C(PA, XA, 0)
        mf8(F, YA, KX[q], QXA);   C(PA, XA, 1); E(XA, 2)
        mf16(F, YA, KF[q], QA);   C(PA, XA, 2); E(XA, 3)
        mf16(F, OA, V0[p], PA);   C(PA, XA, 3); E(XB, 0)
        mf8(F, YB, KX[q], QXB);   C(PB, XB, 0); E(XB, 1)
        mf16(F, YB, KF[q], QB);   C(PB, XB, 1); E(XB, 2)
        mf16(F, OB, V0[p], PB);   C(PB, XB, 2); E(XB, 3)
    def advance():
        A(f"v_add_u32 v{vK}, {KV_CHUNK}, v{vK}")
        A(f"v_add_u32 v{vKX}, {KV_CHUNK}, v{vKX}")
        A(f"v_add_u32 v{vV}, {KV_CHUNK}, v{vV}")
    def istamp():
        if stamps.ENABLED and "iters" in opt:
            A("s_memtime s[94:95]")
            A("s_waitcnt lgkmcnt(0)")
            for i in range(4):
                A(f"s_cmp_eq_u32 s41, {i}")
                A(f"s_cselect_b32 s{74+i}, s94, s{74+i}")
    for t in range(8): step(t, True)
    advance()
    istamp()
    A("s_mov_b32 s41, 1")
    A("s_waitcnt vmcnt(0)")
    A("s_barrier")
    A.label(f"{P}LOOP")
    for t in range(8):
        step(t, False)
        if "prio" in opt and t == PRIO_T:
            A(f"s_cmp_eq_u32 s41, s51")
            A(f"s_cbranch_scc0 {P}NP")
            A("s_setprio 0")
            A.label(f"{P}NP")
    advance()
    istamp()
    A("s_add_u32 s41, s41, 1")
    A("s_cmp_lt_u32 s41, 4")
    A(f"s_cbranch_scc1 {P}LOOP")
    C = lambda Pp, X, j: (A(f"v_cvt_pk_bf16_f32 v{Pp+2*j}, v{X+4*j}, v{X+4*j+1}"), A(f"v_cvt_pk_bf16_f32 v{Pp+2*j+1}, v{X+4*j+2}, v{X+4*j+3}"))
    A("s_nop 0")
    C(PB, SB[1], 3)
    A("s_waitcnt lgkmcnt(0)")
    mf16(A, OA, V1[1], PA+4)
    A("s_nop 0")
    mf16(A, OB, V1[1], PB+4)
    if "prio" in opt: A("s_setprio 0")
    if hook_loop_end: hook_loop_end(A)
    stamps.stamp(A, 2)
    A("s_nop 15")
    A("s_cmp_eq_u32 s24, 0")
    A(f"s_cbranch_scc1 {P}NOSWAP")
    for i in range(12): A(f"v_swap_b32 v{OA+i}, v{OB+i}")
    for i in range(4): A(f"v_swap_b32 v{QA+i}, v{QB+i}")
    A(f"v_swap_b32 v{QXA}, v{QXB}")
    A("s_add_u32 s25, s25, 1")
    A.label(f"{P}NOSWAP")
    A(f"s_mov_b32 s42, {hex(f2u(2.0**-40))}")
    A(f"s_mov_b32 s43, {hex(f2u(2.0**60))}")
    A(f"s_mov_b32 s50, {hex(f2u(2.0**120))}")
    A(f"v_cmp_eq_u32 vcc, 0, v{vG}")
    A("s_mov_b64 s[44:45], -1")
    for O in (OA, OB):
        A(f"v_mov_b32 v{T}, v{O+10}")
        A(f"v_mov_b32 v{T+1}, v{O+10}")
        A(f"v_add_f32 v{T+2}, |v{O+0}|, |v{O+1}|")
        A("s_nop 0")
        A(f"v_permlane32_swap_b32 v{T}, v{T+1}")
        for r in range(2,8): A(f"v_add_f32 v{T+2}, v{T+2}, |v{O+r}|")
        A(f"v_add_f32 v{T+3}, |v{O+8}|, |v{O+9}|")
        A(f"v_cndmask_b32 v{T+3}, 0, v{T+3}, vcc")
        A(f"v_add_f32 v{T+2}, v{T+2}, v{T+3}")
        A(f"v_cmp_le_f32 s[46:47], s42, v{T}")
        A(f"v_cmp_ge_f32 s[48:49], s43, v{T}")
        A(f"v_cmp_ge_f32 s[52:53], s50, v{T+2}")
        A("s_nop 1")
        A("s_and_b64 s[44:45], s[44:45], s[46:47]")
        A("s_and_b64 s[44:45], s[44:45], s[48:49]")
        A("s_and_b64 s[44:45], s[44:45], s[52:53]")
    A("s_cmp_eq_u64 s[44:45], -1")
    A("s_cselect_b32 s46, 0, 1")
    if any(o.startswith("no") for o in opt): A("s_mov_b32 s46, 0")
    A(f"v_mov_b32 v{T}, s46")
    A("s_lshl_b32 s47, s22, 2")
    A(f"s_add_u32 s47, s47, {L_FL}")
    A(f"v_mov_b32 v{T+1}, s47")
    A(f"ds_write_b32 v{T+1}, v{T}")
    A("s_waitcnt lgkmcnt(0)")
    A("s_barrier")
    A(f"v_mov_b32 v{T+1}, {L_FL}")
    A(f"ds_read_b128 v[{T+4}:{T+7}], v{T+1}")
    A(f"ds_read_b128 v[{T+8}:{T+11}], v{T+1} offset:16")
    A("s_waitcnt lgkmcnt(0)")
    for i in range(1,8): A(f"v_or_b32 v{T+4}, v{T+4}, v{T+4+i}")
    A("s_nop 0")
    A(f"v_readfirstlane_b32 s46, v{T+4}")
    A("s_nop 3")
    A("s_cmp_lg_u32 s46, 0")
    A(f"s_cbranch_scc1 {P}SLOW")
    A("s_mul_i32 s47, s22, 3072")
    A(f"v_add_u32 v{T+1}, s47, v{vL16}")
    for j in range(3): A(f"ds_write_b128 v{T+1}, v[{OB+4*j}:{OB+4*j+3}] offset:{1024*j}")
    A("s_xor_b32 s47, s22, 4")
    A("s_mul_i32 s47, s47, 3072")
    A(f"v_add_u32 v{T+1}, s47, v{vL16}")
    A("s_waitcnt lgkmcnt(0)")
    A("s_barrier")
    for j in range(3): A(f"ds_read_b128 v[{OB+4*j}:{OB+4*j+3}], v{T+1} offset:{1024*j}")
    A("s_waitcnt lgkmcnt(0)")
    for i in range(11): A(f"v_add_f32 v{OA+i}, v{OA+i}, v{OB+i}")
    A(f"s_branch {P}STORE")
    A.label(f"{P}SLOW")
    A(f"v_mov_b32 v{T+4}, 0xff800000")
    A(f"v_mov_b32 v{QXA+1}, 0")
    A(f"v_lshlrev_b32 v{T}, 2, v{vR}")
    A(f"v_mul_u32_u24 v{T+1}, 320, v{vG}")
    A(f"v_min_u32 v{T+2}, 19, v{vR}")
    A(f"v_lshl_add_u32 v{T+1}, v{T+2}, 4, v{T+1}")
    for pas in range(2):
        A(f"v_add_u32 v{vK}, 1024, v{vL16}")
        A(f"v_mov_b32 v{vKX}, v{T}")
        A(f"v_add_u32 v{vV}, 2048, v{T+1}")
        if pas == 1:
            for i in range(16): A(f"v_mov_b32 v{OA+i}, 0")
        A("s_mov_b32 s41, 0")
        A.label(f"{P}SL{pas}")
        A(f"ds_read_b128 v[{KF[0]}:{KF[0]+3}], v{vK}")
        A(f"ds_read_b32 v{KX[0]}, v{vKX}")
        if pas == 1:
            A(f"ds_read_b128 v[{V0[0]}:{V0[0]+3}], v{vV}")
            A(f"ds_read_b128 v[{V1[0]}:{V1[0]+3}], v{vV} offset:640")
        A("s_waitcnt lgkmcnt(0)")
        mf8(A, SA[0], KX[0], QXA)
        mf16(A, SA[0], KF[0], QA)
        A("s_and_b32 s47, s41, 7")
        A("s_cmp_eq_u32 s47, 7")
        A(f"s_cselect_b32 s47, {KV_TILE+1024}, {0}")
        A(f"s_cselect_b32 s48, 1, 0")
        A(f"s_max_u32 s47, s47, {KV_TILE}")
        A(f"s_mul_i32 s48, s48, {KV_CHUNK-1024}")
        A("s_add_u32 s48, s48, 128")
        A(f"v_add_u32 v{vK}, s47, v{vK}")
        A(f"v_add_u32 v{vV}, s47, v{vV}")
        A(f"v_add_u32 v{vKX}, s48, v{vKX}")
        A("s_nop 15")
        if pas == 0:
            for i in range(0,16,2): A(f"v_max3_f32 v{T+4}, v{SA[0]+i}, v{SA[0]+i+1}, v{T+4}")
        else:
            for i in range(16): A(f"v_exp_f32 v{SA[0]+i}, v{SA[0]+i}")
            A("s_nop 0")
            for j in range(8): A(f"v_cvt_pk_bf16_f32 v{PA+j}, v{SA[0]+2*j}, v{SA[0]+2*j+1}")
            A("s_nop 1")
            mf16(A, OA, V0[0], PA)
            mf16(A, OA, V1[0], PA+4)
        A("s_add_u32 s41, s41, 1")
        A("s_cmp_lt_u32 s41, 64")
        A(f"s_cbranch_scc1 {P}SL{pas}")
        if pas == 0:
            A(f"v_mov_b32 v{T+5}, v{T+4}")
            A("s_nop 1")
            A(f"v_permlane32_swap_b32 v{T+4}, v{T+5}")
            A("s_nop 1")
            A(f"v_max_f32 v{T+4}, v{T+4}, v{T+5}")
            A(f"v_sub_f32 v{T+4}, 0, v{T+4}")
            A(f"v_and_b32 v{T+5}, 0xffff0000, v{T+4}")
            A(f"v_sub_f32 v{T+6}, v{T+4}, v{T+5}")
            A(f"v_cmp_eq_u32 vcc, 0, v{vG}")
            A(f"v_lshrrev_b32 v{T+5}, 16, v{T+5}")
            A(f"v_and_b32 v{T+6}, 0xffff0000, v{T+6}")
            A(f"v_or_b32 v{T+5}, v{T+5}, v{T+6}")
            A(f"v_cndmask_b32 v{QXA+1}, 0, v{T+5}, vcc")
    A("s_nop 15")
    A("s_barrier                         ; nobody reads the K/V image any more")
    A.label(f"{P}STORE")
    A(f"v_mov_b32 v{T}, v{OA+10}")
    A(f"v_mov_b32 v{T+1}, v{OA+10}")
    A("s_nop 1")
    A(f"v_permlane32_swap_b32 v{T}, v{T+1}")
    A("s_nop 1")
    A(f"v_rcp_f32 v{T}, v{T}")
    A("s_nop 0")
    for r in range(10): A(f"v_mul_f32 v{OA+r}, v{T}, v{OA+r}")
    for j in range(5): A(f"v_cvt_pk_bf16_f32 v{PA+j}, v{OA+2*j}, v{OA+2*j+1}")
    A(f"v_lshlrev_b32 v{T+1}, 5, v{vR}")
    A(f"v_lshl_add_u32 v{T+1}, v{vG}, 4, v{T+1}")
    A("s_lshl_b32 s26, s20, 16")
    A("s_lshl_b32 s27, s25, 10")
    A("s_add_u32 s26, s26, s27")
    A(f"s_add_u32 s26, s26, {OM}")
    if fused: A("s_add_u32 s26, s26, s63")
    A(f"buffer_store_dwordx4 v[{PA}:{PA+3}], v{T+1}, s[12:15], s26 offen {LF}")
    A("s_lshr_b32 s26, s20, 2")
    A("s_lshl_b32 s26, s26, 15")
    A("s_and_b32 s27, s20, 3")
    A("s_lshl_b32 s27, s27, 2")
    A("s_add_u32 s26, s26, s27")
    A("s_lshl_b32 s27, s25, 9")
    A("s_add_u32 s26, s26, s27")
    A(f"s_add_u32 s26, s26, {OE}")
    if fused: A("s_add_u32 s26, s26, s64")
    A(f"v_lshlrev_b32 v{T+2}, 4, v{vR}")
    A("s_mov_b32 exec_hi, 0")
    A(f"buffer_store_dword v{PA+4}, v{T+2}, s[12:15], s26 offen {LF}")
    A("s_mov_b32 exec_hi, -1")

def gen_att(name="att_kernel", P="AT_", kidx=3, opt=()):
    A = Asm()
    A("s_cmp_ge_u32 s2, 256")
    A(f"s_cbranch_scc1 {P}END")
    stamps.init(A)
    A("s_load_dwordx2 s[6:7], s[0:1], %d" % KA_WS)
    A("v_lshrrev_b32 v5, 6, v0")
    A("s_and_b32 s20, s2, 7")
    A("v_readfirstlane_b32 s22, v5      ; wave")
    A("s_lshr_b32 s21, s2, 3")
    A("s_lshl_b32 s20, s20, 2")
    A("s_and_b32 s23, s21, 3")
    A("s_add_u32 s20, s20, s23          ; head")
    A("s_lshr_b32 s21, s21, 2           ; qb")
    A("s_waitcnt lgkmcnt(0)")
    srd(A, 12, 6, WS_USED)
    body(A, P, opt)
    A("s_waitcnt vmcnt(0)")
    stamps.stamp(A, 3)
    stamps.flush(A, kidx, 8 if "iters" in opt else 4, 22, vt=160)
    A.label(f"{P}END")
    A("s_endpgm")
    return kernel_header(name) + A.text(), kernel_desc(name, 176), f"; @launch kernel={name} grid=(256,1,1) block=(512,1,1) lds={LDS_ATT}"
```

```python
from asmlib import *
from layout import *
import stamps
import struct
def f2u(x): return struct.unpack("<I", struct.pack("<f", x))[0]

L_OF, L_XT, L_YT, L_PS, L_MR = 0, 36864, 46080, 55296, 57600
LDS_OPG = 57856
WF = 64
ACC = 8
SPIN_MAX = 1 << 22

def red4(A, v, t):
    A(f"v_mov_b32 v{t}, v{v}")
    A("s_nop 1")
    A(f"v_permlane16_swap_b32 v{v}, v{t}")
    A("s_nop 1")
    A(f"v_add_f32 v{v}, v{v}, v{t}")
    A(f"v_mov_b32 v{t}, v{v}")
    A("s_nop 1")
    A(f"v_permlane32_swap_b32 v{v}, v{t}")
    A("s_nop 1")
    A(f"v_add_f32 v{v}, v{v}, v{t}")

def gen_opg(layer):
    name = f"opg{layer}_kernel"
    P = f"G{layer}_"
    A = Asm()
    A("s_cmp_ge_u32 s2, 256")
    A(f"s_cbranch_scc1 {P}END")
    stamps.init(A)
    if layer == 0:
        A("s_load_dwordx2 s[4:5], s[0:1], %d" % KA_X)
    else:
        A("s_load_dwordx2 s[4:5], s[0:1], %d" % KA_OUT)
    A("s_load_dwordx2 s[6:7], s[0:1], %d" % KA_WS)
    A("v_lshrrev_b32 v2, 6, v0")
    A("v_and_b32 v1, 63, v0             ; lane")
    A("v_readfirstlane_b32 s22, v2")
    A("s_and_b32 s20, s2, 7")
    A("s_lshr_b32 s21, s2, 3")
    A("s_lshl_b32 s20, s20, 3")
    A("s_lshr_b32 s23, s21, 2")
    A("s_add_u32 s20, s20, s23          ; rb (0..63)")
    A("s_and_b32 s21, s21, 3            ; cgo")
    A("v_and_b32 v3, 15, v1             ; n")
    A("v_lshrrev_b32 v4, 4, v1          ; kg")
    A("v_lshlrev_b32 v5, 4, v1          ; lane*16")
    A("s_waitcnt lgkmcnt(0)")
    srd(A, 12, 6, WS_USED)
    if layer == 0:
        srd(A, 8, 4, SZ_X)
        srd(A, 16, 6, X2_SZ, off=X2)
    else:
        srd(A, 8, 6, X2_SZ, off=X2)
        srd(A, 16, 4, SZ_X)
    A("s_cmp_eq_u32 s22, 8")
    A(f"s_cbranch_scc1 {P}EXT")
    A("v_lshrrev_b32 v6, 1, v4")
    A("v_lshlrev_b32 v6, 16, v6         ; (kg>>1)*65536")
    A("v_lshl_add_u32 v6, v3, 5, v6     ; + n*32")
    A("v_and_b32 v7, 1, v4")
    A("v_lshl_add_u32 v6, v7, 4, v6     ; + (kg&1)*16")
    A("s_lshl_b32 s24, s22, 18          ; 2w*131072")
    A("s_lshl_b32 s25, s20, 10          ; rb*32*32")
    A("s_add_u32 s24, s24, s25")
    A(f"s_add_u32 s24, s24, {OM}")
    A("s_mov_b32 s26, 131072")
    A("s_mov_b32 s27, 512")
    A(f"s_branch {P}ODMA")
    A.label(f"{P}EXT")
    A("v_lshlrev_b32 v6, 15, v4         ; kg*32768")
    A("v_lshl_add_u32 v6, v3, 4, v6     ; + n*16")
    A("s_lshl_b32 s24, s20, 9           ; rb*32*16")
    A(f"s_add_u32 s24, s24, {OE}")
    A("s_mov_b32 s26, 131072")
    A("s_mov_b32 s27, 256")
    A.label(f"{P}ODMA")
    A("s_lshl_b32 s28, s22, 11")
    for rt in range(2):
        for kk in range(2):
            A(f"s_add_u32 s29, s28, {L_OF + rt*18432 + kk*1024}")
            A("s_mov_b32 m0, s29")
            A("s_mov_b32 s30, s24")
            if kk: A("s_add_u32 s30, s30, s26")
            if rt: A("s_add_u32 s30, s30, s27")
            A("buffer_load_dwordx4 v6, s[12:15], s30 offen lds")
    A("s_mov_b32 s31, %d" % ((2**32+17)//18))
    A("v_mul_hi_u32 v7, v0, s31         ; row")
    A("v_mul_u32_u24 v8, 18, v7")
    A("v_sub_u32 v8, v0, v8             ; chunk")
    A("v_mul_u32_u24 v9, 1152, v7")
    A("v_lshl_add_u32 v9, v8, 4, v9")
    A("v_mov_b32 v60, v9")
    A("s_mul_i32 s32, s20, %d" % (32*1152))
    A("s_mul_i32 s33, s21, 288")
    A("s_add_u32 s32, s32, s33")
    A("s_lshl_b32 s34, s22, 10")
    A(f"s_add_u32 s29, s34, {L_XT}")
    A("s_mov_b32 m0, s29")
    A("s_nop 0")
    A("buffer_load_dwordx4 v60, s[8:11], s32 offen lds")
    A("v_lshrrev_b32 v7, 2, v0")
    A("v_lshlrev_b32 v7, 12, v7")
    A("v_and_b32 v8, 3, v0")
    A("v_lshl_add_u32 v7, v8, 4, v7")
    A("s_mul_i32 s33, s21, %d" % (144*4096))
    A("s_lshl_b32 s35, s20, 6")
    A("s_add_u32 s33, s33, s35")
    A(f"s_add_u32 s33, s33, {YT}")
    A(f"s_add_u32 s29, s34, {L_YT}")
    A("s_mov_b32 m0, s29")
    A("s_nop 0")
    A("buffer_load_dwordx4 v7, s[12:15], s33 offen lds")
    A("s_mul_i32 s33, s21, 9")
    A("s_add_u32 s33, s33, s22")
    A("s_mul_i32 s33, s33, %d" % (18*1024))
    A(f"s_add_u32 s33, s33, {WOP}")
    for ks in range(18):
        if ks and ks % 4 == 0: A("s_add_u32 s33, s33, 4096")
        A(f"buffer_load_dwordx4 v[{WF+4*ks}:{WF+4*ks+3}], v5, s[12:15], s33 offen offset:{(ks%4)*1024}")
    for i in range(8): A(f"v_mov_b32 v{ACC+i}, 0")
    stamps.stamp(A,0)
    A("s_waitcnt vmcnt(18)")
    A("s_barrier")
    stamps.stamp(A,1)
    def rd(ks, st):
        b = 16 + 8*st
        A(f"ds_read_b128 v[{b}:{b+3}], v5 offset:{L_OF + ks*1024}")
        A(f"ds_read_b128 v[{b+4}:{b+7}], v5 offset:{L_OF + 18432 + ks*1024}")
    rd(0,0); rd(1,1)
    for ks in range(18):
        st = ks % 3
        if ks + 2 < 18: rd(ks+2, (ks+2) % 3)
        A(f"s_waitcnt vmcnt({17-ks}) lgkmcnt({4 if ks+2<18 else (2 if ks+1<18 else 0)})")
        b = 16 + 8*st
        A(f"v_mfma_f32_16x16x32_bf16 v[{ACC}:{ACC+3}], v[{WF+4*ks}:{WF+4*ks+3}], v[{b}:{b+3}], v[{ACC}:{ACC+3}]")
        A(f"v_mfma_f32_16x16x32_bf16 v[{ACC+4}:{ACC+7}], v[{WF+4*ks}:{WF+4*ks+3}], v[{b+4}:{b+7}], v[{ACC+4}:{ACC+7}]")
    stamps.stamp(A,2)
    A("v_mul_u32_u24 v40, 288, v3")
    A("v_lshl_add_u32 v40, v4, 3, v40")
    A("s_lshl_b32 s33, s22, 5")
    A("v_add_u32 v40, s33, v40")
    A(f"ds_read_b64 v[44:45], v40 offset:{L_XT}")
    A(f"ds_read_b64 v[46:47], v40 offset:{L_XT + 16*288}")
    A("v_lshrrev_b32 v41, 2, v3         ; r")
    A("v_lshl_add_u32 v41, v4, 2, v41   ; 4kg + r")
    A("v_lshlrev_b32 v41, 6, v41")
    A("v_and_b32 v42, 3, v1")
    A("v_lshl_add_u32 v41, v42, 3, v41")
    A("s_lshl_b32 s33, s22, 10")
    A("v_add_u32 v41, s33, v41")
    A(f"ds_read_b64_tr_b16 v[48:49], v41 offset:{L_YT}")
    A(f"ds_read_b64_tr_b16 v[50:51], v41 offset:{L_YT + 32}")
    A("s_waitcnt lgkmcnt(0)")
    A("s_nop 3")
    for rt in range(2):
        x = 44+2*rt; a = ACC+4*rt
        A(f"v_lshlrev_b32 v52, 16, v{x}")
        A(f"v_and_b32 v53, 0xffff0000, v{x}")
        A(f"v_lshlrev_b32 v54, 16, v{x+1}")
        A(f"v_and_b32 v55, 0xffff0000, v{x+1}")
        for r in range(4): A(f"v_add_f32 v{a+r}, v{a+r}, v{52+r}")
        A(f"v_cvt_pk_bf16_f32 v56, v{a}, v{a+1}")
        A(f"v_cvt_pk_bf16_f32 v57, v{a+2}, v{a+3}")
        A(f"v_lshlrev_b32 v{a}, 16, v56")
        A(f"v_and_b32 v{a+1}, 0xffff0000, v56")
        A(f"v_lshlrev_b32 v{a+2}, 16, v57")
        A(f"v_and_b32 v{a+3}, 0xffff0000, v57")
    def partial_stats(tag):
        for rt in range(2):
            a = ACC+4*rt; s1 = 16+2*rt; s2 = s1+1
            A(f"v_add_f32 v{s1}, v{a}, v{a+1}")
            A(f"v_add_f32 v52, v{a+2}, v{a+3}")
            A(f"v_add_f32 v{s1}, v{s1}, v52")
            A(f"v_mul_f32 v{s2}, v{a}, v{a}")
            for r in range(1,4): A(f"v_fmac_f32 v{s2}, v{a+r}, v{a+r}")
        for v in (16,17,18,19): red4(A, v, 52)
        A("s_lshl_b32 s33, s22, 8")
        A("v_lshl_add_u32 v53, v3, 3, s33")
        A("s_mov_b64 exec, 0xffff")
        A(f"ds_write_b64 v53, v[16:17] offset:{L_PS}")
        A(f"ds_write_b64 v53, v[18:19] offset:{L_PS+128}")
        A("s_mov_b64 exec, -1")
        A("s_waitcnt lgkmcnt(0)")
        A("s_barrier")
    def wg_sum():
        A("v_and_b32 v54, 31, v1")
        A("v_lshlrev_b32 v54, 3, v54")
        for w in range(9):
            A(f"ds_read_b64 v[{22+2*w}:{23+2*w}], v54 offset:{L_PS + 256*w}")
        A("s_waitcnt lgkmcnt(0)")
        A("v_add_f32 v20, v22, v24")
        A("v_add_f32 v21, v23, v25")
        for w in range(2,9):
            A(f"v_add_f32 v20, v20, v{22+2*w}")
            A(f"v_add_f32 v21, v21, v{23+2*w}")
    partial_stats("a")
    A("s_cmp_lg_u32 s22, 0")
    A(f"s_cbranch_scc1 {P}WAITST")
    wg_sum()
    exb = EX0 if layer == 0 else EX1
    A("v_cmp_eq_u32 vcc, -1, v20")
    A("v_cmp_eq_u32 s[36:37], -1, v21")
    A("v_mov_b32 v55, 0x7fc00000")
    A("s_lshl_b32 s33, s20, 10          ; rb*4*256")
    A(f"s_add_u32 s33, s33, {exb}")
    A("v_cndmask_b32 v20, v20, v55, vcc")
    A("v_cndmask_b32 v21, v21, v55, s[36:37]")
    A("s_lshl_b32 s35, s21, 8")
    A("s_add_u32 s35, s35, s33")
    A("s_mov_b32 exec_hi, 0")
    A("buffer_store_dwordx2 v[20:21], v54, s[12:15], s35 offen sc0 sc1")
    A("s_mov_b32 exec_hi, -1")
    A("v_lshrrev_b32 v55, 5, v1")
    A("v_lshl_add_u32 v55, v55, 8, v54")
    A("s_mov_b32 s38, 0")
    A.label(f"{P}POLL")
    A("buffer_load_dwordx2 v[22:23], v55, s[12:15], s33 offen sc0 sc1")
    A("buffer_load_dwordx2 v[24:25], v55, s[12:15], s33 offen offset:512 sc0 sc1")
    A("s_waitcnt vmcnt(0)")
    A("v_cmp_ne_u32 vcc, -1, v22")
    A("v_cmp_ne_u32 s[36:37], -1, v23")
    A("v_cmp_ne_u32 s[40:41], -1, v24")
    A("v_cmp_ne_u32 s[42:43], -1, v25")
    A("s_nop 1")
    A("s_and_b64 s[36:37], s[36:37], vcc")
    A("s_and_b64 s[40:41], s[40:41], s[42:43]")
    A("s_and_b64 s[36:37], s[36:37], s[40:41]")
    A("s_cmp_eq_u64 s[36:37], -1")
    A(f"s_cbranch_scc1 {P}GOT")
    A("s_add_u32 s38, s38, 1")
    A(f"s_cmp_lt_u32 s38, {SPIN_MAX}")
    A(f"s_cbranch_scc1 {P}POLL")
    A.label(f"{P}GOT")
    A("v_add_f32 v22, v22, v24")
    A("v_add_f32 v23, v23, v25")
    for v in (22,23):
        A(f"v_mov_b32 v24, v{v}")
        A("s_nop 1")
        A(f"v_permlane32_swap_b32 v{v}, v24")
        A("s_nop 1")
        A(f"v_add_f32 v{v}, v{v}, v24")
    A(f"v_mul_f32 v22, {hex(f2u(1.0/576))}, v22     ; mu")
    A(f"v_mul_f32 v23, {hex(f2u(1.0/576))}, v23")
    A("v_fma_f32 v23, -v22, v22, v23")
    A("v_max_f32 v23, 0, v23")
    A(f"v_add_f32 v23, {hex(f2u(1e-5))}, v23")
    A("v_rsq_f32 v23, v23")
    A("s_nop 0")
    A(f"ds_write_b64 v54, v[22:23] offset:{L_MR}")
    A("s_waitcnt lgkmcnt(0)")
    A.label(f"{P}WAITST")
    A("s_barrier")
    stamps.stamp(A,3)
    A("v_lshlrev_b32 v53, 3, v3")
    A(f"ds_read_b64 v[24:25], v53 offset:{L_MR}")
    A(f"ds_read_b64 v[26:27], v53 offset:{L_MR+128}")
    A("s_waitcnt lgkmcnt(0)")
    for rt in range(2):
        a = ACC+4*rt; y = 48+2*rt; mu = 24+2*rt; rs = mu+1
        A(f"v_lshlrev_b32 v52, 16, v{y}")
        A(f"v_and_b32 v53, 0xffff0000, v{y}")
        A(f"v_lshlrev_b32 v54, 16, v{y+1}")
        A(f"v_and_b32 v55, 0xffff0000, v{y+1}")
        for r in range(4):
            A(f"v_sub_f32 v56, v{a+r}, v{mu}")
            A(f"v_mul_f32 v56, v56, v{rs}")
            A(f"v_fmac_f32 v{a+r}, v56, v{52+r}")
        A(f"v_cvt_pk_bf16_f32 v{44+2*rt}, v{a}, v{a+1}")
        A(f"v_cvt_pk_bf16_f32 v{45+2*rt}, v{a+2}, v{a+3}")
    A(f"ds_write_b64 v40, v[44:45] offset:{L_XT}")
    A(f"ds_write_b64 v40, v[46:47] offset:{L_XT + 16*288}")
    if layer == 0:
        for rt in range(2):
            a = ACC+4*rt; x = 44+2*rt
            A(f"v_lshlrev_b32 v{a}, 16, v{x}")
            A(f"v_and_b32 v{a+1}, 0xffff0000, v{x}")
            A(f"v_lshlrev_b32 v{a+2}, 16, v{x+1}")
            A(f"v_and_b32 v{a+3}, 0xffff0000, v{x+1}")
        partial_stats("b")
    else:
        A("s_waitcnt lgkmcnt(0)")
        A("s_barrier")
    A("v_lshlrev_b32 v53, 4, v0")
    A(f"ds_read_b128 v[28:31], v53 offset:{L_XT}")
    A("s_waitcnt lgkmcnt(0)")
    A("buffer_store_dwordx4 v[28:31], v60, s[16:19], s32 offen")
    if layer == 0:
        A("s_cmp_lg_u32 s22, 0")
        A(f"s_cbranch_scc1 {P}FIN")
        wg_sum()
        A("v_and_b32 v54, 31, v1")
        A("v_lshlrev_b32 v54, 5, v54")
        A("s_lshl_b32 s33, s20, 10")
        A("s_lshl_b32 s35, s21, 3")
        A("s_add_u32 s33, s33, s35")
        A(f"s_add_u32 s33, s33, {ST1}")
        A("s_mov_b32 exec_hi, 0")
        A("buffer_store_dwordx2 v[20:21], v54, s[12:15], s33 offen")
    A.label(f"{P}FIN")
    A("s_waitcnt vmcnt(0)")
    stamps.stamp(A,4)
    A("s_mov_b64 exec, -1")
    stamps.flush(A, 4 if layer==0 else 7, 5, 22, vt=40)
    A.label(f"{P}END")
    A("s_endpgm")
    return kernel_header(name) + A.text(), kernel_desc(name, 136), f"; @launch kernel={name} grid=(256,1,1) block=(576,1,1) lds={LDS_OPG}"
```

```python
from asmlib import *
from layout import *

N_WP, N_WO, N_ST, N_T, N_ONES, N_EX = 64, 36, 64, 288, 32, 32
B_WP = 0; B_WO = B_WP+N_WP; B_ST = B_WO+N_WO; B_T = B_ST+N_ST; B_ONES = B_T+N_T; B_EX = B_ONES+N_ONES; B_END = B_EX+N_EX
OOB = 0x40000000

def swap_add32(A, v, t):
    A(f"v_mov_b32 v{t}, v{v}")
    A("s_nop 1")
    A(f"v_permlane32_swap_b32 v{v}, v{t}")
    A("s_nop 1")
    A(f"v_add_f32 v{v}, v{v}, v{t}")

def role_wpack(A):
    A("s_load_dwordx2 s[4:5], s[0:1], %d" % KA_WQKV)
    A("s_load_dwordx2 s[6:7], s[0:1], %d" % KA_WS)
    A("s_lshr_b32 s20, s2, 2            ; cg")
    A("s_and_b32 s21, s2, 3             ; t")
    A("v_and_b32 v1, 63, v0             ; lane")
    A("v_lshrrev_b32 v2, 6, v0          ; wave")
    A("v_and_b32 v3, 31, v1             ; f")
    A("v_readfirstlane_b32 s22, v2")
    A("v_lshrrev_b32 v4, 5, v1          ; g")
    A("s_mul_i32 s23, s20, 36           ; a*18 = 2cg*18")
    A("v_lshrrev_b32 v5, 4, v3")
    A("v_mul_u32_u24 v5, 18, v5")
    L3, L2, Ld = "PW_T3", "PW_T2", "PW_D"
    A("s_cmp_eq_u32 s21, 3")
    A(f"s_cbranch_scc1 {L3}")
    A("s_cmp_eq_u32 s21, 2")
    A(f"s_cbranch_scc1 {L2}")
    A("v_bfe_u32 v6, v3, 2, 1")
    A("v_lshlrev_b32 v6, 3, v6")
    A("v_bfe_u32 v7, v3, 3, 1")
    A("v_lshl_add_u32 v6, v7, 2, v6")
    A("v_and_b32 v7, 3, v3")
    A("v_add3_u32 v6, v6, v7, v5        ; 18*(f>>4)+dim")
    A("s_mul_i32 s24, s21, 576")
    A("s_add_u32 s24, s24, s23")
    A("v_add_u32 v6, s24, v6            ; col")
    A("v_lshlrev_b32 v6, 1, v6")
    A(f"s_branch {Ld}")
    A.label(L2)
    A("v_and_b32 v6, 15, v3")
    A("v_add_u32 v6, v6, v5")
    A("s_add_u32 s24, s23, 1152")
    A("v_add_u32 v6, s24, v6")
    A("v_lshlrev_b32 v6, 1, v6")
    A(f"s_branch {Ld}")
    A.label(L3)
    A("v_lshrrev_b32 v6, 2, v3")
    A("v_mul_u32_u24 v6, 576, v6")
    A("v_bfe_u32 v7, v3, 1, 1")
    A("v_mul_u32_u24 v7, 18, v7")
    A("v_and_b32 v8, 1, v3")
    A("v_add3_u32 v6, v6, v7, v8")
    A("s_add_u32 s24, s23, 16")
    A("v_add_u32 v6, s24, v6")
    A("v_lshlrev_b32 v6, 1, v6")
    A("v_cmp_gt_u32 vcc, 12, v3")
    A(f"v_mov_b32 v7, {hex(OOB)}")
    A("s_nop 0")
    A("v_cndmask_b32 v6, v7, v6, vcc")
    A.label(Ld)
    A("v_mul_u32_u24 v7, 27648, v4")
    A("v_add_u32 v6, v6, v7")
    A("s_waitcnt lgkmcnt(0)")
    srd(A, 8, 4, SZ_WQKV)
    srd(A, 12, 6, CS4 + CS4_SZ - WP, off=WP)
    A("s_mul_i32 s25, s22, %d" % (9*16*3456))
    for ks in range(9):
        for i in range(8):
            A(f"s_add_u32 s26, s25, {(16*ks+i)*3456}")
            A(f"buffer_load_ushort v{16+8*ks+i}, v6, s[8:11], s26 offen")
    A("s_mul_i32 s27, s2, 36")
    A("s_mul_i32 s28, s22, 9")
    A("s_add_u32 s27, s27, s28")
    A("s_lshl_b32 s27, s27, 10")
    A("v_lshlrev_b32 v9, 4, v1")
    A("v_mov_b32 v10, 0")
    A("s_mov_b32 s29, 0x3f803f80")
    A("s_waitcnt vmcnt(0)")
    for ks in range(9):
        b = 16+8*ks
        for j in range(4):
            A(f"v_lshl_or_b32 v{96+j}, v{b+2*j+1}, 16, v{b+2*j}")
        for j in range(4):
            A(f"v_dot2_f32_bf16 v10, v{96+j}, s29, v10")
        A(f"buffer_store_dwordx4 v[96:99], v9, s[12:15], s27 offen")
        A("s_add_u32 s27, s27, 1024")
        A("s_nop 1")
    swap_add32(A, 10, 11)
    A("v_lshlrev_b32 v12, 2, v3         ; f*4")
    A("s_lshl_b32 s27, s2, 9")
    A("s_lshl_b32 s28, s22, 7")
    A("s_add_u32 s27, s27, s28")
    A(f"s_add_u32 s27, s27, {CS4-WP}")
    A("s_mov_b32 exec_hi, 0")
    A("buffer_store_dword v10, v12, s[12:15], s27 offen")
    A.label("PW_END")
    A("s_waitcnt vmcnt(0)")
    A("s_endpgm")

def role_wopack(A):
    A("s_load_dwordx2 s[4:5], s[0:1], %d" % KA_WO)
    A("s_load_dwordx2 s[6:7], s[0:1], %d" % KA_WS)
    A(f"s_sub_u32 s20, s2, {B_WO}       ; j")
    A("v_and_b32 v1, 63, v0")
    A("v_lshrrev_b32 v2, 6, v0")
    A("v_and_b32 v3, 15, v1             ; f")
    A("v_readfirstlane_b32 s22, v2      ; wave")
    A("v_lshrrev_b32 v4, 4, v1          ; kg")
    A("s_lshl_b32 s23, s20, 4           ; n0")
    A("v_add_u32 v5, s23, v3")
    A("v_lshlrev_b32 v5, 1, v5          ; n*2")
    A("v_lshrrev_b32 v6, 1, v4")
    A("v_mul_u32_u24 v6, 18, v6")
    A("v_and_b32 v7, 1, v4")
    A("v_lshl_add_u32 v6, v7, 2, v6")
    A("v_mul_u32_u24 v6, 1152, v6")
    A("v_add_u32 v6, v6, v5")
    A("v_mul_u32_u24 v7, %d, v4" % (72*1152))
    A("v_add_u32 v7, v7, v5")
    A("s_waitcnt lgkmcnt(0)")
    srd(A, 8, 4, SZ_WO)
    srd(A, 12, 6, WOP_SZ, off=WOP)
    A("s_mul_i32 s25, s22, %d" % (36*1152))
    for m in range(4):
        for i in range(8):
            A(f"s_add_u32 s26, s25, {(36*4*m + (i&3) + 8*(i>>2))*1152}")
            A(f"buffer_load_ushort v{16+8*m+i}, v6, s[8:11], s26 offen")
    A("s_and_b32 s24, s22, 1")
    A("s_mul_i32 s25, s24, %d" % (288*1152))
    for i in range(8):
        A(f"s_add_u32 s26, s25, {(18*(i>>1)+16+(i&1))*1152}")
        A(f"buffer_load_ushort v{48+i}, v7, s[8:11], s26 offen")
    A("v_lshlrev_b32 v9, 4, v1")
    A("s_mul_i32 s27, s20, 18")
    A("s_add_u32 s27, s27, s22")
    A("s_lshl_b32 s27, s27, 10          ; (j*18 + wave)*1024")
    A("s_waitcnt vmcnt(0)")
    for m in range(4):
        b = 16+8*m
        for j in range(4):
            A(f"v_lshl_or_b32 v{96+j}, v{b+2*j+1}, 16, v{b+2*j}")
        A(f"buffer_store_dwordx4 v[96:99], v9, s[12:15], s27 offen")
        A("s_add_u32 s27, s27, 4096")
        A("s_nop 1")
    A("s_cmp_ge_u32 s22, 2")
    A("s_cbranch_scc1 PO_END")
    for j in range(4):
        A(f"v_lshl_or_b32 v{96+j}, v{48+2*j+1}, 16, v{48+2*j}")
    A("s_mul_i32 s27, s20, 18")
    A("s_add_u32 s27, s27, s22")
    A("s_add_u32 s27, s27, 16")
    A("s_lshl_b32 s27, s27, 10")
    A(f"buffer_store_dwordx4 v[96:99], v9, s[12:15], s27 offen")
    A.label("PO_END")
    A("s_waitcnt vmcnt(0)")
    A("s_endpgm")

def dpp_sum8(A, v):
    A("s_nop 1")
    A(f"v_add_f32_dpp v{v}, v{v}, v{v} quad_perm:[1,0,3,2] row_mask:0xf bank_mask:0xf")
    A("s_nop 1")
    A(f"v_add_f32_dpp v{v}, v{v}, v{v} quad_perm:[2,3,0,1] row_mask:0xf bank_mask:0xf")
    A("s_nop 1")
    A(f"v_add_f32_dpp v{v}, v{v}, v{v} row_half_mirror row_mask:0xf bank_mask:0xf")

def role_stats(A):
    A("s_load_dwordx2 s[4:5], s[0:1], %d" % KA_X)
    A("s_load_dwordx2 s[6:7], s[0:1], %d" % KA_WS)
    A(f"s_sub_u32 s20, s2, {B_ST}")
    A("s_lshl_b32 s20, s20, 5          ; row0 = 32*j")
    A("v_lshrrev_b32 v1, 3, v0")
    A("v_add_u32 v1, s20, v1           ; row")
    A("v_and_b32 v2, 7, v0             ; c")
    A("v_mul_u32_u24 v3, 1152, v1")
    A("v_lshl_add_u32 v3, v2, 4, v3")
    A("s_waitcnt lgkmcnt(0)")
    srd(A, 8, 4, SZ_X)
    srd(A, 12, 6, ST_SZ, off=ST0)
    for m in range(9):
        A(f"buffer_load_dwordx4 v[{16+4*m}:{19+4*m}], v3, s[8:11], 0 offen offset:{128*m}")
    A("v_mov_b32 v4, 0")
    A("v_mov_b32 v5, 0")
    A("s_mov_b32 s29, 0x3f803f80")
    for m in range(9):
        A(f"s_waitcnt vmcnt({8-m})")
        for j in range(4):
            A(f"v_dot2_f32_bf16 v4, v{16+4*m+j}, s29, v4")
            A(f"v_dot2_f32_bf16 v5, v{16+4*m+j}, v{16+4*m+j}, v5")
    dpp_sum8(A, 4)
    dpp_sum8(A, 5)
    A("v_cmp_eq_u32 vcc, 0, v2")
    A("v_lshlrev_b32 v6, 5, v1")
    A("v_lshl_add_u32 v6, v2, 3, v6")
    A("v_cndmask_b32 v4, 0, v4, vcc")
    A("v_cndmask_b32 v5, 0, v5, vcc")
    A("v_cmp_gt_u32 vcc, 4, v2")
    A("s_and_saveexec_b64 s[30:31], vcc")
    A("s_cbranch_execz PS_END")
    A("buffer_store_dwordx2 v[4:5], v6, s[12:15], 0 offen")
    A.label("PS_END")
    A("s_waitcnt vmcnt(0)")
    A("s_endpgm")

def role_T(A):
    A("s_load_dwordx2 s[4:5], s[0:1], %d" % KA_BK)
    A("s_load_dwordx2 s[6:7], s[0:1], %d" % KA_BV)
    A("s_load_dwordx2 s[16:17], s[0:1], %d" % KA_SHIFT)
    A("s_load_dwordx2 s[18:19], s[0:1], %d" % KA_WS)
    A(f"s_sub_u32 s20, s2, {B_T}        ; j")
    A("s_mul_hi_u32 s21, s20, %d        ; tb = j/9" % ((2**32+8)//9))
    A("s_mul_i32 s22, s21, 9")
    A("s_sub_u32 s22, s20, s22          ; cb")
    A("v_and_b32 v1, 7, v0              ; tg")
    A("v_lshrrev_b32 v2, 3, v0          ; cp (0..31)")
    A("s_lshl_b32 s23, s21, 6           ; t0")
    A("v_lshl_add_u32 v3, v1, 3, s23    ; T = t0 + 8*tg")
    A("s_lshl_b32 s24, s22, 5")
    A("v_add_u32 v4, s24, v2")
    A("v_mul_u32_u24 v5, 1152, v3")
    A("v_lshl_add_u32 v5, v4, 2, v5")
    A("v_cmp_eq_u32 vcc, 0, v3")
    A(f"v_mov_b32 v9, {hex(OOB)}")
    for j in range(3):
        A(f"v_subrev_u32 v{6+j}, {(3-j)*1152}, v5")
        A(f"v_cndmask_b32 v{6+j}, v{6+j}, v9, vcc")
    for m in range(8):
        A(f"s_mov_b32 s{40+m}, {m*1152}")
    A("v_lshlrev_b32 v10, 4, v4")
    A("s_waitcnt lgkmcnt(0)")
    srd(A, 8, 4, SZ_X)
    srd(A, 12, 6, SZ_X)
    srd(A, 24, 16, SZ_SHIFT)
    srd(A, 28, 18, XR_SZ, off=XR)
    A("buffer_load_dwordx4 v[12:15], v10, s[24:27], 0 offen")
    for j in range(3):
        A(f"buffer_load_dword v{16+j}, v{6+j}, s[8:11], 0 offen")
    for m in range(8):
        A(f"buffer_load_dword v{19+m}, v5, s[8:11], s{40+m} offen")
    for m in range(8):
        A(f"buffer_load_dword v{28+m}, v5, s[12:15], s{40+m} offen")
    A("s_waitcnt vmcnt(0)")
    for c in range(2):
        A(f"v_lshlrev_b32 v{40+4*c}, 16, v{12+2*c}")
        A(f"v_and_b32 v{41+4*c}, 0xffff0000, v{12+2*c}")
        A(f"v_lshlrev_b32 v{42+4*c}, 16, v{13+2*c}")
        A(f"v_and_b32 v{43+4*c}, 0xffff0000, v{13+2*c}")
    for j in range(11):
        A(f"v_lshlrev_b32 v{48+j}, 16, v{16+j}")
        A(f"v_and_b32 v{60+j}, 0xffff0000, v{16+j}")
    for m in range(8):
        A(f"v_lshlrev_b32 v{72+m}, 16, v{28+m}")
        A(f"v_and_b32 v{80+m}, 0xffff0000, v{28+m}")
    for c in range(2):
        kb = 48+12*c; wb = 40+4*c; vb = 72+8*c
        for m in range(8):
            A(f"v_mul_f32 v90, v{kb+m}, v{wb+3}")
            A(f"v_fmac_f32 v90, v{kb+m+1}, v{wb+2}")
            A(f"v_fmac_f32 v90, v{kb+m+2}, v{wb+1}")
            A(f"v_fmac_f32 v90, v{kb+m+3}, v{wb+0}")
            A(f"v_mul_f32 v{vb+m}, v90, v{vb+m}")
        for mm in range(4):
            A(f"v_cvt_pk_bf16_f32 v{92+4*c+mm}, v{vb+7-2*mm}, v{vb+6-2*mm}")
    A("v_sub_u32 v6, 2040, v3")
    A("v_lshlrev_b32 v6, 1, v6")
    A("v_lshl_add_u32 v6, v4, 13, v6    ; cp*2*4096")
    A("buffer_store_dwordx4 v[92:95], v6, s[28:31], 0 offen")
    A("v_add_u32 v7, 4096, v6")
    A("buffer_store_dwordx4 v[96:99], v7, s[28:31], 0 offen")
    A("s_waitcnt vmcnt(0)")
    A("s_endpgm")

def role_ones(A):
    A("s_load_dwordx2 s[6:7], s[0:1], %d" % KA_WS)
    A(f"s_sub_u32 s20, s2, {B_ONES}      ; head")
    A("v_lshrrev_b32 v1, 1, v0          ; group 0..127")
    A("v_and_b32 v2, 1, v0              ; g")
    A("v_lshrrev_b32 v3, 4, v1")
    A(f"v_mul_u32_u24 v3, {KV_CHUNK}, v3")
    A("v_bfe_u32 v8, v1, 1, 3")
    A(f"v_mul_u32_u24 v8, {KV_TILE}, v8")
    A("v_and_b32 v9, 1, v1")
    A("v_mul_u32_u24 v9, 640, v9")
    A("v_mul_u32_u24 v2, 320, v2")
    A("v_add3_u32 v1, v3, v8, v9")
    A("v_add_u32 v1, v1, v2")
    A(f"s_mul_i32 s21, s20, {KV_HEAD}")
    A(f"s_add_u32 s21, s21, {2048 + 18*16}")
    for j in range(4):
        A(f"v_mov_b32 v{4+j}, 0x3f803f80")
        A(f"v_mov_b32 v{12+j}, 0")
    A("s_waitcnt lgkmcnt(0)")
    srd(A, 12, 6, KV_SZ, off=KV)
    A("buffer_store_dwordx4 v[4:7], v1, s[12:15], s21 offen")
    A("buffer_store_dwordx4 v[12:15], v1, s[12:15], s21 offen offset:16")
    A("s_waitcnt vmcnt(0)")
    A("s_endpgm")

def role_ex(A):
    A("s_load_dwordx2 s[6:7], s[0:1], %d" % KA_WS)
    A(f"s_sub_u32 s20, s2, {B_EX}")
    A("s_lshl_b32 s20, s20, 12")
    A("v_lshlrev_b32 v1, 4, v0")
    for j in range(4):
        A(f"v_mov_b32 v{4+j}, -1")
    A("s_waitcnt lgkmcnt(0)")
    assert EX1 == EX0 + EX_SZ
    srd(A, 12, 6, 2*EX_SZ, off=EX0)
    A("buffer_store_dwordx4 v[4:7], v1, s[12:15], s20 offen")
    A("s_waitcnt vmcnt(0)")
    A("s_endpgm")

def gen_prep(name="prep_kernel"):
    A = Asm()
    for b, lab in ((B_WO,"R_WP"),(B_ST,"R_WO"),(B_T,"R_ST"),(B_ONES,"R_T"),(B_EX,"R_ONES"),(B_END,"R_EX")):
        A(f"s_cmp_lt_u32 s2, {b}")
        A(f"s_cbranch_scc1 {lab}")
    A("s_endpgm")
    A.label("R_WP");  role_wpack(A)
    A.label("R_WO");  role_wopack(A)
    A.label("R_ST");  role_stats(A)
    A.label("R_T");   role_T(A)
    A.label("R_ONES"); A("s_endpgm")
    A.label("R_EX");  role_ex(A)
    return kernel_header(name) + A.text(), kernel_desc(name, 104), f"; @launch kernel={name} grid=({B_END},1,1) block=(256,1,1) lds=1024"
```

```python
from asmlib import *
from layout import *
import stamps
import struct
def f2u(x): return struct.unpack("<I", struct.pack("<f", x))[0]

OPT = ()
XL = 147456
L_MU = 0
L_RS = 512
L_TV = 1024
L_CS = 2048
XB = 2560
LDS_QKV = XB + XL

V_F = 2
WF = 8
ACC = 152
XF = [216, 232]
V_L16, V_R, V_G = 248, 249, 250
T = 251
V_X0, V_X1 = 8, 9

def lane_consts(A):
    A(f"v_lshlrev_b32 v{V_L16}, 4, v1")
    A(f"v_and_b32 v{V_R}, 31, v1")
    A(f"v_lshrrev_b32 v{V_G}, 5, v1")

def setup_scalars(A):
    A("s_and_b32 s25, s22, 3")
    A("s_mul_i32 s26, s23, %d" % (128*1152))
    A("s_lshl_b32 s28, s24, 2")
    A("s_add_u32 s28, s28, s25")
    A("s_mul_i32 s28, s28, %d" % (36*1024))
    if WP: A(f"s_add_u32 s28, s28, {WP}")
    A("s_lshl_b32 s29, s25, 12")

def helper_voffsets(A):
    A(f"v_lshrrev_b32 v{T}, 3, v1")
    A("s_lshl_b32 s30, s25, 5")
    A(f"v_add_u32 v{T}, s30, v{T}")
    A(f"v_mul_u32_u24 v{T}, 1152, v{T}")
    A(f"v_lshrrev_b32 v{T+1}, 4, v1")
    A(f"v_and_b32 v{T+2}, 7, v1")
    A(f"v_xor_b32 v{T+2}, v{T+2}, v{T+1}")
    A(f"v_lshl_add_u32 v{V_X0}, v{T+2}, 4, v{T}")
    A(f"v_xor_b32 v{T+2}, 4, v{T+2}")
    A(f"v_lshl_add_u32 v{V_X1}, v{T+2}, 4, v{T}")

def issue_x(A, kc, srdx, flags=""):
    for i in range(4):
        A(f"s_add_u32 m0, s29, {XB + kc*16384 + i*1024}")
        A(f"s_add_u32 s31, s26, {8*i*1152 + kc*128}")
        A(f"buffer_load_dwordx4 v{V_X0 if i % 2 == 0 else V_X1}, s[{srdx}:{srdx+3}], s31 offen lds {flags}")

def issue_w1(A, i, flags=""):
    if i % 4 == 0: A(f"s_add_u32 s31, s28, {(i//4)*4096}")
    A(f"buffer_load_dwordx4 v[{WF+4*i}:{WF+4*i+3}], v{V_L16}, s[12:15], s31 offen offset:{(i%4)*1024} {flags}")

def issue_w(A, n=36, flags=""):
    for i in range(n): issue_w1(A, i, flags)

def frag_addrs(A):
    A(f"v_bfe_u32 v{T}, v{V_R}, 1, 3        ; sw2")
    for kk in range(4):
        A(f"v_add_u32 v{T+1}, {2*kk}, v{V_G}")
        A(f"v_xor_b32 v{T+1}, v{T+1}, v{T}")
        A(f"v_lshlrev_b32 v{T+1}, 4, v{T+1}")
        A(f"v_lshl_add_u32 v{V_F+kk}, v{V_R}, 7, v{T+1}")
        A(f"v_add_u32 v{V_F+kk}, {XB}, v{V_F+kk}")

def helper_colsum_issue(A, CSb, flags=""):
    A("s_lshl_b32 s30, s24, 2")
    A("s_add_u32 s30, s30, s25")
    A("s_lshl_b32 s30, s30, 9")
    A(f"s_add_u32 s30, s30, {CSb}")
    A(f"v_lshlrev_b32 v28, 2, v{V_R}")
    for q in range(4):
        A(f"buffer_load_dword v{24+q}, v28, s[12:15], s30 offen offset:{128*q} {flags}")

def helper_main(A, P, npre, srdx, xflags="", extra=0):
    frag_addrs(A)
    A("s_lshl_b32 s30, s25, 12")
    for kk in range(4): A(f"v_add_u32 v{V_F+kk}, s30, v{V_F+kk}")
    a1, a2 = 16, 20
    for i in range(8): A(f"v_mov_b32 v{16+i}, 0")
    A("s_mov_b32 s33, 0x3f803f80")
    for kc in range(9):
        issued = min(9, kc + npre)
        A(f"s_waitcnt vmcnt({4*(issued - kc - 1)})")
        A("s_barrier")
        if kc + npre < 9: issue_x(A, kc + npre, srdx, xflags)
        if kc and kc % 4 == 0:
            for q in range(4): A(f"v_add_u32 v{V_F+q}, 0x10000, v{V_F+q}")
        for kk in range(4):
            A(f"ds_read_b128 v[{32+4*kk}:{35+4*kk}], v{V_F+kk} offset:{(kc%4)*16384}")
        for kk in range(4):
            A(f"s_waitcnt lgkmcnt({3-kk})")
            if "nostat" in OPT: continue
            for r in range(4):
                d = 32+4*kk+r
                A(f"v_lshlrev_b32 v{48+2*r}, 16, v{d}")
                A(f"v_and_b32 v{49+2*r}, 0xffff0000, v{d}")
            if "pk" in OPT:
                for r in range(4):
                    A(f"v_pk_add_f32 v[{a1+2*(r&1)}:{a1+2*(r&1)+1}], v[{a1+2*(r&1)}:{a1+2*(r&1)+1}], v[{48+2*r}:{49+2*r}]")
                    A(f"v_pk_fma_f32 v[{a2+2*(r&1)}:{a2+2*(r&1)+1}], v[{48+2*r}:{49+2*r}], v[{48+2*r}:{49+2*r}], v[{a2+2*(r&1)}:{a2+2*(r&1)+1}]")
            else:
                for r in range(4):
                    A(f"v_add_f32 v{a1+(2*r)%4}, v{a1+(2*r)%4}, v{48+2*r}")
                    A(f"v_add_f32 v{a1+(2*r+1)%4}, v{a1+(2*r+1)%4}, v{49+2*r}")
                    A(f"v_fmac_f32 v{a2+(2*r)%4}, v{48+2*r}, v{48+2*r}")
                    A(f"v_fmac_f32 v{a2+(2*r+1)%4}, v{49+2*r}, v{49+2*r}")
    A("s_nop 2")
    for a in (a1, a2):
        A(f"v_add_f32 v{a}, v{a}, v{a+1}")
        A(f"v_add_f32 v{a+2}, v{a+2}, v{a+3}")
        A(f"v_add_f32 v{a}, v{a}, v{a+2}")
        A(f"v_mov_b32 v{T}, v{a}")
        A("s_nop 1")
        A(f"v_permlane32_swap_b32 v{a}, v{T}")
        A("s_nop 1")
        A(f"v_add_f32 v{a}, v{a}, v{T}")
    A(f"v_mul_f32 v{a1}, {hex(f2u(1.0/576))}, v{a1}      ; mu")
    A(f"v_mul_f32 v{a2}, {hex(f2u(1.0/576))}, v{a2}")
    A(f"v_fma_f32 v{a2}, -v{a1}, v{a1}, v{a2}")
    A(f"v_max_f32 v{a2}, 0, v{a2}")
    A(f"v_add_f32 v{a2}, {hex(f2u(1e-5))}, v{a2}")
    A(f"v_rsq_f32 v{a2}, v{a2}")
    A("s_lshl_b32 s30, s25, 7")
    A(f"v_lshl_add_u32 v{T}, v{V_R}, 2, s30")
    A(f"ds_write_b32 v{T}, v{a1} offset:{L_MU}")
    A(f"ds_write_b32 v{T}, v{a2} offset:{L_RS}")
    A("v_add_f32 v24, v24, v25")
    A("v_add_f32 v26, v26, v27")
    A("v_add_f32 v24, v24, v26")
    A(f"ds_write_b32 v{T}, v24 offset:{L_CS}")
    A("s_waitcnt lgkmcnt(0)")
    A("s_barrier")

def consumer_main(A, P, swap, npre_w, wflags="", chunk_barriers=True):
    def read1(ks, rt):
        kc, kk = ks >> 2, ks & 3
        st = ks & 1
        A(f"ds_read_b128 v[{XF[st]+4*rt}:{XF[st]+4*rt+3}], v{V_F+kk} offset:{(kc%4)*16384 + rt*4096}")
    A("s_barrier")
    stamps.stamp(A, 1)
    for rt in range(4): read1(0, rt)
    for ks in range(36):
        st = ks & 1
        w = WF+4*ks
        issued = min(36, ks + npre_w)
        for rt in range(4):
            if rt == 0: A(f"s_waitcnt vmcnt({issued - ks - 1}) lgkmcnt(3)") if issued - ks - 1 < 63 else A("s_waitcnt lgkmcnt(3)")
            else: A(f"s_waitcnt lgkmcnt({3 if ks < 35 else 3 - rt})")
            x = XF[st]+4*rt; d = ACC+16*rt
            if swap: A(f"v_mfma_f32_32x32x16_bf16 v[{d}:{d+15}], v[{x}:{x+3}], v[{w}:{w+3}], v[{d}:{d+15}]")
            else:    A(f"v_mfma_f32_32x32x16_bf16 v[{d}:{d+15}], v[{w}:{w+3}], v[{x}:{x+3}], v[{d}:{d+15}]")
            if ks < 35:
                if rt == 0 and (ks+1) % 4 == 0:
                    if chunk_barriers: A("s_barrier")
                    kc = (ks+1) >> 2
                    if kc % 4 == 0:
                        for q in range(4): A(f"v_add_u32 v{V_F+q}, 0x10000, v{V_F+q}")
                read1(ks+1, rt)
            if rt == 1 and ks + npre_w < 36: issue_w1(A, ks + npre_w, wflags)
    A("s_barrier")

def epilogue(A, P, QMb, QEb, KVb, st_flags=""):
    CS = WF
    MU, RS = 72, 76
    TT = 80
    A("s_lshl_b32 s30, s25, 7")
    A(f"v_lshl_add_u32 v{TT}, v{V_G}, 4, s30")
    A(f"v_lshlrev_b32 v{TT+1}, 2, v{V_R}")
    A(f"v_add_u32 v{TT+2}, s30, v{TT+1}")
    for j in range(4):
        A(f"ds_read_b128 v[{CS+4*j}:{CS+4*j+3}], v{TT} offset:{L_CS+32*j}")
    A(f"ds_read_b32 v{TT+4}, v{TT+2} offset:{L_CS}")
    for rt in range(4):
        A(f"ds_read_b32 v{MU+rt}, v{TT+1} offset:{L_MU+128*rt}")
        A(f"ds_read_b32 v{RS+rt}, v{TT+1} offset:{L_RS+128*rt}")
    A("s_lshr_b32 s35, s23, 1")
    A(f"s_mul_i32 s35, s35, {KV_CHUNK}")
    A(f"s_mul_i32 s38, s24, {2*KV_HEAD}")
    A("s_add_u32 s38, s38, s35")
    A(f"s_add_u32 s38, s38, {KVb}")
    A("s_and_b32 s36, s23, 1")
    A("s_lshl_b32 s37, s36, 2")
    A(f"s_mul_i32 s39, s37, {KV_TILE}")
    A("s_add_u32 s39, s39, s38")
    A("s_waitcnt lgkmcnt(0)")
    A("s_cmp_eq_u32 s25, 2")
    A(f"s_cbranch_scc1 {P}E2")
    A("s_cmp_eq_u32 s25, 3")
    A(f"s_cbranch_scc1 {P}E3")
    A("s_lshl_b32 s40, s24, 17")
    A("s_lshl_b32 s41, s23, 12")
    A("s_add_u32 s40, s40, s41")
    A(f"s_add_u32 s40, s40, {QMb}")
    A("s_add_u32 s41, s39, 1024")
    A("s_cmp_eq_u32 s25, 0")
    A(f"s_cselect_b32 s42, {hex(f2u(QSCALE))}, 1.0")
    A("s_cselect_b32 s43, s40, s41")
    A(f"s_mov_b32 s40, {KV_TILE}")
    A("s_cselect_b32 s44, 1024, s40")
    A(f"s_mov_b32 s40, {KV_HEAD}")
    A("s_cselect_b32 s45, 65536, s40")
    for rt in range(4):
        a = ACC+16*rt
        A(f"v_mul_f32 v{TT}, s42, v{RS+rt}")
        for r in range(16): A(f"v_fma_f32 v{a+r}, -v{MU+rt}, v{CS+r}, v{a+r}")
        for r in range(16): A(f"v_mul_f32 v{a+r}, v{TT}, v{a+r}")
        for hh in range(2):
            t = 96+8*rt+4*hh
            for j in range(4): A(f"v_cvt_pk_bf16_f32 v{t+j}, v{a+8*hh+2*j}, v{a+8*hh+2*j+1}")
            if hh == 0: A(f"s_mov_b32 s46, s43")
            else: A("s_add_u32 s46, s43, s45")
            A(f"buffer_store_dwordx4 v[{t}:{t+3}], v{V_L16}, s[12:15], s46 offen {st_flags}")
        A("s_add_u32 s43, s43, s44")
    A(f"s_branch {P}FIN")
    A.label(f"{P}E3")
    A(f"v_cmp_eq_u32 vcc, 0, v{V_G}")
    A("s_lshl_b32 s40, s24, 14")
    A("s_lshl_b32 s41, s23, 9")
    A("s_add_u32 s40, s40, s41")
    A(f"s_add_u32 s40, s40, {QEb}")
    A("s_lshl_b32 s41, s36, 9")
    A("s_add_u32 s41, s41, s38")
    A(f"v_mov_b32 v{TT}, {hex(f2u(QSCALE))}")
    A(f"v_mov_b32 v{TT+1}, s41")
    A(f"v_mov_b32 v{TT+2}, s40")
    A(f"v_mov_b32 v{TT+3}, {KV_HEAD}")
    A(f"v_mov_b32 v{TT+5}, 8192")
    A(f"v_cndmask_b32 v{TT}, 1.0, v{TT}, vcc")
    A(f"v_cndmask_b32 v{TT+1}, v{TT+1}, v{TT+2}, vcc")
    A(f"v_cndmask_b32 v{TT+3}, v{TT+3}, v{TT+5}, vcc")
    A(f"v_lshl_add_u32 v{TT+1}, v{V_R}, 2, v{TT+1}")
    A(f"v_add_u32 v{TT+2}, v{TT+1}, v{TT+3}")
    A(f"v_bfe_u32 v{TT+5}, v{V_R}, 2, 1")
    A(f"v_bfe_u32 v{TT+6}, v{V_R}, 3, 1")
    A(f"v_and_b32 v{TT+7}, 0x13, v{V_R}")
    A(f"v_lshl_add_u32 v{TT+7}, v{TT+5}, 3, v{TT+7}")
    A(f"v_lshl_add_u32 v{TT+7}, v{TT+6}, 2, v{TT+7}")
    A(f"v_lshlrev_b32 v{TT+7}, 1, v{TT+7}")
    for rt in range(4):
        a = ACC+16*rt
        for r in range(8): A(f"v_fma_f32 v{a+r}, -v{MU+rt}, v{CS+r}, v{a+r}")
        A(f"v_mul_f32 v{TT+8}, v{TT}, v{RS+rt}")
        for r in range(4): A(f"v_mul_f32 v{a+r}, v{TT+8}, v{a+r}")
        for r in range(4,8): A(f"v_mul_f32 v{a+r}, v{RS+rt}, v{a+r}")
        t = 96+4*rt
        for j in range(4): A(f"v_cvt_pk_bf16_f32 v{t+j}, v{a+2*j}, v{a+2*j+1}")
        A(f"buffer_store_dword v{t}, v{TT+1}, s[12:15], 0 offen offset:{rt*128} {st_flags}")
        A(f"buffer_store_dword v{t+1}, v{TT+2}, s[12:15], 0 offen offset:{rt*128} {st_flags}")
        A("s_mov_b32 exec_hi, 0")
        A(f"ds_write_b16 v{TT+7}, v{t+2} offset:{L_TV+rt*64}")
        A(f"ds_write_b16_d16_hi v{TT+7}, v{t+2} offset:{L_TV+256+rt*64}")
        A(f"ds_write_b16 v{TT+7}, v{t+3} offset:{L_TV+512+rt*64}")
        A(f"ds_write_b16_d16_hi v{TT+7}, v{t+3} offset:{L_TV+768+rt*64}")
        A("s_mov_b32 exec_hi, -1")
    A("s_waitcnt lgkmcnt(0)")
    A(f"ds_read_b128 v[112:115], v{V_L16} offset:{L_TV}")
    A(f"v_lshrrev_b32 v{TT+5}, 5, v1")
    A(f"v_mul_u32_u24 v{TT+5}, {KV_HEAD}, v{TT+5}")
    A(f"v_bfe_u32 v{TT+6}, v1, 2, 2")
    A(f"v_mul_u32_u24 v{TT+6}, {KV_TILE}, v{TT+6}")
    A(f"v_add_u32 v{TT+5}, v{TT+5}, v{TT+6}")
    A(f"v_bfe_u32 v{TT+6}, v1, 1, 1")
    A(f"v_mul_u32_u24 v{TT+6}, 640, v{TT+6}")
    A(f"v_add_u32 v{TT+5}, v{TT+5}, v{TT+6}")
    A(f"v_and_b32 v{TT+6}, 1, v1")
    A(f"v_mul_u32_u24 v{TT+6}, 320, v{TT+6}")
    A(f"v_add_u32 v{TT+5}, v{TT+5}, v{TT+6}")
    A(f"v_bfe_u32 v{TT+6}, v1, 4, 1")
    A(f"v_lshl_add_u32 v{TT+5}, v{TT+6}, 4, v{TT+5}")
    A(f"s_add_u32 s41, s39, {2048 + 16*16}")
    A(f"v_cmp_eq_u32 vcc, 0, v{TT+6}")
    A(f"v_mov_b32 v{TT+7}, 0x3f803f80")
    A("s_waitcnt lgkmcnt(0)")
    A(f"buffer_store_dwordx4 v[112:115], v{TT+5}, s[12:15], s41 offen {st_flags}")
    for j in range(4): A(f"v_cndmask_b32 v{116+j}, 0, v{TT+7}, vcc")
    A(f"buffer_store_dwordx4 v[116:119], v{TT+5}, s[12:15], s41 offen offset:32 {st_flags}")
    A(f"s_branch {P}FIN")
    A.label(f"{P}E2")
    A(f"v_lshlrev_b32 v{TT}, 4, v{V_G}")
    A(f"v_lshrrev_b32 v{TT+1}, 4, v{V_R}")
    A(f"v_mul_u32_u24 v{TT+1}, {KV_HEAD}, v{TT+1}")
    A(f"v_mul_u32_u24 v{TT+2}, 320, v{V_G}")
    A(f"v_and_b32 v{TT+3}, 15, v{V_R}")
    A(f"v_lshl_add_u32 v{TT+2}, v{TT+3}, 4, v{TT+2}")
    A(f"v_add_u32 v{TT+1}, v{TT+1}, v{TT+2}")
    M0_, R0_ = [8, 40], [24, 56]
    def rd(rt):
        s_ = rt & 1
        for j in range(4):
            A(f"ds_read_b128 v[{M0_[s_]+4*j}:{M0_[s_]+4*j+3}], v{TT} offset:{L_MU+rt*128+32*j}")
            A(f"ds_read_b128 v[{R0_[s_]+4*j}:{R0_[s_]+4*j+3}], v{TT} offset:{L_RS+rt*128+32*j}")
    rd(0)
    for rt in range(4):
        if rt < 3:
            rd(rt+1)
            A("s_waitcnt lgkmcnt(8)")
        else:
            A("s_waitcnt lgkmcnt(0)")
        a = ACC+16*rt; m = M0_[rt & 1]; rs = R0_[rt & 1]
        for r in range(16): A(f"v_fma_f32 v{a+r}, -v{m+r}, v{TT+4}, v{a+r}")
        for r in range(16): A(f"v_mul_f32 v{a+r}, v{rs+r}, v{a+r}")
        for hh in range(2):
            t = 96+8*rt+4*hh
            for j in range(4): A(f"v_cvt_pk_bf16_f32 v{t+j}, v{a+8*hh+2*j}, v{a+8*hh+2*j+1}")
            A(f"s_add_u32 s46, s39, {2048 + rt*KV_TILE + hh*640}")
            A(f"buffer_store_dwordx4 v[{t}:{t+3}], v{TT+1}, s[12:15], s46 offen {st_flags}")
    A.label(f"{P}FIN")

def decode_id(A):
    A("s_and_b32 s20, s2, 7")
    A("s_lshr_b32 s21, s2, 3")
    A("s_lshr_b32 s23, s20, 1")
    A("s_lshl_b32 s23, s23, 2")
    A("s_lshr_b32 s24, s21, 3")
    A("s_add_u32 s23, s23, s24          ; rb")
    A("s_and_b32 s24, s20, 1")
    A("s_lshl_b32 s24, s24, 3")
    A("s_and_b32 s25, s21, 7")
    A("s_add_u32 s24, s24, s25          ; cg")

def consumer(A, P, QMb, QEb, KVb, sf="", npre_w=36, wflags="", chunk_barriers=True):
    frag_addrs(A)
    if "noprio" not in OPT: A("s_setprio 2")
    for i in range(64): A(f"v_mov_b32 v{ACC+i}, 0")
    A("s_cmp_eq_u32 s25, 2")
    A(f"s_cbranch_scc1 {P}KSW")
    consumer_main(A, P, False, npre_w, wflags, chunk_barriers)
    A(f"s_branch {P}EPI")
    A.label(f"{P}KSW")
    consumer_main(A, P, True, npre_w, wflags, chunk_barriers)
    A.label(f"{P}EPI")
    A("s_setprio 0")
    stamps.stamp(A, 2)
    epilogue(A, P, QMb, QEb, KVb, sf)

def gen_qkv(layer, opt=()):
    global OPT
    OPT = opt
    name = f"qkv{layer}_kernel"
    P = f"Q{layer}_"
    A = Asm()
    A("s_cmp_ge_u32 s2, 256")
    A(f"s_cbranch_scc1 {P}END")
    stamps.init(A)
    if layer == 0: A("s_load_dwordx2 s[4:5], s[0:1], %d" % KA_X)
    A("s_load_dwordx2 s[6:7], s[0:1], %d" % KA_WS)
    A("v_lshrrev_b32 v2, 6, v0")
    A("v_and_b32 v1, 63, v0")
    A("v_readfirstlane_b32 s22, v2")
    decode_id(A)
    A("s_nop 1")
    setup_scalars(A)
    lane_consts(A)
    A("s_waitcnt lgkmcnt(0)")
    if layer == 0: srd(A, 8, 4, SZ_X)
    else: srd(A, 8, 6, X2_SZ, off=X2)
    srd(A, 12, 6, WS_USED)
    sf = "sc1" if "wt" in opt else ""
    A("s_cmp_ge_u32 s22, 4")
    A(f"s_cbranch_scc1 {P}HELP")
    NW, NX = 8, 3
    for o in opt:
        if o.startswith("w"):
            if o[1:].isdigit(): NW = int(o[1:])
        if o.startswith("x"): NX = int(o[1:])
    issue_w(A, NW)
    stamps.stamp(A, 0)
    consumer(A, P, QM, QE, KV, sf, npre_w=NW)
    A(f"s_branch {P}DONE")
    A.label(f"{P}HELP")
    helper_voffsets(A)
    helper_colsum_issue(A, CS4)
    for kc in range(NX): issue_x(A, kc, 8)
    stamps.stamp(A, 0); stamps.stamp(A, 1)
    helper_main(A, P, NX, 8)
    stamps.stamp(A, 2)
    A.label(f"{P}DONE")
    A("s_waitcnt vmcnt(0)")
    stamps.stamp(A, 3)
    stamps.flush(A, 2 if layer == 0 else 5, 4, 22, vt=80)
    A.label(f"{P}END")
    A("s_endpgm")
    return kernel_header(name) + A.text(), kernel_desc(name, 256), f"; @launch kernel={name} grid=(256,1,1) block=(512,1,1) lds={LDS_QKV}"
```

```python
S = 2048; D = 576; H = 32; DH = 18
KA_X, KA_WQKV, KA_WO, KA_BQ, KA_BK, KA_BV, KA_SHIFT, KA_SSMK, KA_SSMD, KA_OUT, KA_DBG, KA_WS = [8*i for i in range(12)]
SZ_X = S*D*2
SZ_WQKV = D*3*D*2
SZ_WO = D*D*2
SZ_SHIFT = D*4*2
SZ_SSMK = D*S*2
SZ_SSMD = D*2

def _al(x, a=4096): return (x + a - 1)//a*a
_off = 0
def _alloc(n):
    global _off
    o = _off
    _off = _al(_off + n)
    return o
WP_SZ  = 16*4*36*1024;  WP  = _alloc(WP_SZ)
CS_SZ  = 16*4*32*4;     CS  = _alloc(CS_SZ)
CS4_SZ = 16*4*16*32*4;  CS4 = _alloc(CS4_SZ)
WOP_SZ = 4*9*18*1024;   WOP = _alloc(WOP_SZ)
ST0_SZ = 2048*16;       ST0 = _alloc(max(ST0_SZ, 65536))
ST1_SZ = 2048*4*16;     ST1 = _alloc(ST1_SZ)
ST_SZ = 65536
XR_SZ  = D*S*2;         XR  = _alloc(XR_SZ)
YT_SZ  = D*S*2;         YT  = _alloc(YT_SZ)
QM_SZ  = H*S*32;        QM  = _alloc(2*QM_SZ)
QE_SZ  = H*S*4;         QE  = _alloc(2*QE_SZ)
KV_TILE = 2304; KV_CHUNK = 1024 + 8*KV_TILE; KV_HEAD = 8*KV_CHUNK
KV_SZ  = H*KV_HEAD;     KV_LSZ = KV_SZ + 8192;  KV  = _alloc(2*KV_LSZ)
OM_SZ  = H*S*32;        OM  = _alloc(2*OM_SZ)
OE_SZ  = 8*S*16;        OE  = _alloc(2*OE_SZ)
X2_SZ  = S*D*2;         X2  = _alloc(X2_SZ)
EX_SZ  = 64*4*32*16;    EX0 = _alloc(EX_SZ); EX1 = _alloc(EX_SZ)
F0 = _alloc(16*64*4)
FT = _alloc(36*32*4)
F1 = _alloc(2*16*64*4)
F2 = _alloc(2*64*32*4)
F3 = _alloc(16*128*4)
EPOCH = _alloc(4096)
WS_USED = _off
WS_SIZE = 268435456
QSCALE = (DH ** -0.5) * 1.4426950408889634
if __name__ == "__main__":
    for k,v in list(globals().items()):
        if k.isupper(): print(k, v, hex(v) if isinstance(v,int) else "")
```

```python
from asmlib import *
from layout import *
import stamps, struct
import k_qkv3 as Q
import k_att2 as AT
def f2u(x): return struct.unpack("<I", struct.pack("<f", x))[0]

OOB = 0x40000000
SPIN_MAX = 1 << 20
sTAG, sLAYER = 60, 61
FY = EPOCH + 1024

def spin(A, P, name, load, check, cnt=58):
    A(f"s_mov_b32 s{cnt}, 0")
    A.label(f"{P}{name}")
    load()
    A("s_waitcnt vmcnt(0)")
    check()
    A(f"s_cbranch_scc1 {P}{name}_OK")
    A(f"s_add_u32 s{cnt}, s{cnt}, 1")
    A(f"s_cmp_lt_u32 s{cnt}, {SPIN_MAX}")
    A(f"s_cbranch_scc1 {P}{name}")
    A.label(f"{P}{name}_OK")

def check_regs(A, regs):
    A(f"v_cmp_eq_u32 vcc, s{sTAG}, v{regs[0]}")
    for i, r in enumerate(regs[1:]):
        A(f"v_cmp_eq_u32 s[56:57], s{sTAG}, v{r}")
        A("s_nop 1")
        A("s_and_b64 vcc, vcc, s[56:57]")
    A("s_nop 1")
    A("s_cmp_eq_u64 vcc, -1")

def poll_flags(A, P, name, soff, vaddr, vdst, nd=1):
    ld = {1:"buffer_load_dword", 2:"buffer_load_dwordx2", 4:"buffer_load_dwordx4"}[nd]
    dst = f"v{vdst}" if nd == 1 else f"v[{vdst}:{vdst+nd-1}]"
    spin(A, P, name, lambda: A(f"{ld} {dst}, v{vaddr}, s[12:15], s{soff} offen sc1"),
         lambda: check_regs(A, list(range(vdst, vdst+nd))))

def set_flag(A, soff, vt):
    A(f"v_mov_b32 v{vt}, s{sTAG}")
    A(f"v_mov_b32 v{vt+1}, 0")
    A("s_mov_b64 exec, 1")
    A(f"buffer_store_dword v{vt}, v{vt+1}, s[12:15], s{soff} offen sc1")
    A("s_mov_b64 exec, -1")

def wpack(A, P):
    A("s_lshr_b32 s20, s2, 4            ; cg'")
    A("s_bfe_u32 s21, s2, 0x20002       ; t'")
    A("s_and_b32 s23, s2, 3             ; quarter")
    A("v_and_b32 v3, 31, v1             ; f")
    A("v_lshrrev_b32 v4, 5, v1          ; g")
    A("s_mul_i32 s24, s20, 36           ; a*18")
    A("v_lshrrev_b32 v5, 4, v3")
    A("v_mul_u32_u24 v5, 18, v5")
    A("s_cmp_eq_u32 s21, 3")
    A(f"s_cbranch_scc1 {P}T3")
    A("s_cmp_eq_u32 s21, 2")
    A(f"s_cbranch_scc1 {P}T2")
    A("v_bfe_u32 v6, v3, 2, 1")
    A("v_lshlrev_b32 v6, 3, v6")
    A("v_bfe_u32 v7, v3, 3, 1")
    A("v_lshl_add_u32 v6, v7, 2, v6")
    A("v_and_b32 v7, 3, v3")
    A("v_add3_u32 v6, v6, v7, v5")
    A("s_mul_i32 s25, s21, 576")
    A("s_add_u32 s25, s25, s24")
    A("v_add_u32 v6, s25, v6")
    A("v_lshlrev_b32 v6, 1, v6")
    A(f"s_branch {P}D")
    A.label(f"{P}T2")
    A("v_and_b32 v6, 15, v3")
    A("v_add_u32 v6, v6, v5")
    A("s_add_u32 s25, s24, 1152")
    A("v_add_u32 v6, s25, v6")
    A("v_lshlrev_b32 v6, 1, v6")
    A(f"s_branch {P}D")
    A.label(f"{P}T3")
    A("v_lshrrev_b32 v6, 2, v3")
    A("v_mul_u32_u24 v6, 576, v6")
    A("v_bfe_u32 v7, v3, 1, 1")
    A("v_mul_u32_u24 v7, 18, v7")
    A("v_and_b32 v8, 1, v3")
    A("v_add3_u32 v6, v6, v7, v8")
    A("s_add_u32 s25, s24, 16")
    A("v_add_u32 v6, s25, v6")
    A("v_lshlrev_b32 v6, 1, v6")
    A("v_cmp_gt_u32 vcc, 12, v3")
    A(f"v_mov_b32 v7, {hex(OOB)}")
    A("s_nop 0")
    A("v_cndmask_b32 v6, v7, v6, vcc")
    A.label(f"{P}D")
    A("v_mul_u32_u24 v7, 27648, v4")
    A("v_add_u32 v6, v6, v7")
    A("s_lshl_b32 s25, s22, 1")
    A("s_add_u32 s25, s25, 1")
    A("s_cmp_eq_u32 s22, 0")
    A("s_cselect_b32 s25, 0, s25")
    A("s_mul_i32 s26, s23, 9")
    A("s_add_u32 s25, s25, s26          ; ks0")
    A("s_mul_i32 s26, s25, %d" % (16*3456))
    def loads(j):
        for i in range(8):
            A(f"s_add_u32 s27, s26, {(16*j+i)*3456}")
            A(f"buffer_load_ushort v{16+8*j+i}, v6, s[8:11], s27 offen")
    loads(0); loads(1)
    A("s_cmp_lg_u32 s22, 0")
    A(f"s_cbranch_scc1 {P}L2")
    loads(2)
    A.label(f"{P}L2")
    A("s_lshl_b32 s27, s20, 2")
    A("s_add_u32 s27, s27, s21")
    A("s_mul_i32 s28, s27, 36")
    A("s_add_u32 s28, s28, s25")
    A("s_lshl_b32 s28, s28, 10")
    if WP: A(f"s_add_u32 s28, s28, {WP}")
    A("v_lshlrev_b32 v9, 4, v1")
    A("v_mov_b32 v10, 0")
    A("s_mov_b32 s29, 0x3f803f80")
    A("s_waitcnt vmcnt(0)")
    def pack(j):
        b = 16+8*j; d = 48+4*j
        for q in range(4): A(f"v_lshl_or_b32 v{d+q}, v{b+2*q+1}, 16, v{b+2*q}")
        A(f"buffer_store_dwordx4 v[{d}:{d+3}], v9, s[12:15], s28 offen offset:{1024*j} sc1")
        for q in range(4): A(f"v_dot2_f32_bf16 v10, v{d+q}, s29, v10")
    pack(0); pack(1)
    A("s_cmp_lg_u32 s22, 0")
    A(f"s_cbranch_scc1 {P}P2")
    pack(2)
    A.label(f"{P}P2")
    A("s_nop 2")
    A("v_mov_b32 v11, v10")
    A("s_nop 1")
    A("v_permlane32_swap_b32 v10, v11")
    A("s_nop 1")
    A("v_add_f32 v10, v10, v11")
    A("s_lshl_b32 s28, s27, 4")
    A("s_lshl_b32 s29, s23, 2")
    A("s_add_u32 s28, s28, s29")
    A("s_add_u32 s28, s28, s22")
    A("s_lshl_b32 s28, s28, 7")
    A(f"s_add_u32 s28, s28, {CS4}")
    A("v_lshlrev_b32 v12, 2, v3")
    A("s_mov_b32 exec_hi, 0")
    A("buffer_store_dword v10, v12, s[12:15], s28 offen sc1")
    A("s_mov_b32 exec_hi, -1")
    A("s_waitcnt vmcnt(0)")
    A("s_and_b32 s28, s2, 15")
    A("s_lshl_b32 s28, s28, 2")
    A("s_add_u32 s28, s28, s22")
    A("s_lshl_b32 s29, s20, 6")
    A("s_add_u32 s28, s28, s29")
    A("s_lshl_b32 s28, s28, 2")
    A(f"s_add_u32 s28, s28, {F0}")
    set_flag(A, 28, 10)

def wopack(A, P):
    A("s_mul_i32 s20, s2, 3")
    A("s_add_u32 s20, s20, s22          ; fi")
    A("s_mul_hi_u32 s21, s20, %d        ; j = fi/18" % ((2**32+17)//18))
    A("s_mul_i32 s23, s21, 18")
    A("s_sub_u32 s23, s20, s23          ; ks")
    A("v_and_b32 v3, 15, v1")
    A("v_lshrrev_b32 v4, 4, v1          ; kg")
    A("s_lshl_b32 s24, s21, 4           ; n0")
    A("v_add_u32 v5, s24, v3")
    A("v_lshlrev_b32 v5, 1, v5")
    A("s_cmp_ge_u32 s23, 16")
    A(f"s_cbranch_scc1 {P}EXT")
    A("v_lshrrev_b32 v6, 1, v4")
    A("v_mul_u32_u24 v6, 18, v6")
    A("v_and_b32 v7, 1, v4")
    A("v_lshl_add_u32 v6, v7, 2, v6")
    A("v_mul_u32_u24 v6, 1152, v6")
    A("v_add_u32 v6, v6, v5")
    A("s_mul_i32 s25, s23, %d" % (36*1152))
    for i in range(8):
        A(f"s_add_u32 s26, s25, {((i&3) + 8*(i>>2))*1152}")
        A(f"buffer_load_ushort v{16+i}, v6, s[16:19], s26 offen")
    A(f"s_branch {P}ST")
    A.label(f"{P}EXT")
    A("v_mul_u32_u24 v6, %d, v4" % (72*1152))
    A("v_add_u32 v6, v6, v5")
    A("s_sub_u32 s25, s23, 16")
    A("s_mul_i32 s25, s25, %d" % (288*1152))
    for i in range(8):
        A(f"s_add_u32 s26, s25, {(18*(i>>1)+16+(i&1))*1152}")
        A(f"buffer_load_ushort v{16+i}, v6, s[16:19], s26 offen")
    A.label(f"{P}ST")
    A("v_lshlrev_b32 v9, 4, v1")
    A("s_lshl_b32 s27, s20, 10")
    A(f"s_add_u32 s27, s27, {WOP}")
    A("s_waitcnt vmcnt(0)")
    for q in range(4): A(f"v_lshl_or_b32 v{48+q}, v{16+2*q+1}, 16, v{16+2*q}")
    A("buffer_store_dwordx4 v[48:51], v9, s[12:15], s27 offen sc1")

def stats0(A, P):
    A("s_lshl_b32 s20, s2, 3")
    A("v_lshrrev_b32 v3, 3, v1")
    A("v_add_u32 v3, s20, v3            ; row")
    A("v_and_b32 v4, 7, v1              ; c")
    A("v_mul_u32_u24 v5, 1152, v3")
    A("v_lshl_add_u32 v5, v4, 4, v5")
    for m in range(9):
        A(f"buffer_load_dwordx4 v[{16+4*m}:{19+4*m}], v5, s[36:39], 0 offen offset:{128*m}")
    A("v_mov_b32 v6, 0")
    A("v_mov_b32 v8, 0")
    A("s_mov_b32 s29, 0x3f803f80")
    for m in range(9):
        A(f"s_waitcnt vmcnt({8-m})")
        for j in range(4):
            A(f"v_dot2_f32_bf16 v6, v{16+4*m+j}, s29, v6")
            A(f"v_dot2_f32_bf16 v8, v{16+4*m+j}, v{16+4*m+j}, v8")
    for v in (6, 8):
        A("s_nop 2")
        A(f"v_add_f32_dpp v{v}, v{v}, v{v} quad_perm:[1,0,3,2] row_mask:0xf bank_mask:0xf")
        A("s_nop 1")
        A(f"v_add_f32_dpp v{v}, v{v}, v{v} quad_perm:[2,3,0,1] row_mask:0xf bank_mask:0xf")
        A("s_nop 1")
        A(f"v_add_f32_dpp v{v}, v{v}, v{v} row_half_mirror row_mask:0xf bank_mask:0xf")
    A(f"v_mov_b32 v7, s{sTAG}")
    A(f"v_mov_b32 v9, s{sTAG}")
    A("v_lshlrev_b32 v10, 4, v3")
    A("v_cmp_eq_u32 vcc, 0, v4")
    A(f"s_mov_b32 s20, {ST0}")
    A("s_and_saveexec_b64 s[30:31], vcc")
    A("buffer_store_dwordx4 v[6:9], v10, s[12:15], s20 offen sc1")
    A("s_mov_b64 exec, -1")

def tjob(A, P, sJ):
    A(f"s_mul_hi_u32 s21, s{sJ}, %d        ; tb" % ((2**32+35)//36))
    A("s_mul_i32 s23, s21, 36")
    A(f"s_sub_u32 s23, s{sJ}, s23        ; g16")
    A("v_and_b32 v2, 7, v1              ; tg")
    A("v_lshrrev_b32 v3, 3, v1")
    A("s_lshl_b32 s24, s21, 6           ; t0")
    A("v_lshl_add_u32 v4, v2, 3, s24    ; T")
    A("s_lshl_b32 s25, s23, 3")
    A("v_add_u32 v5, s25, v3")
    A("v_mul_u32_u24 v6, 1152, v4")
    A("v_lshl_add_u32 v6, v5, 2, v6")
    A("v_cmp_eq_u32 vcc, 0, v4")
    A(f"v_mov_b32 v10, {hex(OOB)}")
    for j in range(3):
        A(f"v_subrev_u32 v{7+j}, {(3-j)*1152}, v6")
        A(f"v_cndmask_b32 v{7+j}, v{7+j}, v10, vcc")
    A("v_lshlrev_b32 v10, 4, v5")
    A("buffer_load_dwordx4 v[12:15], v10, s[48:51], 0 offen")
    for j in range(3): A(f"buffer_load_dword v{16+j}, v{7+j}, s[40:43], 0 offen")
    for m in range(8):
        A(f"s_mov_b32 s26, {m*1152}")
        A(f"buffer_load_dword v{19+m}, v6, s[40:43], s26 offen")
    for m in range(8):
        A(f"s_mov_b32 s26, {m*1152}")
        A(f"buffer_load_dword v{28+m}, v6, s[44:47], s26 offen")
    A("s_waitcnt vmcnt(0)")
    for c in range(2):
        A(f"v_lshlrev_b32 v{40+4*c}, 16, v{12+2*c}")
        A(f"v_and_b32 v{41+4*c}, 0xffff0000, v{12+2*c}")
        A(f"v_lshlrev_b32 v{42+4*c}, 16, v{13+2*c}")
        A(f"v_and_b32 v{43+4*c}, 0xffff0000, v{13+2*c}")
    for j in range(11):
        A(f"v_lshlrev_b32 v{48+j}, 16, v{16+j}")
        A(f"v_and_b32 v{60+j}, 0xffff0000, v{16+j}")
    for m in range(8):
        A(f"v_lshlrev_b32 v{72+m}, 16, v{28+m}")
        A(f"v_and_b32 v{80+m}, 0xffff0000, v{28+m}")
    for c in range(2):
        kb = 48+12*c; wb = 40+4*c; vb = 72+8*c
        for m in range(8):
            A(f"v_mul_f32 v90, v{kb+m}, v{wb+3}")
            A(f"v_fmac_f32 v90, v{kb+m+1}, v{wb+2}")
            A(f"v_fmac_f32 v90, v{kb+m+2}, v{wb+1}")
            A(f"v_fmac_f32 v90, v{kb+m+3}, v{wb+0}")
            A(f"v_mul_f32 v{vb+m}, v90, v{vb+m}")
        for mm in range(4):
            A(f"v_cvt_pk_bf16_f32 v{92+4*c+mm}, v{vb+7-2*mm}, v{vb+6-2*mm}")
    A("v_sub_u32 v6, 2040, v4")
    A("v_lshlrev_b32 v6, 1, v6")
    A("v_lshl_add_u32 v6, v5, 13, v6")
    A(f"s_mov_b32 s26, {XR}")
    A("buffer_store_dwordx4 v[92:95], v6, s[12:15], s26 offen sc1")
    A("v_add_u32 v7, 4096, v6")
    A("buffer_store_dwordx4 v[96:99], v7, s[12:15], s26 offen sc1")
    A("s_waitcnt vmcnt(0)")
    A("s_lshl_b32 s26, s23, 5")
    A("s_add_u32 s26, s26, s21")
    A("s_lshl_b32 s26, s26, 2")
    A(f"s_add_u32 s26, s26, {FT}")
    set_flag(A, 26, 10)

CP = 4160; XROFF = 4*CP; CPITCH = 21248
CB = Q.XB
L_CRED = CB + 3*CPITCH
assert L_CRED + 8*3072 <= 163840

def conv_setup(A, P):
    A("s_load_dwordx2 s[16:17], s[0:1], %d" % KA_SSMK)
    A("s_lshr_b32 s30, s2, 3")
    A("s_lshr_b32 s31, s2, 4")
    A("s_add_u32 s31, s31, 32")
    A("s_cmp_lt_u32 s2, 64")
    A("s_cselect_b32 s31, s31, s30")
    A("v_and_b32 v2, 31, v1")
    A("v_lshlrev_b32 v2, 2, v2")
    A("v_mov_b32 v3, s30")
    A("v_mov_b32 v4, s31")
    A("v_cmp_gt_u32 vcc, 32, v1")
    A("s_waitcnt lgkmcnt(0)")
    A(f"s_mov_b32 s34, {FT}")
    A("v_cndmask_b32 v3, v4, v3, vcc")
    A("v_lshl_add_u32 v2, v3, 7, v2")
    poll_flags(A, P, "FT", 34, 2, 5)
    A("s_mov_b32 s18, %d" % SZ_SSMK)
    A(f"s_mov_b32 s19, {hex(SRD_W3)}")
    A("v_lshlrev_b32 v3, 4, v1          ; lane*16")
    A("s_lshr_b32 s42, s25, 1")
    A("s_lshl_b32 s43, s2, 1")
    A("s_add_u32 s43, s43, s42          ; channel")
    A(f"s_mul_i32 s42, s42, {CPITCH}")
    A(f"s_add_u32 s42, s42, {CB}")
    A("s_and_b32 s47, s25, 1")
    A("s_lshl_b32 s47, s47, 11")
    def issue(j, sCh):
        b = 16+8*j
        A(f"s_lshl_b32 s35, s{sCh}, 12")
        A(f"s_add_u32 s37, s35, s{48+j}")
        A(f"s_add_u32 m0, s{44+j}, {XROFF}")
        A(f"s_add_u32 s38, s37, {XR}")
        A("buffer_load_dwordx4 v3, s[12:15], s38 offen lds sc1")
        A(f"buffer_load_dwordx4 v[{b}:{b+3}], v3, s[16:19], s37 offen")
        A(f"buffer_load_dwordx2 v[{b+4}:{b+5}], v3, s[16:19], s37 offen offset:16")
    def build(j):
        b = 16+8*j
        A(f"v_add_u32 v6, s{44+j}, v3")
        A(f"ds_write_b128 v6, v[{b}:{b+3}] offset:32")
        A(f"v_alignbit_b32 v40, v{b+1}, v{b}, 16")
        A(f"v_alignbit_b32 v41, v{b+2}, v{b+1}, 16")
        A(f"v_alignbit_b32 v42, v{b+3}, v{b+2}, 16")
        A(f"v_alignbit_b32 v43, v{b+4}, v{b+3}, 16")
        A(f"ds_write_b128 v6, v[40:43] offset:{CP+32}")
        A("v_mov_b32 v44, v41")
        A("v_mov_b32 v45, v42")
        A("v_mov_b32 v46, v43")
        A(f"v_alignbit_b32 v47, v{b+5}, v{b+4}, 16")
        A(f"ds_write_b128 v6, v[44:47] offset:{3*CP+32}")
        A(f"v_mov_b32 v48, v{b+1}")
        A(f"v_mov_b32 v49, v{b+2}")
        A(f"v_mov_b32 v50, v{b+3}")
        A(f"v_mov_b32 v51, v{b+4}")
        A(f"ds_write_b128 v6, v[48:51] offset:{2*CP+32}")
        lab = f"{P}NH{j}"
        A(f"s_cmp_lg_u32 s{48+j}, 0")
        A(f"s_cbranch_scc1 {lab}")
        for q in range(8, 12): A(f"v_mov_b32 v{q}, 0")
        A(f"v_lshlrev_b32 v55, 16, v{b}")
        for q in (52,53,54,56,57,58,60,61): A(f"v_mov_b32 v{q}, 0")
        A(f"v_mov_b32 v59, v{b}")
        A("v_mov_b32 v62, v55")
        A("v_mov_b32 v63, v40")
        A("v_cmp_gt_u32 vcc, 30, v1")
        A("s_and_saveexec_b64 s[40:41], vcc")
        A(f"ds_write_b128 v6, v[8:11] offset:{XROFF+4096}")
        A("s_mov_b64 exec, 1")
        for s_ in range(4): A(f"ds_write_b128 v6, v[8:11] offset:{s_*CP}")
        A(f"ds_write_b128 v6, v[8:11] offset:16")
        A(f"ds_write_b128 v6, v[52:55] offset:{CP+16}")
        A(f"ds_write_b128 v6, v[56:59] offset:{2*CP+16}")
        A(f"ds_write_b128 v6, v[60:63] offset:{3*CP+16}")
        A("s_mov_b64 exec, -1")
        A.label(lab)
    for j in range(2):
        A(f"s_add_u32 s{48+j}, s47, {1024*j}")
        A(f"s_add_u32 s{44+j}, s42, s{48+j}")
        issue(j, 43)
    A("s_cmp_lt_u32 s2, 64")
    A(f"s_cbranch_scc0 {P}NO3A")
    A("s_lshl_b32 s50, s25, 10")
    A(f"s_add_u32 s46, s50, {CB + 2*CPITCH}")
    A("s_add_u32 s43, s2, 512")
    issue(2, 43)
    A.label(f"{P}NO3A")
    A("s_waitcnt vmcnt(0)")
    build(0); build(1)
    A("s_cmp_lt_u32 s2, 64")
    A(f"s_cbranch_scc0 {P}NO3B")
    build(2)
    A.label(f"{P}NO3B")
    A("s_waitcnt lgkmcnt(0)")

SETS = {0: [0,3,4,7], 1: [1,2,5,6]}
def conv_round(A, P, c_expr, G, tagp):
    nres = 8//G
    ACCY = 8
    BS = [32, 96]; AS = [64, 128]
    vA, vB, vKV, vN = 24, 25, 26, 27
    if G == 2:
        A("s_lshr_b32 s30, s22, 2           ; c")
        A("s_bfe_u32 s31, s22, 0x10001      ; h")
        A("s_and_b32 s32, s22, 1            ; rg")
        A("s_lshl_b32 s33, s2, 1")
        A("s_add_u32 s33, s33, s30          ; channel")
    else:
        A("s_mov_b32 s30, 2")
        A("s_lshr_b32 s31, s22, 2")
        A("s_and_b32 s32, s22, 3")
        A("s_add_u32 s33, s2, 512")
    A(f"s_mul_i32 s34, s30, {CPITCH}")
    A(f"s_add_u32 s34, s34, {CB}")
    A("s_lshl_b32 s35, s33, 1")
    A("v_mov_b32 v28, s35")
    A("buffer_load_ushort v29, v28, s[16:19], 0 offen")
    A("v_and_b32 v2, 15, v1             ; b / n")
    A("v_lshrrev_b32 v3, 4, v1          ; kg")
    A("v_add_u32 v4, 1, v2")
    A("v_and_b32 v5, 3, v4")
    A("v_sub_u32 v4, v4, v5")
    A("v_lshl_add_u32 v4, v3, 3, v4")
    A("v_lshlrev_b32 v4, 1, v4")
    A(f"v_mul_u32_u24 v5, {CP}, v5")
    A("s_lshl_b32 s35, s32, 6           ; 64*rg")
    A("s_add_u32 s36, s34, s35")
    A(f"v_add3_u32 v{vA}, v4, v5, s36")
    A("v_lshlrev_b32 v4, 5, v2          ; 32n")
    A("v_lshlrev_b32 v5, 4, v3          ; 16kg")
    A(f"v_sub_u32 v{vB}, v5, v4")
    A(f"s_add_u32 s36, s36, {XROFF + 2*2032 - 3584}")
    A(f"v_add_u32 v{vB}, s36, v{vB}")
    A("v_lshlrev_b32 v5, 3, v3")
    A(f"v_add_u32 v{vN}, v4, v5          ; 32n + 8q4")
    A(f"s_add_u32 s36, s34, {XROFF + 2*2044 - 3584}")
    A(f"v_sub_u32 v{vKV}, s36, v{vN}")
    for j in range(16): A(f"v_mov_b32 v{ACCY+j}, 0")
    def variant(h):
        tiles = SETS[h]; J = tiles[-1]
        def loads(rr, st):
            r = G*rr
            for i in range(J+1):
                A(f"ds_read_b128 v[{BS[st]+4*i}:{BS[st]+4*i+3}], v{vB} offset:{64*r+512*(7-i)}")
            for mu in range(J+1):
                m = 8*mu + r
                A(f"ds_read_b64 v[{AS[st]+4*mu}:{AS[st]+4*mu+1}], v{vA} offset:{64*m}")
                A(f"ds_read_b64 v[{AS[st]+4*mu+2}:{AS[st]+4*mu+3}], v{vA} offset:{64*m+8}")
        loads(0, 0)
        for rr in range(nres):
            st = rr & 1
            A("s_waitcnt lgkmcnt(0)")
            if rr+1 < nres: loads(rr+1, st^1)
            for mu in range(J+1):
                for ti, j in enumerate(tiles):
                    if j < mu: continue
                    i = j - mu; d = ACCY+4*ti
                    A(f"v_mfma_f32_16x16x32_bf16 v[{d}:{d+3}], v[{AS[st]+4*mu}:{AS[st]+4*mu+3}], v[{BS[st]+4*i}:{BS[st]+4*i+3}], v[{d}:{d+3}]")
    A("s_cmp_eq_u32 s31, 0")
    A(f"s_cbranch_scc0 {P}H1{tagp}")
    variant(0)
    A(f"s_branch {P}HD{tagp}")
    A.label(f"{P}H1{tagp}")
    variant(1)
    A.label(f"{P}HD{tagp}")
    nk = 4//G
    A("s_mul_i32 s35, s22, 3072")
    A(f"s_add_u32 s35, s35, {L_CRED}")
    A("v_lshlrev_b32 v2, 4, v1")
    A(f"v_add_u32 v3, s35, v2")
    A("s_nop 7")
    for rg in range(1, G):
        lab = f"{P}RT{tagp}{rg}"
        A(f"s_cmp_eq_u32 s32, {rg}")
        A(f"s_cbranch_scc0 {lab}")
        sh = 4*rg*nk
        tmp = 32
        for j in range(16): A(f"v_mov_b32 v{tmp+j}, v{ACCY+(j+sh) % 16}")
        for j in range(16): A(f"v_mov_b32 v{ACCY+j}, v{tmp+j}")
        A.label(lab)
    nsend = 4 - nk
    for q in range(nsend):
        A(f"ds_write_b128 v3, v[{ACCY+4*(nk+q)}:{ACCY+4*(nk+q)+3}] offset:{1024*q}")
    A("s_waitcnt lgkmcnt(0)")
    A("s_barrier")
    R = 48
    cnt = 0
    base_w = "s22"
    for d in range(1, G):
        A(f"s_add_u32 s36, s32, {d}")
        A(f"s_and_b32 s36, s36, {G-1}")
        A(f"s_andn2_b32 s37, s22, {G-1}")
        A("s_add_u32 s36, s36, s37")
        A("s_mul_i32 s36, s36, 3072")
        A(f"s_add_u32 s36, s36, {L_CRED}")
        A(f"v_add_u32 v4, s36, v2")
        for k in range(nk):
            q = ((G-d)*nk + k) % 4 - nk
            A(f"ds_read_b128 v[{R+4*cnt}:{R+4*cnt+3}], v4 offset:{1024*q}")
            cnt += 1
    for k in range(nk):
        A(f"s_mul_i32 s36, s32, {nk}")
        A(f"s_add_u32 s36, s36, {k}         ; pos")
        A("s_lshl_b32 s36, s36, 2")
        A(f"s_mov_b32 s37, {hex(0x7430)}")
        A(f"s_mov_b32 s39, {hex(0x6521)}")
        A("s_cmp_eq_u32 s31, 0")
        A("s_cselect_b32 s37, s37, s39")
        A("s_lshr_b32 s37, s37, s36")
        A(f"s_and_b32 s{44+k}, s37, 15       ; tile j")
        A(f"s_sub_u32 s36, 7, s{44+k}")
        A("s_lshl_b32 s36, s36, 9")
        A(f"v_add_u32 v5, s36, v{vKV}")
        A(f"ds_read_b64 v[{72+2*k}:{73+2*k}], v5")
    A("s_waitcnt vmcnt(0) lgkmcnt(0)")
    A("v_lshlrev_b32 v29, 16, v29         ; D")
    cnt = 0
    for d in range(1, G):
        for k in range(nk):
            for r in range(4): A(f"v_add_f32 v{ACCY+4*k+r}, v{ACCY+4*k+r}, v{R+4*cnt+r}")
            cnt += 1
    for k in range(nk):
        r0, r1 = 72+2*k, 73+2*k; a = ACCY+4*k
        A(f"v_and_b32 v76, 0xffff0000, v{r1}")
        A(f"v_lshlrev_b32 v77, 16, v{r1}")
        A(f"v_and_b32 v78, 0xffff0000, v{r0}")
        A(f"v_lshlrev_b32 v79, 16, v{r0}")
        for rr in range(4): A(f"v_fmac_f32 v{a+rr}, v{76+rr}, v29")
        A(f"v_cvt_pk_bf16_f32 v{80+2*k}, v{a}, v{a+1}")
        A(f"v_cvt_pk_bf16_f32 v{81+2*k}, v{a+2}, v{a+3}")
        A("s_lshl_b32 s36, s33, 12")
        A(f"s_lshl_b32 s37, s{44+k}, 9")
        A("s_add_u32 s36, s36, s37")
        A(f"s_add_u32 s36, s36, {YT}")
        A(f"buffer_store_dwordx2 v[{80+2*k}:{81+2*k}], v{vN}, s[12:15], s36 offen sc1")

def conv_compute(A, P):
    A("s_load_dwordx2 s[16:17], s[0:1], %d" % KA_SSMD)
    A("s_waitcnt lgkmcnt(0)")
    A("s_mov_b32 s18, %d" % SZ_SSMD)
    A(f"s_mov_b32 s19, {hex(SRD_W3)}")
    A("s_barrier")
    conv_round(A, P, None, 2, "a")
    A("s_cmp_lt_u32 s2, 64")
    A(f"s_cbranch_scc0 {P}CEND")
    A("s_barrier")
    conv_round(A, P, None, 4, "b")
    A.label(f"{P}CEND")

G_PS, G_MR, G_OF, G_XT, G_YT = 0, 2048, 24576, 61440, 61440+9216
WFA, WFB = 64, 136
ACA, ACB = 8, 208

def red4(A, v, t):
    A(f"v_mov_b32 v{t}, v{v}")
    A("s_nop 1")
    A(f"v_permlane16_swap_b32 v{v}, v{t}")
    A("s_nop 1")
    A(f"v_add_f32 v{v}, v{v}, v{t}")
    A(f"v_mov_b32 v{t}, v{v}")
    A("s_nop 1")
    A(f"v_permlane32_swap_b32 v{v}, v{t}")
    A("s_nop 1")
    A(f"v_add_f32 v{v}, v{v}, v{t}")

def opg_ids(A):
    A("s_and_b32 s20, s2, 7")
    A("s_lshr_b32 s21, s2, 3")
    A("s_lshl_b32 s20, s20, 3")
    A("s_lshr_b32 s23, s21, 2")
    A("s_add_u32 s20, s20, s23          ; rb (0..63)")
    A("s_and_b32 s21, s21, 3            ; cgo")

def opg_prefetch(A, P):
    opg_ids(A)
    A("v_and_b32 v1, 63, v0")
    A("v_and_b32 v3, 15, v1             ; n")
    A("v_lshrrev_b32 v4, 4, v1          ; kg")
    A("v_lshlrev_b32 v5, 4, v1          ; lane*16")
    A("s_mov_b32 s31, %d" % ((2**32+17)//18))
    A("s_mul_i32 s32, s20, %d" % (32*1152))
    A("s_mul_i32 s33, s21, 288")
    A("s_add_u32 s32, s32, s33")
    def xaddr(vL, vd):
        A(f"v_mul_hi_u32 v7, v{vL}, s31")
        A("v_mul_u32_u24 v8, 18, v7")
        A(f"v_sub_u32 v8, v{vL}, v8")
        A("v_mul_u32_u24 v9, 1152, v7")
        A(f"v_lshl_add_u32 v{vd}, v8, 4, v9")
    xaddr(0, 60)
    A("v_add_u32 v6, 512, v1")
    xaddr(6, 61)
    A("s_lshl_b32 s34, s22, 10")
    A(f"s_add_u32 m0, s34, {G_XT}")
    A("s_nop 0")
    A("buffer_load_dwordx4 v60, s[8:11], s32 offen lds sc1")
    A("s_mul_i32 s33, s21, %d" % (144*4096))
    A("s_lshl_b32 s35, s20, 6")
    A("s_add_u32 s33, s33, s35")
    A(f"s_add_u32 s33, s33, {YT}")
    A("v_lshrrev_b32 v7, 2, v0")
    A("v_lshlrev_b32 v7, 12, v7")
    A("v_and_b32 v8, 3, v0")
    A("v_lshl_add_u32 v7, v8, 4, v7")
    A(f"s_add_u32 m0, s34, {G_YT}")
    A("s_nop 0")
    A("buffer_load_dwordx4 v7, s[12:15], s33 offen lds sc1")
    A("s_cmp_lg_u32 s22, 0")
    A(f"s_cbranch_scc1 {P}NX")
    A(f"s_mov_b32 m0, {G_XT + 8192}")
    A("s_nop 0")
    A("buffer_load_dwordx4 v61, s[8:11], s32 offen lds sc1")
    A(f"v_add_u32 v7, {128*4096}, v7        ; channels 128..143")
    A(f"s_mov_b32 m0, {G_YT + 8192}")
    A("s_nop 0")
    A("buffer_load_dwordx4 v7, s[12:15], s33 offen lds sc1")
    A.label(f"{P}NX")
    def wl(base, sct):
        A("s_mul_i32 s33, s21, 9")
        A(f"s_add_u32 s33, s33, {sct}")
        A("s_mul_i32 s33, s33, %d" % (18*1024))
        A(f"s_add_u32 s33, s33, {WOP}")
        for ks in range(18):
            if ks and ks % 4 == 0: A("s_add_u32 s33, s33, 4096")
            A(f"buffer_load_dwordx4 v[{base+4*ks}:{base+4*ks+3}], v5, s[12:15], s33 offen offset:{(ks%4)*1024} sc1")
    wl(WFA, "s22")
    A("s_cmp_lg_u32 s22, 7")
    A(f"s_cbranch_scc1 {P}NW")
    wl(WFB, "8")
    A.label(f"{P}NW")

def opg_main(A, P):
    A("v_lshrrev_b32 v6, 1, v4")
    A("v_lshlrev_b32 v6, 16, v6")
    A("v_lshl_add_u32 v6, v3, 5, v6")
    A("v_and_b32 v7, 1, v4")
    A("v_lshl_add_u32 v6, v7, 4, v6")
    A("s_lshl_b32 s24, s22, 18")
    A("s_lshl_b32 s25, s20, 10")
    A("s_add_u32 s24, s24, s25")
    A(f"s_add_u32 s24, s24, {OM}")
    A("s_add_u32 s24, s24, s63")
    A("s_lshl_b32 s28, s22, 11")
    for rt in range(2):
        for kk in range(2):
            A(f"s_add_u32 m0, s28, {G_OF + rt*18432 + kk*1024}")
            A(f"s_add_u32 s30, s24, {kk*131072 + rt*512}")
            A("buffer_load_dwordx4 v6, s[12:15], s30 offen lds sc1")
    A("s_cmp_ge_u32 s22, 4")
    A(f"s_cbranch_scc1 {P}NE")
    A("v_lshlrev_b32 v6, 15, v4")
    A("v_lshl_add_u32 v6, v3, 4, v6")
    A("s_lshr_b32 s24, s22, 1           ; rt")
    A("s_and_b32 s25, s22, 1            ; e")
    A("s_lshl_b32 s26, s20, 9")
    A("s_lshl_b32 s27, s24, 8")
    A("s_add_u32 s26, s26, s27")
    A("s_lshl_b32 s27, s25, 17")
    A("s_add_u32 s26, s26, s27")
    A(f"s_add_u32 s26, s26, {OE}")
    A("s_add_u32 s26, s26, s64")
    A("s_mul_i32 s27, s24, 18432")
    A("s_lshl_b32 s28, s25, 10")
    A("s_add_u32 s27, s27, s28")
    A(f"s_add_u32 m0, s27, {G_OF + 16*1024}")
    A("s_nop 0")
    A("buffer_load_dwordx4 v6, s[12:15], s26 offen lds sc1")
    A.label(f"{P}NE")
    for i in range(8):
        A(f"v_mov_b32 v{ACA+i}, 0")
        A(f"v_mov_b32 v{ACB+i}, 0")
    A("s_waitcnt vmcnt(0)")
    A("s_barrier")
    stamps.stamp(A, 9)
    def mainloop(WF, AC):
        def rd(ks, st):
            b = 16 + 8*st
            A(f"ds_read_b128 v[{b}:{b+3}], v5 offset:{G_OF + ks*1024}")
            A(f"ds_read_b128 v[{b+4}:{b+7}], v5 offset:{G_OF + 18432 + ks*1024}")
        rd(0,0); rd(1,1)
        for ks in range(18):
            st = ks % 3
            if ks + 2 < 18: rd(ks+2, (ks+2) % 3)
            A(f"s_waitcnt lgkmcnt({4 if ks+2<18 else (2 if ks+1<18 else 0)})")
            b = 16 + 8*st
            A(f"v_mfma_f32_16x16x32_bf16 v[{AC}:{AC+3}], v[{WF+4*ks}:{WF+4*ks+3}], v[{b}:{b+3}], v[{AC}:{AC+3}]")
            A(f"v_mfma_f32_16x16x32_bf16 v[{AC+4}:{AC+7}], v[{WF+4*ks}:{WF+4*ks+3}], v[{b+4}:{b+7}], v[{AC+4}:{AC+7}]")
    mainloop(WFA, ACA)
    def ifB(fn, tag):
        A("s_cmp_lg_u32 s22, 7")
        A(f"s_cbranch_scc1 {P}NB{tag}")
        fn()
        A.label(f"{P}NB{tag}")
    ifB(lambda: mainloop(WFB, ACB), "m")
    A("v_mul_u32_u24 v40, 288, v3")
    A("v_lshl_add_u32 v40, v4, 3, v40")
    A("s_lshl_b32 s33, s22, 5")
    A(f"s_add_u32 s33, s33, {G_XT}")
    A("v_add_u32 v40, s33, v40")
    A("v_lshrrev_b32 v41, 2, v3")
    A("v_lshl_add_u32 v41, v4, 2, v41")
    A("v_lshlrev_b32 v41, 6, v41")
    A("v_and_b32 v42, 3, v1")
    A("v_lshl_add_u32 v41, v42, 3, v41")
    A("s_lshl_b32 s33, s22, 10")
    A(f"s_add_u32 s33, s33, {G_YT}")
    A("v_add_u32 v41, s33, v41")
    XA_, YA_, XB_, YB_ = 44, 48, 216, 220
    def rdxy(X, Y, dx, dy):
        A(f"ds_read_b64 v[{X}:{X+1}], v40 offset:{dx}")
        A(f"ds_read_b64 v[{X+2}:{X+3}], v40 offset:{dx + 16*288}")
        A(f"ds_read_b64_tr_b16 v[{Y}:{Y+1}], v41 offset:{dy}")
        A(f"ds_read_b64_tr_b16 v[{Y+2}:{Y+3}], v41 offset:{dy + 32}")
    rdxy(XA_, YA_, 0, 0)
    ifB(lambda: rdxy(XB_, YB_, 32, 1024), "r")
    A("s_waitcnt lgkmcnt(0)")
    A("s_nop 3")
    def x1(AC, X):
        for rt in range(2):
            x = X+2*rt; a = AC+4*rt
            A(f"v_lshlrev_b32 v52, 16, v{x}")
            A(f"v_and_b32 v53, 0xffff0000, v{x}")
            A(f"v_lshlrev_b32 v54, 16, v{x+1}")
            A(f"v_and_b32 v55, 0xffff0000, v{x+1}")
            for r in range(4): A(f"v_add_f32 v{a+r}, v{a+r}, v{52+r}")
            A(f"v_cvt_pk_bf16_f32 v56, v{a}, v{a+1}")
            A(f"v_cvt_pk_bf16_f32 v57, v{a+2}, v{a+3}")
            A(f"v_lshlrev_b32 v{a}, 16, v56")
            A(f"v_and_b32 v{a+1}, 0xffff0000, v56")
            A(f"v_lshlrev_b32 v{a+2}, 16, v57")
            A(f"v_and_b32 v{a+3}, 0xffff0000, v57")
    x1(ACA, XA_)
    ifB(lambda: x1(ACB, XB_), "x")
    def sums(AC, first):
        for rt in range(2):
            a = AC+4*rt; s1 = 16+2*rt; s2 = s1+1
            if first:
                A(f"v_add_f32 v{s1}, v{a}, v{a+1}")
                A(f"v_mul_f32 v{s2}, v{a}, v{a}")
            else:
                A(f"v_add_f32 v{s1}, v{s1}, v{a}")
                A(f"v_add_f32 v{s1}, v{s1}, v{a+1}")
                A(f"v_fmac_f32 v{s2}, v{a}, v{a}")
            A(f"v_add_f32 v{s1}, v{s1}, v{a+2}")
            A(f"v_add_f32 v{s1}, v{s1}, v{a+3}")
            for r in range(1,4): A(f"v_fmac_f32 v{s2}, v{a+r}, v{a+r}")
    def partial_stats(tag):
        sums(ACA, True)
        ifB(lambda: sums(ACB, False), "s"+tag)
        for v in (16,17,18,19): red4(A, v, 52)
        A("s_lshl_b32 s33, s22, 8")
        A("v_lshl_add_u32 v53, v3, 3, s33")
        A("s_mov_b64 exec, 0xffff")
        A(f"ds_write_b64 v53, v[16:17] offset:{G_PS}")
        A(f"ds_write_b64 v53, v[18:19] offset:{G_PS+128}")
        A("s_mov_b64 exec, -1")
        A("s_waitcnt lgkmcnt(0)")
        A("s_barrier")
    def wg_sum():
        A("v_and_b32 v54, 31, v1")
        A("v_lshlrev_b32 v54, 3, v54")
        for w in range(8): A(f"ds_read_b64 v[{22+2*w}:{23+2*w}], v54 offset:{G_PS + 256*w}")
        A("s_waitcnt lgkmcnt(0)")
        A("v_add_f32 v20, v22, v24")
        A("v_add_f32 v21, v23, v25")
        for w in range(2,8):
            A(f"v_add_f32 v20, v20, v{22+2*w}")
            A(f"v_add_f32 v21, v21, v{23+2*w}")
    partial_stats("a")
    stamps.stamp(A, 10)
    A("s_cmp_lg_u32 s22, 0")
    A(f"s_cbranch_scc1 {P}WAITST")
    wg_sum()
    A(f"s_mul_i32 s33, s{sLAYER}, {EX_SZ}")
    A("s_lshl_b32 s35, s20, 11          ; rb*4*512")
    A("s_add_u32 s33, s33, s35")
    A(f"s_add_u32 s33, s33, {EX0}")
    A("s_lshl_b32 s35, s21, 9")
    A("s_add_u32 s35, s35, s33")
    A("v_mov_b32 v24, v20")
    A(f"v_mov_b32 v25, s{sTAG}")
    A("v_mov_b32 v26, v21")
    A(f"v_mov_b32 v27, s{sTAG}")
    A("v_lshlrev_b32 v55, 1, v54          ; row*16")
    A("s_mov_b32 exec_hi, 0")
    A("buffer_store_dwordx4 v[24:27], v55, s[12:15], s35 offen sc1")
    A("s_mov_b32 exec_hi, -1")
    A("v_lshrrev_b32 v56, 5, v1")
    A("v_lshl_add_u32 v55, v56, 9, v55")
    def ld():
        A("buffer_load_dwordx4 v[24:27], v55, s[12:15], s33 offen sc1")
        A("buffer_load_dwordx4 v[28:31], v55, s[12:15], s33 offen offset:1024 sc1")
    spin(A, P, "EX", ld, lambda: check_regs(A, [25,27,29,31]))
    A("v_add_f32 v22, v24, v28")
    A("v_add_f32 v23, v26, v30")
    for v in (22,23):
        A(f"v_mov_b32 v24, v{v}")
        A("s_nop 1")
        A(f"v_permlane32_swap_b32 v{v}, v24")
        A("s_nop 1")
        A(f"v_add_f32 v{v}, v{v}, v24")
    A(f"v_mul_f32 v22, {hex(f2u(1.0/576))}, v22")
    A(f"v_mul_f32 v23, {hex(f2u(1.0/576))}, v23")
    A("v_fma_f32 v23, -v22, v22, v23")
    A("v_max_f32 v23, 0, v23")
    A(f"v_add_f32 v23, {hex(f2u(1e-5))}, v23")
    A("v_rsq_f32 v23, v23")
    A("s_nop 0")
    A(f"ds_write_b64 v54, v[22:23] offset:{G_MR}")
    A("s_waitcnt lgkmcnt(0)")
    A.label(f"{P}WAITST")
    A("s_barrier")
    stamps.stamp(A, 11)
    A("v_lshlrev_b32 v53, 3, v3")
    A(f"ds_read_b64 v[24:25], v53 offset:{G_MR}")
    A(f"ds_read_b64 v[26:27], v53 offset:{G_MR+128}")
    A("s_waitcnt lgkmcnt(0)")
    def gate(AC, X, Y, dx):
        for rt in range(2):
            a = AC+4*rt; y = Y+2*rt; mu = 24+2*rt; rs = mu+1
            A(f"v_lshlrev_b32 v52, 16, v{y}")
            A(f"v_and_b32 v53, 0xffff0000, v{y}")
            A(f"v_lshlrev_b32 v54, 16, v{y+1}")
            A(f"v_and_b32 v55, 0xffff0000, v{y+1}")
            for r in range(4):
                A(f"v_sub_f32 v56, v{a+r}, v{mu}")
                A(f"v_mul_f32 v56, v56, v{rs}")
                A(f"v_fmac_f32 v{a+r}, v56, v{52+r}")
            A(f"v_cvt_pk_bf16_f32 v{X+2*rt}, v{a}, v{a+1}")
            A(f"v_cvt_pk_bf16_f32 v{X+2*rt+1}, v{a+2}, v{a+3}")
        A(f"ds_write_b64 v40, v[{X}:{X+1}] offset:{dx}")
        A(f"ds_write_b64 v40, v[{X+2}:{X+3}] offset:{dx + 16*288}")
    gate(ACA, XA_, YA_, 0)
    ifB(lambda: gate(ACB, XB_, YB_, 32), "g")
    A("s_waitcnt lgkmcnt(0)")
    A("s_barrier")
    A("v_lshlrev_b32 v53, 4, v0")
    A(f"v_add_u32 v53, {G_XT}, v53")
    A(f"v_add_u32 v54, {G_XT + 8192}, v5")
    A(f"ds_read_b128 v[28:31], v53")
    A(f"ds_read_b128 v[32:35], v54")
    A("s_waitcnt lgkmcnt(0)")
    A("buffer_store_dwordx4 v[28:31], v60, s[16:19], s32 offen sc1")
    A("s_cmp_lg_u32 s22, 0")
    A(f"s_cbranch_scc1 {P}NS2")
    A("buffer_store_dwordx4 v[32:35], v61, s[16:19], s32 offen sc1")
    A.label(f"{P}NS2")
    return dict(partial_stats=partial_stats, wg_sum=wg_sum, ifB=ifB, regs=(XA_, XB_))

def opg_publish(A, P, h):
    A("s_waitcnt vmcnt(0)")
    A("s_lshr_b32 s33, s20, 2")
    A("s_lshl_b32 s33, s33, 7")
    A("s_and_b32 s34, s20, 3")
    A("s_lshl_b32 s34, s34, 2")
    A("s_add_u32 s34, s34, s21")
    A("s_lshl_b32 s34, s34, 3")
    A("s_add_u32 s34, s34, s22")
    A("s_add_u32 s33, s33, s34")
    A("s_lshl_b32 s33, s33, 2")
    A(f"s_add_u32 s33, s33, {F3}")
    set_flag(A, 33, 52)
    XA_, XB_ = h["regs"]
    def unpack(AC, X):
        for rt in range(2):
            a = AC+4*rt; x = X+2*rt
            A(f"v_lshlrev_b32 v{a}, 16, v{x}")
            A(f"v_and_b32 v{a+1}, 0xffff0000, v{x}")
            A(f"v_lshlrev_b32 v{a+2}, 16, v{x+1}")
            A(f"v_and_b32 v{a+3}, 0xffff0000, v{x+1}")
    unpack(ACA, XA_)
    h["ifB"](lambda: unpack(ACB, XB_), "u")
    h["partial_stats"]("b")
    A("s_cmp_lg_u32 s22, 0")
    A(f"s_cbranch_scc1 {P}NST")
    h["wg_sum"]()
    A("v_mov_b32 v24, v20")
    A(f"v_mov_b32 v25, s{sTAG}")
    A("v_mov_b32 v26, v21")
    A(f"v_mov_b32 v27, s{sTAG}")
    A("v_and_b32 v54, 31, v1")
    A("v_lshlrev_b32 v54, 6, v54          ; row*64")
    A("s_lshl_b32 s33, s20, 11          ; rb*32*64")
    A("s_lshl_b32 s35, s21, 4")
    A("s_add_u32 s33, s33, s35")
    A(f"s_add_u32 s33, s33, {ST1}")
    A("s_mov_b32 exec_hi, 0")
    A("buffer_store_dwordx4 v[24:27], v54, s[12:15], s33 offen sc1")
    A("s_mov_b32 exec_hi, -1")
    A.label(f"{P}NST")

V_CSUM = 240

def stats_to_lds(A, s1, s2):
    T = Q.T
    A(f"v_mul_f32 v{s1}, {hex(f2u(1.0/576))}, v{s1}")
    A(f"v_mul_f32 v{s2}, {hex(f2u(1.0/576))}, v{s2}")
    A(f"v_fma_f32 v{s2}, -v{s1}, v{s1}, v{s2}")
    A(f"v_max_f32 v{s2}, 0, v{s2}")
    A(f"v_add_f32 v{s2}, {hex(f2u(1e-5))}, v{s2}")
    A(f"v_rsq_f32 v{s2}, v{s2}")
    A("s_lshl_b32 s30, s25, 7")
    A(f"v_lshl_add_u32 v{T}, v{Q.V_R}, 2, s30")
    A(f"ds_write_b32 v{T}, v{s1} offset:{Q.L_MU}")
    A(f"ds_write_b32 v{T}, v{s2} offset:{Q.L_RS}")
    A(f"ds_write_b32 v{T}, v{V_CSUM} offset:{Q.L_CS}")
    A("s_waitcnt lgkmcnt(0)")

def f1_flag(A, layer):
    A("s_waitcnt vmcnt(0)")
    A("s_lshl_b32 s30, s24, 6")
    A("s_lshl_b32 s31, s23, 2")
    A("s_add_u32 s30, s30, s31")
    A("s_add_u32 s30, s30, s25")
    A("s_lshl_b32 s30, s30, 2")
    A(f"s_add_u32 s30, s30, {F1 + layer*4096}")
    set_flag(A, 30, 80)

def qkv_ids(A):
    Q.decode_id(A)
    Q.setup_scalars(A)
    A("v_and_b32 v1, 63, v0")
    Q.lane_consts(A)

def qkv1(A):
    P = "A_"
    qkv_ids(A)
    A("s_cmp_ge_u32 s22, 4")
    A(f"s_cbranch_scc1 {P}HELP")
    A("s_load_dwordx2 s[8:9], s[0:1], %d" % KA_WQKV)
    A("s_load_dwordx2 s[16:17], s[0:1], %d" % KA_WO)
    A("s_waitcnt lgkmcnt(0)")
    A("s_mov_b32 s10, %d" % SZ_WQKV)
    A(f"s_mov_b32 s11, {hex(SRD_W3)}")
    A("s_mov_b32 s18, %d" % SZ_WO)
    A(f"s_mov_b32 s19, {hex(SRD_W3)}")
    wpack(A, P+"W")
    stamps.stamp(A, 0)
    A("s_cmp_eq_u32 s22, 3")
    A(f"s_cbranch_scc1 {P}W3")
    A("s_cmp_lt_u32 s2, 216")
    A(f"s_cbranch_scc0 {P}PDONE")
    wopack(A, P+"O")
    A(f"s_branch {P}PDONE")
    A.label(f"{P}W3")
    srd(A, 36, 4, SZ_X)
    stats0(A, P+"S")
    A("s_cmp_lt_u32 s2, 128")
    A(f"s_cbranch_scc0 {P}PDONE")
    t_srds(A)
    A("s_add_u32 s34, s2, 1024")
    tjob(A, P+"TX", 34)
    A.label(f"{P}PDONE")
    qkv_ids(A)
    A("s_lshl_b32 s34, s24, 8")
    A(f"s_add_u32 s34, s34, {F0}")
    A("v_lshlrev_b32 v2, 2, v1")
    poll_flags(A, P, "F0", 34, 2, 3)
    stamps.stamp(A, 1)
    Q.issue_w(A, 8, "sc1")
    st = stamps.ENABLED; stamps.ENABLED = False
    Q.consumer(A, P, QM, QE, KV, "sc1", npre_w=8, wflags="sc1", chunk_barriers=False)
    stamps.ENABLED = st
    stamps.stamp(A, 2)
    f1_flag(A, 0)
    stamps.stamp(A, 3)
    A(f"s_branch {P}CONV")
    A.label(f"{P}HELP")
    srd(A, 8, 4, SZ_X)
    Q.helper_voffsets(A)
    for kc in range(9): Q.issue_x(A, kc, 8)
    t_srds(A)
    A("s_lshl_b32 s34, s2, 2")
    A("s_add_u32 s34, s34, s25")
    tjob(A, P+"TH", 34)
    stamps.stamp(A, 0)
    qkv_ids(A)
    A("s_barrier")
    stamps.stamp(A, 1)
    A("s_lshl_b32 s30, s24, 2")
    A("s_add_u32 s30, s30, s25")
    A("s_lshl_b32 s30, s30, 11")
    A(f"s_add_u32 s30, s30, {CS4}")
    A(f"v_lshlrev_b32 v28, 2, v{Q.V_R}")
    for q in range(16): A(f"buffer_load_dword v{32+q}, v28, s[12:15], s30 offen offset:{128*q} sc1")
    A("s_lshl_b32 s34, s23, 7")
    A("s_lshl_b32 s35, s25, 5")
    A("s_add_u32 s34, s34, s35")
    A("s_lshl_b32 s34, s34, 4")
    A(f"s_add_u32 s34, s34, {ST0}")
    A(f"v_lshlrev_b32 v29, 4, v{Q.V_R}")
    spin(A, P, "ST", lambda: A("buffer_load_dwordx4 v[16:19], v29, s[12:15], s34 offen sc1"), lambda: check_regs(A, [17,19]))
    for q in range(1,16): A(f"v_add_f32 v32, v32, v{32+q}")
    A(f"v_mov_b32 v{V_CSUM}, v32")
    stats_to_lds(A, 16, 18)
    A("s_barrier")
    stamps.stamp(A, 2)
    conv_setup(A, P+"C")
    stamps.stamp(A, 3)
    A.label(f"{P}CONV")
    conv_compute(A, P+"C")
    stamps.stamp(A, 4)

def t_srds(A):
    A("s_load_dwordx2 s[40:41], s[0:1], %d" % KA_BK)
    A("s_load_dwordx2 s[44:45], s[0:1], %d" % KA_BV)
    A("s_load_dwordx2 s[48:49], s[0:1], %d" % KA_SHIFT)
    A("s_waitcnt lgkmcnt(0)")
    for b, n in ((40, SZ_X), (44, SZ_X), (48, SZ_SHIFT)):
        A(f"s_mov_b32 s{b+2}, {n}")
        A(f"s_mov_b32 s{b+3}, {hex(SRD_W3)}")

def qkv2(A):
    P = "B_"
    qkv_ids(A)
    A("s_cmp_ge_u32 s22, 4")
    A(f"s_cbranch_scc1 {P}HELP")
    Q.issue_w(A, 36, "sc1")
    st = stamps.ENABLED; stamps.ENABLED = False
    Q.consumer(A, P, QM+QM_SZ, QE+QE_SZ, KV+KV_LSZ, "sc1", npre_w=36, wflags="sc1", chunk_barriers=True)
    stamps.ENABLED = st
    f1_flag(A, 1)
    A(f"s_branch {P}DONE")
    A.label(f"{P}HELP")
    srd(A, 8, 6, X2_SZ, off=X2)
    Q.helper_voffsets(A)
    A("s_lshl_b32 s34, s23, 9")
    A(f"s_add_u32 s34, s34, {F3}")
    A("v_lshlrev_b32 v2, 3, v1")
    poll_flags(A, P, "F3", 34, 2, 4, nd=2)
    stamps.stamp(A, 12)
    NPRE = 3
    ops = []
    for kc in range(NPRE):
        Q.issue_x(A, kc, 8, "sc1"); ops += [kc]*4
    A("s_lshl_b32 s34, s23, 7")
    A("s_lshl_b32 s35, s25, 5")
    A("s_add_u32 s34, s34, s35")
    A("s_lshl_b32 s34, s34, 6")
    A(f"s_add_u32 s34, s34, {ST1}")
    A(f"v_lshlrev_b32 v29, 6, v{Q.V_R}")
    A(f"v_lshl_add_u32 v29, v{Q.V_G}, 5, v29")
    def ldst():
        A("buffer_load_dwordx4 v[16:19], v29, s[12:15], s34 offen sc1")
        A("buffer_load_dwordx4 v[20:23], v29, s[12:15], s34 offen offset:16 sc1")
    for kc in range(9):
        last = max(i for i, o in enumerate(ops) if o == kc)
        A(f"s_waitcnt vmcnt({len(ops) - 1 - last})")
        A("s_barrier")
        if kc + NPRE < 9:
            Q.issue_x(A, kc + NPRE, 8, "sc1"); ops += [kc+NPRE]*4
        if kc == 4:
            ldst(); ops += ["s"]*2
    A("s_waitcnt vmcnt(0)")
    check_regs(A, [17,19,21,23])
    A(f"s_cbranch_scc1 {P}STOK")
    spin(A, P, "ST", ldst, lambda: check_regs(A, [17,19,21,23]))
    A.label(f"{P}STOK")
    A("v_add_f32 v16, v16, v20")
    A("v_add_f32 v18, v18, v22")
    for v in (16, 18):
        A(f"v_mov_b32 v20, v{v}")
        A("s_nop 1")
        A(f"v_permlane32_swap_b32 v{v}, v20")
        A("s_nop 1")
        A(f"v_add_f32 v{v}, v{v}, v20")
    stats_to_lds(A, 16, 18)
    A("s_barrier")
    A.label(f"{P}DONE")

def gen_mega(name="interleave_layers__softmax_full_mha__ssm_conv_h3__prompt_kernel", opt=("prio",)):
    A = Asm()
    A("s_cmp_ge_u32 s2, 256")
    A("s_cbranch_scc1 M_END")
    stamps.init(A)
    A("s_load_dwordx2 s[4:5], s[0:1], %d" % KA_X)
    A("s_load_dwordx2 s[6:7], s[0:1], %d" % KA_WS)
    A("v_lshrrev_b32 v2, 6, v0")
    A("v_and_b32 v1, 63, v0")
    A("v_readfirstlane_b32 s22, v2      ; wave")
    A("s_waitcnt lgkmcnt(0)")
    A(f"s_add_u32 s56, s6, {EPOCH}")
    A("s_addc_u32 s57, s7, 0")
    A(f"s_load_dword s{sTAG}, s[56:57], 0")
    srd(A, 12, 6, WS_USED)
    A(f"s_mov_b32 s{sLAYER}, 0")
    A("s_mov_b32 s62, 0")
    A("s_mov_b32 s63, 0")
    A("s_mov_b32 s64, 0")
    A("s_waitcnt lgkmcnt(0)")
    A(f"s_mul_i32 s{sTAG}, s{sTAG}, 0x9e3779b1")
    A(f"s_add_u32 s{sTAG}, s{sTAG}, 0x7f4a7c15")
    qkv1(A)
    A.label("M_ATT")
    A("s_and_b32 s20, s2, 7")
    A("s_lshr_b32 s21, s2, 3")
    A("s_lshl_b32 s20, s20, 2")
    A("s_and_b32 s23, s21, 3")
    A("s_add_u32 s20, s20, s23          ; head")
    A("s_lshr_b32 s21, s21, 2           ; qb")
    A("s_cmp_lg_u32 s22, 0")
    A("s_cbranch_scc1 M_F1W")
    A("s_lshr_b32 s34, s20, 1")
    A("s_lshl_b32 s34, s34, 8")
    A(f"s_lshl_b32 s35, s{sLAYER}, 12")
    A("s_add_u32 s34, s34, s35")
    A(f"s_add_u32 s34, s34, {F1}")
    A("v_and_b32 v1, 63, v0")
    A("v_lshlrev_b32 v2, 2, v1")
    poll_flags(A, "M_", "F1", 34, 2, 3)
    A.label("M_F1W")
    A("s_waitcnt lgkmcnt(0)")
    A("s_barrier")
    stamps.stamp(A, 5)
    def after_s0(A):
        A(f"s_cmp_lg_u32 s{sLAYER}, 0")
        A("s_cbranch_scc1 M_NFY")
        A("s_cmp_lg_u32 s22, 0")
        A("s_cbranch_scc1 M_NFY")
        A("s_lshl_b32 s36, s2, 2")
        A(f"s_add_u32 s36, s36, {FY}")
        set_flag(A, 36, 170)
        A.label("M_NFY")
    st = stamps.ENABLED; stamps.ENABLED = False
    AT.body(A, "AT_", opt, fused=True, hook_after_s0=after_s0)
    stamps.ENABLED = st
    stamps.stamp(A, 6)
    A("s_waitcnt vmcnt(0)")
    A("s_lshl_b32 s34, s25, 5")
    A("s_add_u32 s34, s34, s20")
    A("s_lshl_b32 s34, s34, 2")
    A(f"s_lshl_b32 s35, s{sLAYER}, 13")
    A("s_add_u32 s34, s34, s35")
    A(f"s_add_u32 s34, s34, {F2}")
    set_flag(A, 34, 170)
    A(f"s_cmp_lg_u32 s{sLAYER}, 0")
    A("s_cbranch_scc1 M_L1")
    A("v_and_b32 v1, 63, v0")
    A("v_lshlrev_b32 v2, 4, v1")
    A(f"s_mov_b32 s34, {FY}")
    poll_flags(A, "M_", "FY", 34, 2, 4, nd=4)
    srd(A, 8, 4, SZ_X)
    srd(A, 16, 6, X2_SZ, off=X2)
    A("s_branch M_L2")
    A.label("M_L1")
    A("s_load_dwordx2 s[4:5], s[0:1], %d" % KA_OUT)
    srd(A, 8, 6, X2_SZ, off=X2)
    A("s_waitcnt lgkmcnt(0)")
    srd(A, 16, 4, SZ_X)
    A.label("M_L2")
    opg_prefetch(A, "G_")
    A("s_cmp_lg_u32 s22, 0")
    A("s_cbranch_scc1 M_F2W")
    A("s_lshl_b32 s34, s20, 7")
    A(f"s_lshl_b32 s35, s{sLAYER}, 13")
    A("s_add_u32 s34, s34, s35")
    A(f"s_add_u32 s34, s34, {F2}")
    A("v_and_b32 v52, 31, v1")
    A("v_lshlrev_b32 v52, 2, v52")
    poll_flags(A, "M_", "F2", 34, 52, 53)
    A.label("M_F2W")
    A("s_barrier")
    stamps.stamp(A, 8)
    h = opg_main(A, "G_")
    A(f"s_cmp_lg_u32 s{sLAYER}, 0")
    A("s_cbranch_scc1 M_FIN")
    opg_publish(A, "G_", h)
    A("s_barrier")
    stamps.stamp(A, 7)
    qkv2(A)
    stamps.stamp(A, 13)
    A(f"s_mov_b32 s{sLAYER}, 1")
    A(f"s_mov_b32 s62, {KV_LSZ}")
    A(f"s_mov_b32 s63, {QM_SZ}")
    A(f"s_mov_b32 s64, {QE_SZ}")
    A("s_branch M_ATT")
    A.label("M_FIN")
    A("s_cmp_lg_u32 s2, 0")
    A("s_cbranch_scc1 M_FIN2")
    A("s_cmp_lg_u32 s22, 0")
    A("s_cbranch_scc1 M_FIN2")
    A(f"s_mov_b32 s34, {EPOCH}")
    set_flag(A, 34, 52)
    A.label("M_FIN2")
    A("s_waitcnt vmcnt(0)")
    stamps.flush(A, 0, 14, 22, vt=52)
    A.label("M_END")
    A("s_endpgm")
    txt = A.text().replace(" lds sc1", " sc1 lds")
    return kernel_header(name) + txt, kernel_desc(name, 256), "; @launch grid=(256,1,1) block=(512,1,1) lds=163840"
```

```python
from layout import *
import os
ENABLED = os.environ.get("STAMPS", "0") == "1"
STAMP_OFF = 32*1024*1024
def init(A, sT=90):
    if not ENABLED: return
    A(f"s_memrealtime s[{sT}:{sT+1}]")
    A(f"s_memtime s[{sT+2}:{sT+3}]")
def stamp(A, idx, sT=90):
    if not ENABLED: return
    A(f"s_memtime s[{sT+4}:{sT+5}]")
    A("s_waitcnt lgkmcnt(0)")
    A(f"s_mov_b32 s{70+idx}, s{sT+4}")
def flush(A, kidx, n, wave_sgpr, ws_lo=6, sT=90, vt=200):
    if not ENABLED: return
    A(f"s_memrealtime s[{sT+6}:{sT+7}]")
    A("s_waitcnt lgkmcnt(0)")
    A("s_mov_b64 exec, 1")
    A(f"s_add_u32 s{sT+8}, s{ws_lo}, {STAMP_OFF}")
    A(f"s_addc_u32 s{sT+9}, s{ws_lo+1}, 0")
    A(f"s_mov_b32 s84, s{sT+8}")
    A(f"s_mov_b32 s85, s{sT+9}")
    A("s_mov_b32 s86, 0x1000000")
    A("s_mov_b32 s87, 0x20000")
    A(f"s_lshl_b32 s88, s2, 4")
    A(f"s_add_u32 s88, s88, s{wave_sgpr}")
    A(f"s_lshl_b32 s88, s88, 6")
    A(f"s_add_u32 s88, s88, {kidx*1024*1024}")
    for i in range(n):
        A(f"s_sub_u32 s89, s{70+i}, s{sT+2}")
        A(f"v_mov_b32 v{vt}, s89")
        A(f"v_mov_b32 v{vt+1}, {4*i}")
        A(f"buffer_store_dword v{vt}, v{vt+1}, s[84:87], s88 offen")
        A("s_nop 1")
    for j, r in enumerate((sT, sT+6)):
        A(f"v_mov_b32 v{vt}, s{r}")
        A(f"v_mov_b32 v{vt+1}, {4*(14+j)}")
        A(f"buffer_store_dword v{vt}, v{vt+1}, s[84:87], s88 offen")
        A("s_nop 1")
    A("s_waitcnt vmcnt(0)")
```

```python
import sys
sys.path.insert(0, "gen")
from build import build
import k_prep, k_conv
which = sys.argv[1].split(",")
out = sys.argv[2]
ks = {}; ls = []
def add(t):
    c,d,l = t
    name = l.split("kernel=")[1].split()[0]
    if name not in ks: ks[name] = (c,d)
    ls.append(l)
for w in which:
    if w == "prep": add(k_prep.gen_prep())
    elif w == "conv": add(k_conv.gen_conv())
    elif w.startswith("qkv"):
        import k_qkv3; add(k_qkv3.gen_qkv(int(w[3]), opt=tuple(w.split("+")[1:])))
    elif w.startswith("att"):
        import k_att2; add(k_att2.gen_att(opt=tuple(w.split("+")[1:])))
    elif w == "opg0":
        import k_opg; add(k_opg.gen_opg(0))
    elif w == "opg1":
        import k_opg; add(k_opg.gen_opg(1))
    elif w.startswith("mega"):
        import mega
        c,d,l = mega.gen_mega(opt=tuple(["prio"]+w.split("+")[1:]))
        ks["mega"] = (c,d); ls.append(l)
    else: raise SystemExit("unknown "+w)
open(out,"w").write(build(list(ks.values()), ls))
print("wrote", out)
```

```python
from asmlib import *
from layout import *
import stamps
import struct
def f2u(x): return struct.unpack("<I", struct.pack("<f", x))[0]

OPT = ()
XL = 147456
L_MU = 0
L_RS = 512
L_TV = 1024
L_CS = 2048
XB = 2560
LDS_QKV = XB + XL

V_F = 2
WF = 8
ACC = 152
XF = [216, 232]
V_L16, V_R, V_G = 248, 249, 250
T = 251
V_X0, V_X1 = 8, 9

def lane_consts(A):
    A(f"v_lshlrev_b32 v{V_L16}, 4, v1")
    A(f"v_and_b32 v{V_R}, 31, v1")
    A(f"v_lshrrev_b32 v{V_G}, 5, v1")

def setup_scalars(A):
    A("s_and_b32 s25, s22, 3")
    A("s_mul_i32 s26, s23, %d" % (128*1152))
    A("s_lshl_b32 s28, s24, 2")
    A("s_add_u32 s28, s28, s25")
    A("s_mul_i32 s28, s28, %d" % (36*1024))
    if WP: A(f"s_add_u32 s28, s28, {WP}")
    A("s_lshl_b32 s29, s25, 12")
    if ROT:
        A("s_and_b32 s27, s24, 7")
        A("s_and_b32 s30, s23, 3")
        A("s_lshl_b32 s30, s30, 1")
        A("s_add_u32 s27, s27, s30")
        A("s_sub_u32 s30, s27, 9")
        A("s_cmp_ge_u32 s27, 9")
        A("s_cselect_b32 s27, s30, s27")

def helper_voffsets(A):
    A(f"v_lshrrev_b32 v{T}, 3, v1")
    A("s_lshl_b32 s30, s25, 5")
    A(f"v_add_u32 v{T}, s30, v{T}")
    A(f"v_mul_u32_u24 v{T}, 1152, v{T}")
    A(f"v_lshrrev_b32 v{T+1}, 4, v1")
    A(f"v_and_b32 v{T+2}, 7, v1")
    A(f"v_xor_b32 v{T+2}, v{T+2}, v{T+1}")
    A(f"v_lshl_add_u32 v{V_X0}, v{T+2}, 4, v{T}")
    A(f"v_xor_b32 v{T+2}, 4, v{T+2}")
    A(f"v_lshl_add_u32 v{V_X1}, v{T+2}, 4, v{T}")

HOOK_EPI = None
ROT = False
def phys_chunk(A, kc, sd):
    A(f"s_add_u32 s{sd}, s27, {kc}")
    A(f"s_sub_u32 s33, s{sd}, 9")
    A(f"s_cmp_ge_u32 s{sd}, 9")
    A(f"s_cselect_b32 s{sd}, s33, s{sd}")

def issue_x(A, kc, srdx, flags=""):
    if ROT:
        phys_chunk(A, kc, 32)
        A("s_lshl_b32 s32, s32, 7")
        A("s_add_u32 s32, s32, s26")
    for i in range(4):
        A(f"s_add_u32 m0, s29, {XB + kc*16384 + i*1024}")
        if ROT: A(f"s_add_u32 s31, s32, {8*i*1152}")
        else:   A(f"s_add_u32 s31, s26, {8*i*1152 + kc*128}")
        A(f"buffer_load_dwordx4 v{V_X0 if i % 2 == 0 else V_X1}, s[{srdx}:{srdx+3}], s31 offen lds {flags}")

def issue_w1(A, i, flags=""):
    if i % 4 == 0:
        if ROT:
            phys_chunk(A, i//4, 31)
            A("s_lshl_b32 s31, s31, 12")
            A("s_add_u32 s31, s31, s28")
        else:
            A(f"s_add_u32 s31, s28, {(i//4)*4096}")
    A(f"buffer_load_dwordx4 v[{WF+4*i}:{WF+4*i+3}], v{V_L16}, s[12:15], s31 offen offset:{(i%4)*1024} {flags}")

def issue_w(A, n=36, flags="", cap=0):
    for i in range(n):
        if cap and i >= cap: A(f"s_waitcnt vmcnt({cap-1})")
        issue_w1(A, i, flags)

def frag_addrs(A):
    A(f"v_bfe_u32 v{T}, v{V_R}, 1, 3        ; sw2")
    for kk in range(4):
        A(f"v_add_u32 v{T+1}, {2*kk}, v{V_G}")
        A(f"v_xor_b32 v{T+1}, v{T+1}, v{T}")
        A(f"v_lshlrev_b32 v{T+1}, 4, v{T+1}")
        A(f"v_lshl_add_u32 v{V_F+kk}, v{V_R}, 7, v{T+1}")
        A(f"v_add_u32 v{V_F+kk}, {XB}, v{V_F+kk}")

def helper_colsum_issue(A, CSb, flags=""):
    A("s_lshl_b32 s30, s24, 2")
    A("s_add_u32 s30, s30, s25")
    A("s_lshl_b32 s30, s30, 9")
    A(f"s_add_u32 s30, s30, {CSb}")
    A(f"v_lshlrev_b32 v28, 2, v{V_R}")
    for q in range(4):
        A(f"buffer_load_dword v{24+q}, v28, s[12:15], s30 offen offset:{128*q} {flags}")

def helper_main(A, P, npre, srdx, xflags="", extra=0):
    frag_addrs(A)
    A("s_lshl_b32 s30, s25, 12")
    for kk in range(4): A(f"v_add_u32 v{V_F+kk}, s30, v{V_F+kk}")
    a1, a2 = 16, 20
    for i in range(8): A(f"v_mov_b32 v{16+i}, 0")
    A("s_mov_b32 s33, 0x3f803f80")
    for kc in range(9):
        issued = min(9, kc + npre)
        A(f"s_waitcnt vmcnt({4*(issued - kc - 1)})")
        A("s_barrier")
        if kc + npre < 9: issue_x(A, kc + npre, srdx, xflags)
        if kc and kc % 4 == 0:
            for q in range(4): A(f"v_add_u32 v{V_F+q}, 0x10000, v{V_F+q}")
        for kk in range(4):
            A(f"ds_read_b128 v[{32+4*kk}:{35+4*kk}], v{V_F+kk} offset:{(kc%4)*16384}")
        for kk in range(4):
            A(f"s_waitcnt lgkmcnt({3-kk})")
            if "nostat" in OPT: continue
            for r in range(4):
                d = 32+4*kk+r
                A(f"v_lshlrev_b32 v{48+2*r}, 16, v{d}")
                A(f"v_and_b32 v{49+2*r}, 0xffff0000, v{d}")
            if "pk" in OPT:
                for r in range(4):
                    A(f"v_pk_add_f32 v[{a1+2*(r&1)}:{a1+2*(r&1)+1}], v[{a1+2*(r&1)}:{a1+2*(r&1)+1}], v[{48+2*r}:{49+2*r}]")
                    A(f"v_pk_fma_f32 v[{a2+2*(r&1)}:{a2+2*(r&1)+1}], v[{48+2*r}:{49+2*r}], v[{48+2*r}:{49+2*r}], v[{a2+2*(r&1)}:{a2+2*(r&1)+1}]")
            else:
                for r in range(4):
                    A(f"v_add_f32 v{a1+(2*r)%4}, v{a1+(2*r)%4}, v{48+2*r}")
                    A(f"v_add_f32 v{a1+(2*r+1)%4}, v{a1+(2*r+1)%4}, v{49+2*r}")
                    A(f"v_fmac_f32 v{a2+(2*r)%4}, v{48+2*r}, v{48+2*r}")
                    A(f"v_fmac_f32 v{a2+(2*r+1)%4}, v{49+2*r}, v{49+2*r}")
    A("s_nop 2")
    for a in (a1, a2):
        A(f"v_add_f32 v{a}, v{a}, v{a+1}")
        A(f"v_add_f32 v{a+2}, v{a+2}, v{a+3}")
        A(f"v_add_f32 v{a}, v{a}, v{a+2}")
        A(f"v_mov_b32 v{T}, v{a}")
        A("s_nop 1")
        A(f"v_permlane32_swap_b32 v{a}, v{T}")
        A("s_nop 1")
        A(f"v_add_f32 v{a}, v{a}, v{T}")
    A(f"v_mul_f32 v{a1}, {hex(f2u(1.0/576))}, v{a1}      ; mu")
    A(f"v_mul_f32 v{a2}, {hex(f2u(1.0/576))}, v{a2}")
    A(f"v_fma_f32 v{a2}, -v{a1}, v{a1}, v{a2}")
    A(f"v_max_f32 v{a2}, 0, v{a2}")
    A(f"v_add_f32 v{a2}, {hex(f2u(1e-5))}, v{a2}")
    A(f"v_rsq_f32 v{a2}, v{a2}")
    A("s_lshl_b32 s30, s25, 7")
    A(f"v_lshl_add_u32 v{T}, v{V_R}, 2, s30")
    A(f"ds_write_b32 v{T}, v{a1} offset:{L_MU}")
    A(f"ds_write_b32 v{T}, v{a2} offset:{L_RS}")
    A("v_add_f32 v24, v24, v25")
    A("v_add_f32 v26, v26, v27")
    A("v_add_f32 v24, v24, v26")
    A(f"ds_write_b32 v{T}, v24 offset:{L_CS}")
    A("s_waitcnt lgkmcnt(0)")
    A("s_barrier")

def consumer_main(A, P, swap, npre_w, wflags="", chunk_barriers=True):
    def read1(ks, rt):
        kc, kk = ks >> 2, ks & 3
        st = ks & 1
        A(f"ds_read_b128 v[{XF[st]+4*rt}:{XF[st]+4*rt+3}], v{V_F+kk} offset:{(kc%4)*16384 + rt*4096}")
    A("s_barrier")
    stamps.stamp(A, 1)
    for rt in range(4): read1(0, rt)
    for ks in range(36):
        st = ks & 1
        w = WF+4*ks
        issued = min(36, ks + npre_w)
        for rt in range(4):
            if rt == 0: A(f"s_waitcnt vmcnt({issued - ks - 1}) lgkmcnt(3)") if issued - ks - 1 < 63 else A("s_waitcnt lgkmcnt(3)")
            else: A(f"s_waitcnt lgkmcnt({3 if ks < 35 else 3 - rt})")
            x = XF[st]+4*rt; d = ACC+16*rt
            if swap: A(f"v_mfma_f32_32x32x16_bf16 v[{d}:{d+15}], v[{x}:{x+3}], v[{w}:{w+3}], v[{d}:{d+15}]")
            else:    A(f"v_mfma_f32_32x32x16_bf16 v[{d}:{d+15}], v[{w}:{w+3}], v[{x}:{x+3}], v[{d}:{d+15}]")
            if ks < 35:
                if rt == 0 and (ks+1) % 4 == 0:
                    if chunk_barriers: A("s_barrier")
                    kc = (ks+1) >> 2
                    if kc % 4 == 0:
                        for q in range(4): A(f"v_add_u32 v{V_F+q}, 0x10000, v{V_F+q}")
                read1(ks+1, rt)
            if rt == 1 and ks + npre_w < 36: issue_w1(A, ks + npre_w, wflags)
    A("s_barrier")

def epilogue(A, P, QMb, QEb, KVb, st_flags=""):
    CS = WF
    MU, RS = 72, 76
    TT = 80
    A("s_lshl_b32 s30, s25, 7")
    A(f"v_lshl_add_u32 v{TT}, v{V_G}, 4, s30")
    A(f"v_lshlrev_b32 v{TT+1}, 2, v{V_R}")
    A(f"v_add_u32 v{TT+2}, s30, v{TT+1}")
    for j in range(4):
        A(f"ds_read_b128 v[{CS+4*j}:{CS+4*j+3}], v{TT} offset:{L_CS+32*j}")
    A(f"ds_read_b32 v{TT+4}, v{TT+2} offset:{L_CS}")
    for rt in range(4):
        A(f"ds_read_b32 v{MU+rt}, v{TT+1} offset:{L_MU+128*rt}")
        A(f"ds_read_b32 v{RS+rt}, v{TT+1} offset:{L_RS+128*rt}")
    A("s_lshr_b32 s35, s23, 1")
    A(f"s_mul_i32 s35, s35, {KV_CHUNK}")
    A(f"s_mul_i32 s38, s24, {2*KV_HEAD}")
    A("s_add_u32 s38, s38, s35")
    A(f"s_add_u32 s38, s38, {KVb}")
    A("s_and_b32 s36, s23, 1")
    A("s_lshl_b32 s37, s36, 2")
    A(f"s_mul_i32 s39, s37, {KV_TILE}")
    A("s_add_u32 s39, s39, s38")
    A("s_waitcnt lgkmcnt(0)")
    A("s_cmp_eq_u32 s25, 2")
    A(f"s_cbranch_scc1 {P}E2")
    A("s_cmp_eq_u32 s25, 3")
    A(f"s_cbranch_scc1 {P}E3")
    A("s_lshl_b32 s40, s24, 17")
    A("s_lshl_b32 s41, s23, 12")
    A("s_add_u32 s40, s40, s41")
    A(f"s_add_u32 s40, s40, {QMb}")
    A("s_add_u32 s41, s39, 1024")
    A("s_cmp_eq_u32 s25, 0")
    A(f"s_cselect_b32 s42, {hex(f2u(QSCALE))}, 1.0")
    A("s_cselect_b32 s43, s40, s41")
    A(f"s_mov_b32 s40, {KV_TILE}")
    A("s_cselect_b32 s44, 1024, s40")
    A(f"s_mov_b32 s40, {KV_HEAD}")
    A("s_cselect_b32 s45, 65536, s40")
    for rt in range(4):
        a = ACC+16*rt
        A(f"v_mul_f32 v{TT}, s42, v{RS+rt}")
        for r in range(16): A(f"v_fma_f32 v{a+r}, -v{MU+rt}, v{CS+r}, v{a+r}")
        for r in range(16): A(f"v_mul_f32 v{a+r}, v{TT}, v{a+r}")
        for hh in range(2):
            t = 96+8*rt+4*hh
            for j in range(4): A(f"v_cvt_pk_bf16_f32 v{t+j}, v{a+8*hh+2*j}, v{a+8*hh+2*j+1}")
            if hh == 0: A(f"s_mov_b32 s46, s43")
            else: A("s_add_u32 s46, s43, s45")
            A(f"buffer_store_dwordx4 v[{t}:{t+3}], v{V_L16}, s[12:15], s46 offen {st_flags}")
        A("s_add_u32 s43, s43, s44")
    A(f"s_branch {P}FIN")
    A.label(f"{P}E3")
    A(f"v_cmp_eq_u32 vcc, 0, v{V_G}")
    A("s_lshl_b32 s40, s24, 14")
    A("s_lshl_b32 s41, s23, 9")
    A("s_add_u32 s40, s40, s41")
    A(f"s_add_u32 s40, s40, {QEb}")
    A("s_lshl_b32 s41, s36, 9")
    A("s_add_u32 s41, s41, s38")
    A(f"v_mov_b32 v{TT}, {hex(f2u(QSCALE))}")
    A(f"v_mov_b32 v{TT+1}, s41")
    A(f"v_mov_b32 v{TT+2}, s40")
    A(f"v_mov_b32 v{TT+3}, {KV_HEAD}")
    A(f"v_mov_b32 v{TT+5}, 8192")
    A(f"v_cndmask_b32 v{TT}, 1.0, v{TT}, vcc")
    A(f"v_cndmask_b32 v{TT+1}, v{TT+1}, v{TT+2}, vcc")
    A(f"v_cndmask_b32 v{TT+3}, v{TT+3}, v{TT+5}, vcc")
    A(f"v_lshl_add_u32 v{TT+1}, v{V_R}, 2, v{TT+1}")
    A(f"v_add_u32 v{TT+2}, v{TT+1}, v{TT+3}")
    A(f"v_bfe_u32 v{TT+5}, v{V_R}, 2, 1")
    A(f"v_bfe_u32 v{TT+6}, v{V_R}, 3, 1")
    A(f"v_and_b32 v{TT+7}, 0x13, v{V_R}")
    A(f"v_lshl_add_u32 v{TT+7}, v{TT+5}, 3, v{TT+7}")
    A(f"v_lshl_add_u32 v{TT+7}, v{TT+6}, 2, v{TT+7}")
    A(f"v_lshlrev_b32 v{TT+7}, 1, v{TT+7}")
    for rt in range(4):
        a = ACC+16*rt
        for r in range(8): A(f"v_fma_f32 v{a+r}, -v{MU+rt}, v{CS+r}, v{a+r}")
        A(f"v_mul_f32 v{TT+8}, v{TT}, v{RS+rt}")
        for r in range(4): A(f"v_mul_f32 v{a+r}, v{TT+8}, v{a+r}")
        for r in range(4,8): A(f"v_mul_f32 v{a+r}, v{RS+rt}, v{a+r}")
        t = 96+4*rt
        for j in range(4): A(f"v_cvt_pk_bf16_f32 v{t+j}, v{a+2*j}, v{a+2*j+1}")
        A(f"buffer_store_dword v{t}, v{TT+1}, s[12:15], 0 offen offset:{rt*128} {st_flags}")
        A(f"buffer_store_dword v{t+1}, v{TT+2}, s[12:15], 0 offen offset:{rt*128} {st_flags}")
        A("s_mov_b32 exec_hi, 0")
        A(f"ds_write_b16 v{TT+7}, v{t+2} offset:{L_TV+rt*64}")
        A(f"ds_write_b16_d16_hi v{TT+7}, v{t+2} offset:{L_TV+256+rt*64}")
        A(f"ds_write_b16 v{TT+7}, v{t+3} offset:{L_TV+512+rt*64}")
        A(f"ds_write_b16_d16_hi v{TT+7}, v{t+3} offset:{L_TV+768+rt*64}")
        A("s_mov_b32 exec_hi, -1")
    A("s_waitcnt lgkmcnt(0)")
    A(f"ds_read_b128 v[112:115], v{V_L16} offset:{L_TV}")
    A(f"v_lshrrev_b32 v{TT+5}, 5, v1")
    A(f"v_mul_u32_u24 v{TT+5}, {KV_HEAD}, v{TT+5}")
    A(f"v_bfe_u32 v{TT+6}, v1, 2, 2")
    A(f"v_mul_u32_u24 v{TT+6}, {KV_TILE}, v{TT+6}")
    A(f"v_add_u32 v{TT+5}, v{TT+5}, v{TT+6}")
    A(f"v_bfe_u32 v{TT+6}, v1, 1, 1")
    A(f"v_mul_u32_u24 v{TT+6}, 640, v{TT+6}")
    A(f"v_add_u32 v{TT+5}, v{TT+5}, v{TT+6}")
    A(f"v_and_b32 v{TT+6}, 1, v1")
    A(f"v_mul_u32_u24 v{TT+6}, 320, v{TT+6}")
    A(f"v_add_u32 v{TT+5}, v{TT+5}, v{TT+6}")
    A(f"v_bfe_u32 v{TT+6}, v1, 4, 1")
    A(f"v_lshl_add_u32 v{TT+5}, v{TT+6}, 4, v{TT+5}")
    A(f"s_add_u32 s41, s39, {2048 + 16*16}")
    A(f"v_cmp_eq_u32 vcc, 0, v{TT+6}")
    A(f"v_mov_b32 v{TT+7}, 0x3f803f80")
    A("s_waitcnt lgkmcnt(0)")
    A(f"buffer_store_dwordx4 v[112:115], v{TT+5}, s[12:15], s41 offen {st_flags}")
    for j in range(4): A(f"v_cndmask_b32 v{116+j}, 0, v{TT+7}, vcc")
    A(f"buffer_store_dwordx4 v[116:119], v{TT+5}, s[12:15], s41 offen offset:32 {st_flags}")
    A(f"s_branch {P}FIN")
    A.label(f"{P}E2")
    A(f"v_lshlrev_b32 v{TT}, 4, v{V_G}")
    A(f"v_lshrrev_b32 v{TT+1}, 4, v{V_R}")
    A(f"v_mul_u32_u24 v{TT+1}, {KV_HEAD}, v{TT+1}")
    A(f"v_mul_u32_u24 v{TT+2}, 320, v{V_G}")
    A(f"v_and_b32 v{TT+3}, 15, v{V_R}")
    A(f"v_lshl_add_u32 v{TT+2}, v{TT+3}, 4, v{TT+2}")
    A(f"v_add_u32 v{TT+1}, v{TT+1}, v{TT+2}")
    M0_, R0_ = [8, 40], [24, 56]
    def rd(rt):
        s_ = rt & 1
        for j in range(4):
            A(f"ds_read_b128 v[{M0_[s_]+4*j}:{M0_[s_]+4*j+3}], v{TT} offset:{L_MU+rt*128+32*j}")
            A(f"ds_read_b128 v[{R0_[s_]+4*j}:{R0_[s_]+4*j+3}], v{TT} offset:{L_RS+rt*128+32*j}")
    rd(0)
    for rt in range(4):
        if rt < 3:
            rd(rt+1)
            A("s_waitcnt lgkmcnt(8)")
        else:
            A("s_waitcnt lgkmcnt(0)")
        a = ACC+16*rt; m = M0_[rt & 1]; rs = R0_[rt & 1]
        for r in range(16): A(f"v_fma_f32 v{a+r}, -v{m+r}, v{TT+4}, v{a+r}")
        for r in range(16): A(f"v_mul_f32 v{a+r}, v{rs+r}, v{a+r}")
        for hh in range(2):
            t = 96+8*rt+4*hh
            for j in range(4): A(f"v_cvt_pk_bf16_f32 v{t+j}, v{a+8*hh+2*j}, v{a+8*hh+2*j+1}")
            A(f"s_add_u32 s46, s39, {2048 + rt*KV_TILE + hh*640}")
            A(f"buffer_store_dwordx4 v[{t}:{t+3}], v{TT+1}, s[12:15], s46 offen {st_flags}")
    A.label(f"{P}FIN")

def decode_id(A):
    A("s_and_b32 s20, s2, 7")
    A("s_lshr_b32 s21, s2, 3")
    A("s_lshr_b32 s23, s20, 1")
    A("s_lshl_b32 s23, s23, 2")
    A("s_lshr_b32 s24, s21, 3")
    A("s_add_u32 s23, s23, s24          ; rb")
    A("s_and_b32 s24, s20, 1")
    A("s_lshl_b32 s24, s24, 3")
    A("s_and_b32 s25, s21, 7")
    A("s_add_u32 s24, s24, s25          ; cg")

def consumer(A, P, QMb, QEb, KVb, sf="", npre_w=36, wflags="", chunk_barriers=True):
    frag_addrs(A)
    if "noprio" not in OPT: A("s_setprio 2")
    for i in range(64): A(f"v_mov_b32 v{ACC+i}, 0")
    A("s_cmp_eq_u32 s25, 2")
    A(f"s_cbranch_scc1 {P}KSW")
    consumer_main(A, P, False, npre_w, wflags, chunk_barriers)
    A(f"s_branch {P}EPI")
    A.label(f"{P}KSW")
    consumer_main(A, P, True, npre_w, wflags, chunk_barriers)
    A.label(f"{P}EPI")
    if HOOK_EPI: HOOK_EPI(A)
    A("s_setprio 0")
    stamps.stamp(A, 2)
    epilogue(A, P, QMb, QEb, KVb, sf)

def gen_qkv(layer, opt=()):
    global OPT
    OPT = opt
    name = f"qkv{layer}_kernel"
    P = f"Q{layer}_"
    A = Asm()
    A("s_cmp_ge_u32 s2, 256")
    A(f"s_cbranch_scc1 {P}END")
    stamps.init(A)
    if layer == 0: A("s_load_dwordx2 s[4:5], s[0:1], %d" % KA_X)
    A("s_load_dwordx2 s[6:7], s[0:1], %d" % KA_WS)
    A("v_lshrrev_b32 v2, 6, v0")
    A("v_and_b32 v1, 63, v0")
    A("v_readfirstlane_b32 s22, v2")
    decode_id(A)
    A("s_nop 1")
    setup_scalars(A)
    lane_consts(A)
    A("s_waitcnt lgkmcnt(0)")
    if layer == 0: srd(A, 8, 4, SZ_X)
    else: srd(A, 8, 6, X2_SZ, off=X2)
    srd(A, 12, 6, WS_USED)
    sf = "sc1" if "wt" in opt else ""
    A("s_cmp_ge_u32 s22, 4")
    A(f"s_cbranch_scc1 {P}HELP")
    NW, NX = 8, 3
    for o in opt:
        if o.startswith("w"):
            if o[1:].isdigit(): NW = int(o[1:])
        if o.startswith("x"): NX = int(o[1:])
    issue_w(A, NW)
    stamps.stamp(A, 0)
    consumer(A, P, QM, QE, KV, sf, npre_w=NW)
    A(f"s_branch {P}DONE")
    A.label(f"{P}HELP")
    helper_voffsets(A)
    helper_colsum_issue(A, CS4)
    for kc in range(NX): issue_x(A, kc, 8)
    stamps.stamp(A, 0); stamps.stamp(A, 1)
    helper_main(A, P, NX, 8)
    stamps.stamp(A, 2)
    A.label(f"{P}DONE")
    A("s_waitcnt vmcnt(0)")
    stamps.stamp(A, 3)
    stamps.flush(A, 2 if layer == 0 else 5, 4, 22, vt=80)
    A.label(f"{P}END")
    A("s_endpgm")
    return kernel_header(name) + A.text(), kernel_desc(name, 256), f"; @launch kernel={name} grid=(256,1,1) block=(512,1,1) lds={LDS_QKV}"
```

```python
S = 2048; D = 576; H = 32; DH = 18
KA_X, KA_WQKV, KA_WO, KA_BQ, KA_BK, KA_BV, KA_SHIFT, KA_SSMK, KA_SSMD, KA_OUT, KA_DBG, KA_WS = [8*i for i in range(12)]
SZ_X = S*D*2
SZ_WQKV = D*3*D*2
SZ_WO = D*D*2
SZ_SHIFT = D*4*2
SZ_SSMK = D*S*2
SZ_SSMD = D*2

def _al(x, a=4096): return (x + a - 1)//a*a
_off = 0
def _alloc(n):
    global _off
    o = _off
    _off = _al(_off + n)
    return o
WP_SZ  = 16*4*36*1024;  WP  = _alloc(WP_SZ)
CS_SZ  = 16*4*32*4;     CS  = _alloc(CS_SZ)
CS4_SZ = 16*4*16*32*4;  CS4 = _alloc(CS4_SZ)
WOP_SZ = 4*9*18*1024;   WOP = _alloc(WOP_SZ)
ST0_SZ = 2048*16;       ST0 = _alloc(max(ST0_SZ, 65536))
ST1_SZ = 2048*4*16;     ST1 = _alloc(ST1_SZ)
ST_SZ = 65536
XR_SZ  = D*S*2;         XR  = _alloc(XR_SZ)
YT_SZ  = D*S*2;         YT  = _alloc(YT_SZ)
QM_SZ  = H*S*32;        QM  = _alloc(2*QM_SZ)
QE_SZ  = H*S*4;         QE  = _alloc(2*QE_SZ)
KV_TILE = 2304; KV_CHUNK = 1024 + 8*KV_TILE; KV_HEAD = 8*KV_CHUNK
KV_SZ  = H*KV_HEAD;     KV_LSZ = KV_SZ + 8192;  KV  = _alloc(2*KV_LSZ)
OM_SZ  = H*S*32;        OM  = _alloc(2*OM_SZ)
OE_SZ  = 8*S*16;        OE  = _alloc(2*OE_SZ)
X2_SZ  = S*D*2;         X2  = _alloc(X2_SZ)
EX_SZ  = 64*4*32*16;    EX0 = _alloc(EX_SZ); EX1 = _alloc(EX_SZ)
FS = 128
F0 = _alloc(16*64*FS)
FT = _alloc(36*32*FS)
F1 = _alloc(2*16*64*FS)
F2 = _alloc(2*64*32*FS)
F3 = _alloc(16*16*FS)
EPOCH = _alloc(4096)
WS_USED = _off
WS_SIZE = 268435456
QSCALE = (DH ** -0.5) * 1.4426950408889634
if __name__ == "__main__":
    for k,v in list(globals().items()):
        if k.isupper(): print(k, v, hex(v) if isinstance(v,int) else "")
```

```python
from asmlib import *
from layout import *
import stamps as stamps_old, stamps2 as stamps, struct
stamps_old.ENABLED = False
import k_qkv3 as Q
import os
ROT1 = os.environ.get('ROT1','1')=='1'
ROT2 = os.environ.get('ROT2','1')=='1'
ROTO = os.environ.get('ROTO','1')=='1'
import k_att2 as AT
def f2u(x): return struct.unpack("<I", struct.pack("<f", x))[0]

OOB = 0x40000000
SPIN_MAX = 1 << 20
sTAG, sLAYER = 60, 61
FY = EPOCH + 1024

def spin(A, P, name, load, check, cnt=58):
    A(f"s_mov_b32 s{cnt}, 0")
    A.label(f"{P}{name}")
    load()
    A("s_waitcnt vmcnt(0)")
    check()
    A(f"s_cbranch_scc1 {P}{name}_OK")
    if SLEEP: A(f"s_sleep {SLEEP}")
    A(f"s_add_u32 s{cnt}, s{cnt}, 1")
    A(f"s_cmp_lt_u32 s{cnt}, {SPIN_MAX}")
    A(f"s_cbranch_scc1 {P}{name}")
    A.label(f"{P}{name}_OK")

def check_regs(A, regs):
    A(f"v_cmp_eq_u32 vcc, s{sTAG}, v{regs[0]}")
    for i, r in enumerate(regs[1:]):
        A(f"v_cmp_eq_u32 s[56:57], s{sTAG}, v{r}")
        A("s_nop 1")
        A("s_and_b64 vcc, vcc, s[56:57]")
    A("s_nop 1")
    A("s_cmp_eq_u64 vcc, -1")

def poll_flags(A, P, name, soff, vaddr, vdst, nd=1):
    ld = {1:"buffer_load_dword", 2:"buffer_load_dwordx2", 4:"buffer_load_dwordx4"}[nd]
    dst = f"v{vdst}" if nd == 1 else f"v[{vdst}:{vdst+nd-1}]"
    spin(A, P, name, lambda: A(f"{ld} {dst}, v{vaddr}, s[12:15], s{soff} offen sc1"),
         lambda: check_regs(A, list(range(vdst, vdst+nd))))

def set_flag(A, soff, vt):
    A(f"v_mov_b32 v{vt}, s{sTAG}")
    A(f"v_mov_b32 v{vt+1}, 0")
    A("s_mov_b64 exec, 1")
    A(f"buffer_store_dword v{vt}, v{vt+1}, s[12:15], s{soff} offen sc1")
    A("s_mov_b64 exec, -1")

def wpack(A, P, after_gathers=None):
    A("s_lshr_b32 s20, s2, 4            ; cg'")
    A("s_bfe_u32 s21, s2, 0x20002       ; t'")
    A("s_and_b32 s23, s2, 3             ; quarter")
    A("v_and_b32 v3, 31, v1             ; f")
    A("v_lshrrev_b32 v4, 5, v1          ; g")
    A("s_mul_i32 s24, s20, 36           ; a*18")
    A("v_lshrrev_b32 v5, 4, v3")
    A("v_mul_u32_u24 v5, 18, v5")
    A("s_cmp_eq_u32 s21, 3")
    A(f"s_cbranch_scc1 {P}T3")
    A("s_cmp_eq_u32 s21, 2")
    A(f"s_cbranch_scc1 {P}T2")
    A("v_bfe_u32 v6, v3, 2, 1")
    A("v_lshlrev_b32 v6, 3, v6")
    A("v_bfe_u32 v7, v3, 3, 1")
    A("v_lshl_add_u32 v6, v7, 2, v6")
    A("v_and_b32 v7, 3, v3")
    A("v_add3_u32 v6, v6, v7, v5")
    A("s_mul_i32 s25, s21, 576")
    A("s_add_u32 s25, s25, s24")
    A("v_add_u32 v6, s25, v6")
    A("v_lshlrev_b32 v6, 1, v6")
    A(f"s_branch {P}D")
    A.label(f"{P}T2")
    A("v_and_b32 v6, 15, v3")
    A("v_add_u32 v6, v6, v5")
    A("s_add_u32 s25, s24, 1152")
    A("v_add_u32 v6, s25, v6")
    A("v_lshlrev_b32 v6, 1, v6")
    A(f"s_branch {P}D")
    A.label(f"{P}T3")
    A("v_lshrrev_b32 v6, 2, v3")
    A("v_mul_u32_u24 v6, 576, v6")
    A("v_bfe_u32 v7, v3, 1, 1")
    A("v_mul_u32_u24 v7, 18, v7")
    A("v_and_b32 v8, 1, v3")
    A("v_add3_u32 v6, v6, v7, v8")
    A("s_add_u32 s25, s24, 16")
    A("v_add_u32 v6, s25, v6")
    A("v_lshlrev_b32 v6, 1, v6")
    A("v_cmp_gt_u32 vcc, 12, v3")
    A(f"v_mov_b32 v7, {hex(OOB)}")
    A("s_nop 0")
    A("v_cndmask_b32 v6, v7, v6, vcc")
    A.label(f"{P}D")
    A("v_mul_u32_u24 v7, 27648, v4")
    A("v_add_u32 v6, v6, v7")
    A("s_lshl_b32 s25, s22, 1")
    A("s_add_u32 s25, s25, 1")
    A("s_cmp_eq_u32 s22, 0")
    A("s_cselect_b32 s25, 0, s25")
    A("s_mul_i32 s26, s23, 9")
    A("s_add_u32 s25, s25, s26          ; ks0")
    A("s_mul_i32 s26, s25, %d" % (16*3456))
    def loads(j):
        for i in range(8):
            A(f"s_add_u32 s27, s26, {(16*j+i)*3456}")
            A(f"buffer_load_ushort v{16+8*j+i}, v6, s[8:11], s27 offen")
    loads(0); loads(1)
    A("s_cmp_lg_u32 s22, 0")
    A(f"s_cbranch_scc1 {P}L2")
    loads(2)
    A.label(f"{P}L2")
    if after_gathers: after_gathers()

    A("s_lshl_b32 s27, s20, 2")
    A("s_add_u32 s27, s27, s21")
    A("s_mul_i32 s28, s27, 36")
    A("s_add_u32 s28, s28, s25")
    A("s_lshl_b32 s28, s28, 10")
    if WP: A(f"s_add_u32 s28, s28, {WP}")
    A("v_lshlrev_b32 v9, 4, v1")
    A("v_mov_b32 v10, 0")
    A("s_mov_b32 s29, 0x3f803f80")
    A("s_waitcnt vmcnt(20)")
    def pack(j):
        b = 16+8*j; d = 48+4*j
        for q in range(4): A(f"v_lshl_or_b32 v{d+q}, v{b+2*q+1}, 16, v{b+2*q}")
        A(f"buffer_store_dwordx4 v[{d}:{d+3}], v9, s[12:15], s28 offen offset:{1024*j} sc1")
        for q in range(4): A(f"v_dot2_f32_bf16 v10, v{d+q}, s29, v10")
    pack(0); pack(1)
    A("s_cmp_lg_u32 s22, 0")
    A(f"s_cbranch_scc1 {P}P2")
    pack(2)
    A.label(f"{P}P2")
    A("s_nop 2")
    A("v_mov_b32 v11, v10")
    A("s_nop 1")
    A("v_permlane32_swap_b32 v10, v11")
    A("s_nop 1")
    A("v_add_f32 v10, v10, v11")
    A("s_lshl_b32 s28, s27, 4")
    A("s_lshl_b32 s29, s23, 2")
    A("s_add_u32 s28, s28, s29")
    A("s_add_u32 s28, s28, s22")
    A("s_lshl_b32 s28, s28, 7")
    A(f"s_add_u32 s28, s28, {CS4}")
    A("v_lshlrev_b32 v12, 2, v3")
    A("s_mov_b32 exec_hi, 0")
    A("buffer_store_dword v10, v12, s[12:15], s28 offen sc1")
    A("s_mov_b32 exec_hi, -1")
    A("s_waitcnt vmcnt(0)")
    A("s_and_b32 s28, s2, 15")
    A("s_lshl_b32 s28, s28, 2")
    A("s_add_u32 s28, s28, s22")
    A("s_lshl_b32 s29, s20, 6")
    A("s_add_u32 s28, s28, s29")
    A("s_lshl_b32 s28, s28, 7")
    A(f"s_add_u32 s28, s28, {F0}")
    set_flag(A, 28, 10)
    A("s_barrier")

def wopack_issue(A, P):
    A("s_load_dwordx2 s[8:9], s[0:1], %d" % KA_WO)
    A("s_and_b32 s20, s2, 7")
    A("s_mul_i32 s20, s20, 81")
    A("s_lshr_b32 s21, s2, 3")
    A("s_mul_i32 s21, s21, 3")
    A("s_add_u32 s20, s20, s21")
    A("s_add_u32 s20, s20, s22          ; f'")
    A("s_mul_hi_u32 s23, s20, %d        ; ks = f'/36" % ((2**32+35)//36))
    A("s_mul_i32 s21, s23, 36")
    A("s_sub_u32 s21, s20, s21          ; j")
    A("v_and_b32 v208, 15, v1")
    A("v_lshrrev_b32 v209, 4, v1          ; kg")
    A("s_lshl_b32 s24, s21, 4           ; n0")
    A("v_add_u32 v210, s24, v208")
    A("v_lshlrev_b32 v210, 1, v210")
    A("s_mul_i32 s59, s21, 18")
    A("s_add_u32 s59, s59, s23")
    A("s_lshl_b32 s59, s59, 10")
    A(f"s_add_u32 s59, s59, {WOP}       ; destination")
    A("s_waitcnt lgkmcnt(0)")
    A("s_mov_b32 s10, %d" % SZ_WO)
    A(f"s_mov_b32 s11, {hex(SRD_W3)}")
    A("s_cmp_ge_u32 s23, 16")
    A(f"s_cbranch_scc1 {P}EXT")
    A("v_lshrrev_b32 v211, 1, v209")
    A("v_mul_u32_u24 v211, 18, v211")
    A("v_and_b32 v212, 1, v209")
    A("v_lshl_add_u32 v211, v212, 2, v211")
    A("v_mul_u32_u24 v211, 1152, v211")
    A("v_add_u32 v211, v211, v210")
    A("s_mul_i32 s25, s23, %d" % (36*1152))
    for i in range(8):
        A(f"s_add_u32 s26, s25, {((i&3) + 8*(i>>2))*1152}")
        A(f"buffer_load_ushort v{200+i}, v211, s[8:11], s26 offen")
    A(f"s_branch {P}ST")
    A.label(f"{P}EXT")
    A("v_mul_u32_u24 v211, %d, v209" % (72*1152))
    A("v_add_u32 v211, v211, v210")
    A("s_sub_u32 s25, s23, 16")
    A("s_mul_i32 s25, s25, %d" % (288*1152))
    for i in range(8):
        A(f"s_add_u32 s26, s25, {(18*(i>>1)+16+(i&1))*1152}")
        A(f"buffer_load_ushort v{200+i}, v211, s[8:11], s26 offen")
    A.label(f"{P}ST")

def wopack_finish(A):
    A("v_lshlrev_b32 v208, 4, v1")
    for q in range(4): A(f"v_lshl_or_b32 v{212+q}, v{200+2*q+1}, 16, v{200+2*q}")
    A("buffer_store_dwordx4 v[212:215], v208, s[12:15], s59 offen sc1")

def wopack_cond(A, lab):
    A("s_cmp_ge_u32 s22, 3")
    A(f"s_cbranch_scc1 {lab}")
    A("s_cmp_ge_u32 s2, 216")
    A(f"s_cbranch_scc1 {lab}")

def stats0_issue(A):
    A("s_lshl_b32 s20, s2, 3")
    A("v_lshrrev_b32 v141, 3, v1")
    A("v_add_u32 v141, s20, v141          ; row")
    A("v_and_b32 v142, 7, v1             ; c")
    A("v_mul_u32_u24 v143, 1152, v141")
    A("v_lshl_add_u32 v143, v142, 4, v143")
    for m in range(9):
        A(f"buffer_load_dwordx4 v[{100+4*m}:{103+4*m}], v143, s[36:39], 0 offen offset:{128*m}")

def stats0_finish(A):
    A("v_mov_b32 v136, 0")
    A("v_mov_b32 v138, 0")
    A("s_mov_b32 s56, 0x3f803f80")
    for m in range(9):
        for j in range(4):
            A(f"v_dot2_f32_bf16 v136, v{100+4*m+j}, s56, v136")
            A(f"v_dot2_f32_bf16 v138, v{100+4*m+j}, v{100+4*m+j}, v138")
    for v in (136, 138):
        A("s_nop 2")
        A(f"v_add_f32_dpp v{v}, v{v}, v{v} quad_perm:[1,0,3,2] row_mask:0xf bank_mask:0xf")
        A("s_nop 1")
        A(f"v_add_f32_dpp v{v}, v{v}, v{v} quad_perm:[2,3,0,1] row_mask:0xf bank_mask:0xf")
        A("s_nop 1")
        A(f"v_add_f32_dpp v{v}, v{v}, v{v} row_half_mirror row_mask:0xf bank_mask:0xf")
    A(f"v_mov_b32 v137, s{sTAG}")
    A(f"v_mov_b32 v139, s{sTAG}")
    A("v_lshlrev_b32 v140, 4, v141")
    A("v_cmp_eq_u32 vcc, 0, v142")
    A(f"s_mov_b32 s20, {ST0}")
    A("s_and_saveexec_b64 s[30:31], vcc")
    A("buffer_store_dwordx4 v[136:139], v140, s[12:15], s20 offen sc1")
    A("s_mov_b64 exec, -1")

def tjob_issue(A, sJ, R, sS):
    v = lambda n: f"v{R+n}"
    A(f"s_mul_hi_u32 s{sS}, s{sJ}, %d        ; tb" % ((2**32+35)//36))
    A(f"s_mul_i32 s{sS+1}, s{sS}, 36")
    A(f"s_sub_u32 s{sS+1}, s{sJ}, s{sS+1}        ; g16")
    A(f"v_and_b32 {v(2)}, 7, v1              ; tg")
    A(f"v_lshrrev_b32 {v(3)}, 3, v1")
    A(f"s_lshl_b32 s30, s{sS}, 6           ; t0")
    A(f"v_lshl_add_u32 {v(4)}, {v(2)}, 3, s30    ; T")
    A(f"s_lshl_b32 s30, s{sS+1}, 3")
    A(f"v_add_u32 {v(5)}, s30, {v(3)}")
    A(f"v_mul_u32_u24 {v(6)}, 1152, {v(4)}")
    A(f"v_lshl_add_u32 {v(6)}, {v(5)}, 2, {v(6)}")
    A(f"v_cmp_eq_u32 vcc, 0, {v(4)}")
    A(f"v_mov_b32 {v(10)}, {hex(OOB)}")
    for j in range(3):
        A(f"v_subrev_u32 {v(7+j)}, {(3-j)*1152}, {v(6)}")
        A(f"v_cndmask_b32 {v(7+j)}, {v(7+j)}, {v(10)}, vcc")
    A(f"v_lshlrev_b32 {v(10)}, 4, {v(5)}")
    A(f"buffer_load_dwordx4 v[{R+12}:{R+15}], {v(10)}, s[48:51], 0 offen")
    for j in range(3): A(f"buffer_load_dword {v(16+j)}, {v(7+j)}, s[40:43], 0 offen")
    for m in range(8):
        A(f"s_mov_b32 s30, {m*1152}")
        A(f"buffer_load_dword {v(19+m)}, {v(6)}, s[40:43], s30 offen")
    for m in range(8):
        A(f"s_mov_b32 s30, {m*1152}")
        A(f"buffer_load_dword {v(28+m)}, {v(6)}, s[44:47], s30 offen")

def tjob_finish(A, R, sS, sF):
    v = lambda n: f"v{R+n}"
    for c in range(2):
        A(f"v_lshlrev_b32 {v(40+4*c)}, 16, {v(12+2*c)}")
        A(f"v_and_b32 {v(41+4*c)}, 0xffff0000, {v(12+2*c)}")
        A(f"v_lshlrev_b32 {v(42+4*c)}, 16, {v(13+2*c)}")
        A(f"v_and_b32 {v(43+4*c)}, 0xffff0000, {v(13+2*c)}")
    for j in range(11):
        A(f"v_lshlrev_b32 {v(48+j)}, 16, {v(16+j)}")
        A(f"v_and_b32 {v(60+j)}, 0xffff0000, {v(16+j)}")
    for m in range(8):
        A(f"v_lshlrev_b32 {v(72+m)}, 16, {v(28+m)}")
        A(f"v_and_b32 {v(80+m)}, 0xffff0000, {v(28+m)}")
    for c in range(2):
        kb = 48+12*c; wb = 40+4*c; vb = 72+8*c
        for m in range(8):
            t = v(88 + (m & 1))
            A(f"v_mul_f32 {t}, {v(kb+m)}, {v(wb+3)}")
            A(f"v_fmac_f32 {t}, {v(kb+m+1)}, {v(wb+2)}")
            A(f"v_fmac_f32 {t}, {v(kb+m+2)}, {v(wb+1)}")
            A(f"v_fmac_f32 {t}, {v(kb+m+3)}, {v(wb+0)}")
            A(f"v_mul_f32 {v(vb+m)}, {t}, {v(vb+m)}")
        for mm in range(4):
            A(f"v_cvt_pk_bf16_f32 {v(92+4*c+mm)}, {v(vb+7-2*mm)}, {v(vb+6-2*mm)}")
    A(f"v_sub_u32 {v(6)}, 2040, {v(4)}")
    A(f"v_lshlrev_b32 {v(6)}, 1, {v(6)}")
    A(f"v_lshl_add_u32 {v(6)}, {v(5)}, 13, {v(6)}")
    A(f"s_mov_b32 s30, {XR}")
    A(f"buffer_store_dwordx4 v[{R+92}:{R+95}], {v(6)}, s[12:15], s30 offen sc1")
    A(f"v_add_u32 {v(7)}, 4096, {v(6)}")
    A(f"buffer_store_dwordx4 v[{R+96}:{R+99}], {v(7)}, s[12:15], s30 offen sc1")
    A(f"s_lshl_b32 s{sF}, s{sS+1}, 5")
    A(f"s_add_u32 s{sF}, s{sF}, s{sS}")
    A(f"s_lshl_b32 s{sF}, s{sF}, 7")
    A(f"s_add_u32 s{sF}, s{sF}, {FT}")

CP = 4160; XROFF = 4*CP; CPITCH = 21248
CB = Q.XB
L_CRED = CB + 3*CPITCH
assert L_CRED + 8*5120 <= 163840

def conv_setup_loads(A, P):
    A("s_load_dwordx2 s[16:17], s[0:1], %d" % KA_SSMK)
    A("s_lshr_b32 s30, s2, 3")
    A("s_lshr_b32 s31, s2, 6")
    A("s_add_u32 s31, s31, 32")
    A("v_and_b32 v2, 31, v1")
    A("v_lshlrev_b32 v2, 7, v2")
    A("v_mov_b32 v3, s30")
    A("v_mov_b32 v4, s31")
    A("v_cmp_gt_u32 vcc, 32, v1")
    A("s_waitcnt lgkmcnt(0)")
    A(f"s_mov_b32 s34, {FT}")
    A("v_cndmask_b32 v3, v4, v3, vcc")
    A("v_lshl_add_u32 v2, v3, 12, v2")
    A("s_mov_b32 s18, %d" % SZ_SSMK)
    A(f"s_mov_b32 s19, {hex(SRD_W3)}")
    A("v_lshlrev_b32 v3, 4, v1          ; lane*16")
    A("s_lshr_b32 s42, s25, 1")
    A("s_lshl_b32 s43, s2, 1")
    A("s_add_u32 s43, s43, s42          ; channel")
    A("s_lshl_b32 s43, s43, 12")
    A(f"s_mul_i32 s42, s42, {CPITCH}")
    A(f"s_add_u32 s42, s42, {CB}")
    A("s_and_b32 s47, s25, 1")
    A("s_lshl_b32 s47, s47, 11")
    for j in range(2):
        A(f"s_add_u32 s{48+j}, s47, {1024*j}")
        A(f"s_add_u32 s{44+j}, s42, s{48+j}")
        A(f"s_add_u32 s{40+j}, s43, s{48+j}") if j == 0 else A(f"s_add_u32 s41, s43, s49")
    A("s_lshl_b32 s50, s25, 10")
    A(f"s_add_u32 s46, s50, {CB + 2*CPITCH}")
    A("s_lshr_b32 s43, s2, 2")
    A("s_add_u32 s43, s43, 512")
    A("s_lshl_b32 s43, s43, 12")
    A("s_add_u32 s42, s43, s50")
    def kload(j):
        b = 16+8*j
        A(f"buffer_load_dwordx4 v[{b}:{b+3}], v3, s[16:19], s{40+j} offen")
        A(f"buffer_load_dwordx2 v[{b+4}:{b+5}], v3, s[16:19], s{40+j} offen offset:16")
    def xload(j):
        A(f"s_add_u32 s38, s{40+j}, {XR}")
        A(f"buffer_load_dwordx4 v[{64+4*j}:{67+4*j}], v3, s[12:15], s38 offen sc1")
    poll_flags(A, P, "FT", 34, 2, 5)
    for j in range(3): kload(j); xload(j)

def conv_setup_build(A, P):
    A("s_waitcnt vmcnt(0)")
    def build(j):
        b = 16+8*j
        A(f"v_add_u32 v6, s{44+j}, v3")
        A(f"v_add_u32 v7, {XROFF}, v6")
        A(f"ds_write_b128 v7, v[{64+4*j}:{67+4*j}]")
        A(f"ds_write_b128 v6, v[{b}:{b+3}] offset:32")
        A(f"v_alignbit_b32 v40, v{b+1}, v{b}, 16")
        A(f"v_alignbit_b32 v41, v{b+2}, v{b+1}, 16")
        A(f"v_alignbit_b32 v42, v{b+3}, v{b+2}, 16")
        A(f"v_alignbit_b32 v43, v{b+4}, v{b+3}, 16")
        A(f"ds_write_b128 v6, v[40:43] offset:{CP+32}")
        A("v_mov_b32 v44, v41")
        A("v_mov_b32 v45, v42")
        A("v_mov_b32 v46, v43")
        A(f"v_alignbit_b32 v47, v{b+5}, v{b+4}, 16")
        A(f"ds_write_b128 v6, v[44:47] offset:{3*CP+32}")
        A(f"v_mov_b32 v48, v{b+1}")
        A(f"v_mov_b32 v49, v{b+2}")
        A(f"v_mov_b32 v50, v{b+3}")
        A(f"v_mov_b32 v51, v{b+4}")
        A(f"ds_write_b128 v6, v[48:51] offset:{2*CP+32}")
        lab = f"{P}NH{j}"
        A(f"s_cmp_lg_u32 s{48+j}, 0")
        A(f"s_cbranch_scc1 {lab}")
        for q in range(8, 12): A(f"v_mov_b32 v{q}, 0")
        A(f"v_lshlrev_b32 v55, 16, v{b}")
        for q in (52,53,54,56,57,58,60,61): A(f"v_mov_b32 v{q}, 0")
        A(f"v_mov_b32 v59, v{b}")
        A("v_mov_b32 v62, v55")
        A("v_mov_b32 v63, v40")
        A("v_cmp_gt_u32 vcc, 30, v1")
        A("s_and_saveexec_b64 s[56:57], vcc")
        A(f"ds_write_b128 v6, v[8:11] offset:{XROFF+4096}")
        A("s_mov_b64 exec, 1")
        for s_ in range(4): A(f"ds_write_b128 v6, v[8:11] offset:{s_*CP}")
        A(f"ds_write_b128 v6, v[8:11] offset:16")
        A(f"ds_write_b128 v6, v[52:55] offset:{CP+16}")
        A(f"ds_write_b128 v6, v[56:59] offset:{2*CP+16}")
        A(f"ds_write_b128 v6, v[60:63] offset:{3*CP+16}")
        A("s_mov_b64 exec, -1")
        A.label(lab)
    build(0); build(1); build(2)
    A("s_waitcnt lgkmcnt(0)")

SETS = {0: [0,3,4,7], 1: [1,2,5,6]}
class ConvJob:
    BS = [32, 96]; AS = [64, 128]
    def __init__(s, A, P, G, acc, va, sb, red, dreg):
        s.A, s.P, s.G, s.ACC = A, P, G, acc
        s.vA, s.vB, s.vKV, s.vN = va, va+1, va+2, va+3
        s.sC, s.sH, s.sRG, s.sCH, s.sJ = sb, sb+1, sb+2, sb+3, sb+4
        s.red, s.pitch = red, (2048 if G == 2 else 3072)
        s.D = dreg
        s.nk = 4//G
    def setup(s):
        A = s.A
        if s.G == 2:
            A(f"s_lshr_b32 s{s.sC}, s22, 2")
            A(f"s_bfe_u32 s{s.sH}, s22, 0x10001")
            A(f"s_and_b32 s{s.sRG}, s22, 1")
            A(f"s_lshl_b32 s{s.sCH}, s2, 1")
            A(f"s_add_u32 s{s.sCH}, s{s.sCH}, s{s.sC}")
        else:
            A(f"s_mov_b32 s{s.sC}, 2")
            A(f"s_lshr_b32 s{s.sH}, s22, 2")
            A(f"s_and_b32 s{s.sRG}, s22, 3")
            A(f"s_add_u32 s{s.sCH}, s2, 512")
        A(f"s_mul_i32 s34, s{s.sC}, {CPITCH}")
        A(f"s_add_u32 s34, s34, {CB}")
        A(f"s_lshl_b32 s35, s{s.sCH}, 1")
        A(f"v_mov_b32 v28, s35")
        A(f"buffer_load_ushort v{s.D}, v28, s[16:19], 0 offen")
        A("v_and_b32 v2, 15, v1")
        A("v_lshrrev_b32 v3, 4, v1")
        A("v_add_u32 v4, 1, v2")
        A("v_and_b32 v5, 3, v4")
        A("v_sub_u32 v4, v4, v5")
        A("v_lshl_add_u32 v4, v3, 3, v4")
        A("v_lshlrev_b32 v4, 1, v4")
        A(f"v_mul_u32_u24 v5, {CP}, v5")
        A(f"s_lshl_b32 s35, s{s.sRG}, 6")
        A("s_add_u32 s36, s34, s35")
        A(f"v_add3_u32 v{s.vA}, v4, v5, s36")
        A("v_lshlrev_b32 v4, 5, v2")
        A("v_lshlrev_b32 v5, 4, v3")
        A(f"v_sub_u32 v{s.vB}, v5, v4")
        A(f"s_add_u32 s36, s36, {XROFF + 2*2032 - 3584}")
        A(f"v_add_u32 v{s.vB}, s36, v{s.vB}")
        A("v_lshlrev_b32 v5, 3, v3")
        A(f"v_add_u32 v{s.vN}, v4, v5")
        A(f"s_add_u32 s36, s34, {XROFF + 2*2044 - 3584}")
        A(f"v_sub_u32 v{s.vKV}, s36, v{s.vN}")
        for j in range(16): A(f"v_mov_b32 v{s.ACC+j}, 0")
    def compute(s, mid=None, last_extra=()):
        A, G = s.A, s.G
        nres = 8//G
        def variant(h):
            tiles = SETS[h]; J = tiles[-1]
            def loads(rr, st):
                r = G*rr
                L = []
                for mu in range(J+1):
                    L.append(f"ds_read_b128 v[{s.BS[st]+4*mu}:{s.BS[st]+4*mu+3}], v{s.vB} offset:{64*r+512*(7-mu)}")
                    m = 8*mu + r
                    L.append(f"ds_read_b64 v[{s.AS[st]+4*mu}:{s.AS[st]+4*mu+1}], v{s.vA} offset:{64*m}")
                    L.append(f"ds_read_b64 v[{s.AS[st]+4*mu+2}:{s.AS[st]+4*mu+3}], v{s.vA} offset:{64*m+8}")
                return L
            for l in loads(0, 0): A(l)
            for rr in range(nres):
                st = rr & 1
                A("s_waitcnt lgkmcnt(0)")
                nxt = loads(rr+1, st^1) if rr+1 < nres else list(last_extra)
                mf = []
                for mu in range(J+1):
                    for ti, j in enumerate(tiles):
                        if j < mu: continue
                        i = j - mu; d = s.ACC+4*ti
                        mf.append(f"v_mfma_f32_16x16x32_bf16 v[{d}:{d+3}], v[{s.AS[st]+4*mu}:{s.AS[st]+4*mu+3}], v[{s.BS[st]+4*i}:{s.BS[st]+4*i+3}], v[{d}:{d+3}]")
                k = 0
                for m_ in mf:
                    A(m_)
                    for _ in range(2):
                        if k < len(nxt): A(nxt[k]); k += 1
                while k < len(nxt): A(nxt[k]); k += 1
                if mid and rr == 0: mid(h)
        tag = f"{s.P}G{G}"
        A(f"s_cmp_eq_u32 s{s.sH}, 0")
        A(f"s_cbranch_scc0 {tag}H1")
        variant(0)
        A(f"s_branch {tag}HD")
        A.label(f"{tag}H1")
        variant(1)
        A.label(f"{tag}HD")
    def send(s):
        A, G, nk = s.A, s.G, s.nk
        A(f"s_mul_i32 s35, s22, {s.pitch}")
        A(f"s_add_u32 s35, s35, {s.red}")
        A("v_lshlrev_b32 v2, 4, v1")
        A("v_add_u32 v3, s35, v2")
        for rg in range(1, G):
            lab = f"{s.P}G{G}RT{rg}"
            A(f"s_cmp_eq_u32 s{s.sRG}, {rg}")
            A(f"s_cbranch_scc0 {lab}")
            sh = 4*rg*nk
            if G == 2:
                for j in range(8): A(f"v_swap_b32 v{s.ACC+j}, v{s.ACC+8+j}")
            else:
                for j in range(16): A(f"v_mov_b32 v{32+j}, v{s.ACC+(j+sh) % 16}")
                for j in range(16): A(f"v_mov_b32 v{s.ACC+j}, v{32+j}")
            A.label(lab)
        for q in range(4-nk):
            A(f"ds_write_b128 v3, v[{s.ACC+4*(nk+q)}:{s.ACC+4*(nk+q)+3}] offset:{1024*q}")
    def recv(s, R, KVr):
        A, G, nk = s.A, s.G, s.nk
        A("v_lshlrev_b32 v2, 4, v1")
        cnt = 0
        for d in range(1, G):
            A(f"s_add_u32 s36, s{s.sRG}, {d}")
            A(f"s_and_b32 s36, s36, {G-1}")
            A(f"s_andn2_b32 s37, s22, {G-1}")
            A("s_add_u32 s36, s36, s37")
            A(f"s_mul_i32 s36, s36, {s.pitch}")
            A(f"s_add_u32 s36, s36, {s.red}")
            A(f"v_add_u32 v4, s36, v2")
            for k in range(nk):
                q = ((G-d)*nk + k) % 4 - nk
                A(f"ds_read_b128 v[{R+4*cnt}:{R+4*cnt+3}], v4 offset:{1024*q}")
                cnt += 1
        for k in range(nk):
            A(f"s_mul_i32 s36, s{s.sRG}, {nk}")
            A(f"s_add_u32 s36, s36, {k}")
            A("s_lshl_b32 s36, s36, 2")
            A(f"s_mov_b32 s37, {hex(0x7430)}")
            A(f"s_mov_b32 s39, {hex(0x6521)}")
            A(f"s_cmp_eq_u32 s{s.sH}, 0")
            A("s_cselect_b32 s37, s37, s39")
            A("s_lshr_b32 s37, s37, s36")
            A(f"s_and_b32 s{s.sJ+k}, s37, 15")
            A(f"s_sub_u32 s36, 7, s{s.sJ+k}")
            A("s_lshl_b32 s36, s36, 9")
            A(f"v_add_u32 v5, s36, v{s.vKV}")
            A(f"ds_read_b64 v[{KVr+2*k}:{KVr+1+2*k}], v5")
    def finish(s, R, KVr, O):
        A, G, nk = s.A, s.G, s.nk
        A(f"v_lshlrev_b32 v{s.D}, 16, v{s.D}")
        cnt = 0
        for d in range(1, G):
            for k in range(nk):
                for r in range(4): A(f"v_add_f32 v{s.ACC+4*k+r}, v{s.ACC+4*k+r}, v{R+4*cnt+r}")
                cnt += 1
        for k in range(nk):
            r0, r1 = KVr+2*k, KVr+1+2*k; a = s.ACC+4*k
            A(f"v_and_b32 v76, 0xffff0000, v{r1}")
            A(f"v_lshlrev_b32 v77, 16, v{r1}")
            A(f"v_and_b32 v78, 0xffff0000, v{r0}")
            A(f"v_lshlrev_b32 v79, 16, v{r0}")
            for rr in range(4): A(f"v_fmac_f32 v{a+rr}, v{76+rr}, v{s.D}")
            A(f"v_cvt_pk_bf16_f32 v{O+2*k}, v{a}, v{a+1}")
            A(f"v_cvt_pk_bf16_f32 v{O+1+2*k}, v{a+2}, v{a+3}")
            A(f"s_lshl_b32 s36, s{s.sCH}, 12")
            A(f"s_lshl_b32 s37, s{s.sJ+k}, 9")
            A("s_add_u32 s36, s36, s37")
            A(f"s_add_u32 s36, s36, {YT}")
            A(f"buffer_store_dwordx2 v[{O+2*k}:{O+1+2*k}], v{s.vN}, s[12:15], s36 offen sc1")

class QuarterJob:
    B, Aa = 32, 64
    ACC = 160
    vA, vB, vKV, vN = 176, 177, 178, 179
    D = 30
    def __init__(s, A, P, red): s.A, s.P, s.red = A, P, red
    def setup(s):
        A = s.A
        A("s_lshr_b32 s49, s2, 2")
        A("s_add_u32 s49, s49, 512          ; channel")
        A("s_and_b32 s48, s2, 3             ; q")
        A(f"s_mov_b32 s34, {CB + 2*CPITCH}")
        A("s_lshl_b32 s35, s49, 1")
        A("v_mov_b32 v28, s35")
        A(f"buffer_load_ushort v{s.D}, v28, s[16:19], 0 offen")
        A("v_and_b32 v2, 15, v1")
        A("v_lshrrev_b32 v3, 4, v1")
        A("v_add_u32 v4, 1, v2")
        A("v_and_b32 v5, 3, v4")
        A("v_sub_u32 v4, v4, v5")
        A("v_lshl_add_u32 v4, v3, 3, v4")
        A("v_lshlrev_b32 v4, 1, v4")
        A(f"v_mul_u32_u24 v5, {CP}, v5")
        A("s_lshl_b32 s35, s22, 6           ; 64*residue")
        A("s_add_u32 s36, s34, s35")
        A(f"v_add3_u32 v{s.vA}, v4, v5, s36")
        A("v_lshlrev_b32 v4, 5, v2")
        A("v_lshlrev_b32 v5, 4, v3")
        A(f"v_sub_u32 v{s.vB}, v5, v4")
        A(f"s_add_u32 s36, s36, {XROFF + 2*2032 - 3584}")
        A(f"v_add_u32 v{s.vB}, s36, v{s.vB}")
        A("v_lshlrev_b32 v5, 3, v3")
        A(f"v_add_u32 v{s.vN}, v4, v5")
        A(f"s_add_u32 s36, s34, {XROFF + 2*2044 - 3584}")
        A(f"v_sub_u32 v{s.vKV}, s36, v{s.vN}")
        for j in range(8): A(f"v_mov_b32 v{s.ACC+j}, 0")
    def loads(s):
        L = []
        for mu in range(8):
            L.append(f"ds_read_b128 v[{s.B+4*mu}:{s.B+4*mu+3}], v{s.vB} offset:{512*(7-mu)}")
            L.append(f"ds_read_b64 v[{s.Aa+4*mu}:{s.Aa+4*mu+1}], v{s.vA} offset:{512*mu}")
            L.append(f"ds_read_b64 v[{s.Aa+4*mu+2}:{s.Aa+4*mu+3}], v{s.vA} offset:{512*mu+8}")
        return L
    def compute(s):
        A = s.A
        A("s_waitcnt lgkmcnt(0)")
        for q in range(4):
            if q < 3:
                A(f"s_cmp_eq_u32 s48, {q}")
                A(f"s_cbranch_scc0 {s.P}Q{q+1}")
            tiles = (q, 7-q)
            for mu in range(8-q):
                for ti, j in enumerate(tiles):
                    if j < mu: continue
                    d = s.ACC+4*ti
                    A(f"v_mfma_f32_16x16x32_bf16 v[{d}:{d+3}], v[{s.Aa+4*mu}:{s.Aa+4*mu+3}], v[{s.B+4*(j-mu)}:{s.B+4*(j-mu)+3}], v[{d}:{d+3}]")
            if q < 3:
                A(f"s_branch {s.P}QD")
                A.label(f"{s.P}Q{q+1}")
        A.label(f"{s.P}QD")
    def send(s):
        A = s.A
        A("s_lshl_b32 s35, s22, 11")
        A(f"s_add_u32 s35, s35, {s.red}")
        A("v_lshlrev_b32 v2, 4, v1")
        A("v_add_u32 v3, s35, v2")
        for k in range(2): A(f"ds_write_b128 v3, v[{s.ACC+4*k}:{s.ACC+4*k+3}] offset:{1024*k}")
    def recv(s, R, KVr):
        A = s.A
        A("s_lshl_b32 s35, s22, 10")
        A(f"s_add_u32 s35, s35, {s.red}")
        A("v_lshlrev_b32 v2, 4, v1")
        A("v_add_u32 v4, s35, v2")
        for w in range(8): A(f"ds_read_b128 v[{R+4*w}:{R+4*w+3}], v4 offset:{2048*w}")
        A("s_sub_u32 s36, 7, s48")
        A("s_cmp_eq_u32 s22, 0")
        A("s_cselect_b32 s50, s48, s36       ; tile j")
        A("s_sub_u32 s36, 7, s50")
        A("s_lshl_b32 s36, s36, 9")
        A(f"v_add_u32 v5, s36, v{s.vKV}")
        A(f"ds_read_b64 v[{KVr}:{KVr+1}], v5")
    def finish(s, R, KVr, O):
        A = s.A
        A(f"v_lshlrev_b32 v{s.D}, 16, v{s.D}")
        for w in range(1, 8):
            for r in range(4): A(f"v_add_f32 v{R+r}, v{R+r}, v{R+4*w+r}")
        A(f"v_and_b32 v76, 0xffff0000, v{KVr+1}")
        A(f"v_lshlrev_b32 v77, 16, v{KVr+1}")
        A(f"v_and_b32 v78, 0xffff0000, v{KVr}")
        A(f"v_lshlrev_b32 v79, 16, v{KVr}")
        for rr in range(4): A(f"v_fmac_f32 v{R+rr}, v{76+rr}, v{s.D}")
        A(f"v_cvt_pk_bf16_f32 v{O}, v{R}, v{R+1}")
        A(f"v_cvt_pk_bf16_f32 v{O+1}, v{R+2}, v{R+3}")
        A("s_lshl_b32 s36, s49, 12")
        A("s_lshl_b32 s37, s50, 9")
        A("s_add_u32 s36, s36, s37")
        A(f"s_add_u32 s36, s36, {YT}")
        A(f"buffer_store_dwordx2 v[{O}:{O+1}], v{s.vN}, s[12:15], s36 offen sc1")

def conv_compute(A, P):
    ja = ConvJob(A, P, 2, 8, 24, 40, L_CRED, 29)
    jq = QuarterJob(A, P, L_CRED + 8*2048)
    A("s_load_dwordx2 s[16:17], s[0:1], %d" % KA_SSMD)
    A("s_waitcnt lgkmcnt(0)")
    A("s_mov_b32 s18, %d" % SZ_SSMD)
    A(f"s_mov_b32 s19, {hex(SRD_W3)}")
    ja.setup()
    jq.setup()
    A("s_barrier")
    stamps.stampfix(A, 16)
    def mid(h):
        A("s_cmp_ge_u32 s22, 4")
        A(f"s_cbranch_scc1 {P}NF{h}")
        A("s_waitcnt vmcnt(0)")
        set_flag(A, 53, 180)
        wopack_cond(A, f"{P}NF{h}")
        wopack_issue(A, f"{P}O{h}")
        A.label(f"{P}NF{h}")
    ja.compute(mid, last_extra=jq.loads())
    stamps.stampfix(A, 17)
    jq.compute()
    stamps.stampfix(A, 20)
    A("s_nop 7")
    ja.send()
    jq.send()
    A("s_waitcnt lgkmcnt(0)")
    A("s_barrier")
    ja.recv(48, 72)
    A("s_cmp_ge_u32 s22, 2")
    A(f"s_cbranch_scc1 {P}NQR")
    jq.recv(96, 128)
    A.label(f"{P}NQR")
    A("s_waitcnt vmcnt(0) lgkmcnt(0)")
    stamps.stampfix(A, 18)
    ja.finish(48, 72, 80)
    A("s_cmp_ge_u32 s22, 2")
    A(f"s_cbranch_scc1 {P}NQF")
    jq.finish(96, 128, 132)
    A.label(f"{P}NQF")
    wopack_cond(A, f"{P}NWO1")
    wopack_finish(A)
    A.label(f"{P}NWO1")

G_PS, G_MR, G_OF, G_XT, G_YT = 0, 2048, 24576, 61440, 61440+9216
WFA, WFB = 64, 136
ACA, ACB = 8, 208

def red4(A, v, t):
    A(f"v_mov_b32 v{t}, v{v}")
    A("s_nop 1")
    A(f"v_permlane16_swap_b32 v{v}, v{t}")
    A("s_nop 1")
    A(f"v_add_f32 v{v}, v{v}, v{t}")
    A(f"v_mov_b32 v{t}, v{v}")
    A("s_nop 1")
    A(f"v_permlane32_swap_b32 v{v}, v{t}")
    A("s_nop 1")
    A(f"v_add_f32 v{v}, v{v}, v{t}")

def red4x4(A, vs, ts):
    for op in ("v_permlane16_swap_b32", "v_permlane32_swap_b32"):
        for v, t in zip(vs, ts): A(f"v_mov_b32 v{t}, v{v}")
        for v, t in zip(vs, ts): A(f"{op} v{v}, v{t}")
        for v, t in zip(vs, ts): A(f"v_add_f32 v{v}, v{v}, v{t}")

def opg_ids(A):
    A("s_and_b32 s20, s2, 7")
    A("s_lshr_b32 s21, s2, 3")
    A("s_lshl_b32 s20, s20, 3")
    A("s_lshr_b32 s23, s21, 2")
    A("s_add_u32 s20, s20, s23          ; rb (0..63)")
    A("s_and_b32 s21, s21, 3            ; cgo")

def opg_prefetch(A, P):
    opg_ids(A)
    A("v_and_b32 v1, 63, v0")
    A("v_and_b32 v3, 15, v1             ; n")
    A("v_lshrrev_b32 v4, 4, v1          ; kg")
    A("v_lshlrev_b32 v5, 4, v1          ; lane*16")
    A("s_mov_b32 s31, %d" % ((2**32+17)//18))
    A("s_mul_i32 s32, s20, %d" % (32*1152))
    A("s_mul_i32 s33, s21, 288")
    A("s_add_u32 s32, s32, s33")
    def xaddr(vL, vd):
        A(f"v_mul_hi_u32 v7, v{vL}, s31")
        A("v_mul_u32_u24 v8, 18, v7")
        A(f"v_sub_u32 v8, v{vL}, v8")
        A("v_mul_u32_u24 v9, 1152, v7")
        A(f"v_lshl_add_u32 v{vd}, v8, 4, v9")
    xaddr(0, 60)
    A("v_add_u32 v6, 512, v1")
    xaddr(6, 61)
    A("s_lshl_b32 s34, s22, 10")
    A(f"s_add_u32 m0, s34, {G_XT}")
    A("s_nop 0")
    A("buffer_load_dwordx4 v60, s[8:11], s32 offen lds sc1")
    A("s_mul_i32 s33, s21, %d" % (144*4096))
    A("s_lshl_b32 s35, s20, 6")
    A("s_add_u32 s33, s33, s35")
    A(f"s_add_u32 s33, s33, {YT}")
    A("v_lshrrev_b32 v7, 2, v0")
    A("v_lshlrev_b32 v7, 12, v7")
    A("v_and_b32 v8, 3, v0")
    A("v_lshl_add_u32 v7, v8, 4, v7")
    A(f"s_add_u32 m0, s34, {G_YT}")
    A("s_nop 0")
    A("buffer_load_dwordx4 v7, s[12:15], s33 offen lds sc1")
    A("s_cmp_lg_u32 s22, 0")
    A(f"s_cbranch_scc1 {P}NX")
    A(f"s_mov_b32 m0, {G_XT + 8192}")
    A("s_nop 0")
    A("buffer_load_dwordx4 v61, s[8:11], s32 offen lds sc1")
    A(f"v_add_u32 v7, {128*4096}, v7        ; channels 128..143")
    A(f"s_mov_b32 m0, {G_YT + 8192}")
    A("s_nop 0")
    A("buffer_load_dwordx4 v7, s[12:15], s33 offen lds sc1")
    A.label(f"{P}NX")
    A("s_and_b32 s36, s20, 7" if ROTO else "s_mov_b32 s36, 0")
    def wl(base, sct):
        A("s_mul_i32 s33, s21, 9")
        A(f"s_add_u32 s33, s33, {sct}")
        A("s_mul_i32 s33, s33, %d" % (18*1024))
        A(f"s_add_u32 s33, s33, {WOP}")
        for pr in range(9):
            A(f"s_add_u32 s34, s36, {pr}")
            A("s_sub_u32 s35, s34, 9")
            A("s_cmp_ge_u32 s34, 9")
            A("s_cselect_b32 s34, s35, s34")
            A("s_lshl_b32 s34, s34, 11")
            A("s_add_u32 s34, s34, s33")
            for j in range(2):
                ks = 2*pr + j
                if CAPO and ks >= CAPO: A(f"s_waitcnt vmcnt({CAPO-1})")
                A(f"buffer_load_dwordx4 v[{base+4*ks}:{base+4*ks+3}], v5, s[12:15], s34 offen offset:{j*1024} sc1")
    wl(WFA, "s22")
    A("s_cmp_lg_u32 s22, 7")
    A(f"s_cbranch_scc1 {P}NW")
    wl(WFB, "8")
    A.label(f"{P}NW")

def opg_main(A, P):
    A("v_lshrrev_b32 v6, 1, v4")
    A("v_lshlrev_b32 v6, 16, v6")
    A("v_lshl_add_u32 v6, v3, 5, v6")
    A("v_and_b32 v7, 1, v4")
    A("v_lshl_add_u32 v6, v7, 4, v6")
    A("s_lshl_b32 s24, s22, 18")
    A("s_lshl_b32 s25, s20, 10")
    A("s_add_u32 s24, s24, s25")
    A(f"s_add_u32 s24, s24, {OM}")
    A("s_add_u32 s24, s24, s63")
    A("s_and_b32 s36, s20, 7" if ROTO else "s_mov_b32 s36, 0")
    A("s_add_u32 s28, s22, 9")
    A("s_sub_u32 s28, s28, s36")
    A("s_sub_u32 s29, s28, 9")
    A("s_cmp_ge_u32 s28, 9")
    A("s_cselect_b32 s28, s29, s28")
    A("s_lshl_b32 s28, s28, 11")
    for rt in range(2):
        for kk in range(2):
            A(f"s_add_u32 m0, s28, {G_OF + rt*18432 + kk*1024}")
            A(f"s_add_u32 s30, s24, {kk*131072 + rt*512}")
            A("buffer_load_dwordx4 v6, s[12:15], s30 offen lds sc1")
    A("s_cmp_ge_u32 s22, 4")
    A(f"s_cbranch_scc1 {P}NE")
    A("v_lshlrev_b32 v6, 15, v4")
    A("v_lshl_add_u32 v6, v3, 4, v6")
    A("s_lshr_b32 s24, s22, 1           ; rt")
    A("s_and_b32 s25, s22, 1            ; e")
    A("s_lshl_b32 s26, s20, 9")
    A("s_lshl_b32 s27, s24, 8")
    A("s_add_u32 s26, s26, s27")
    A("s_lshl_b32 s27, s25, 17")
    A("s_add_u32 s26, s26, s27")
    A(f"s_add_u32 s26, s26, {OE}")
    A("s_add_u32 s26, s26, s64")
    A("s_mul_i32 s27, s24, 18432")
    A("s_lshl_b32 s28, s25, 10")
    A("s_add_u32 s27, s27, s28")
    A("s_sub_u32 s28, 8, s36")
    A("s_lshl_b32 s28, s28, 11")
    A("s_add_u32 s27, s27, s28")
    A(f"s_add_u32 m0, s27, {G_OF}")
    A("s_nop 0")
    A("buffer_load_dwordx4 v6, s[12:15], s26 offen lds sc1")
    A.label(f"{P}NE")
    for i in range(8):
        A(f"v_mov_b32 v{ACA+i}, 0")
        A(f"v_mov_b32 v{ACB+i}, 0")
    A("s_waitcnt vmcnt(0)")
    A("s_barrier")
    stamps.stamp(A, 9)
    def mainloop(tiles):
        def rd(ks, st):
            b = 16 + 8*st
            A(f"ds_read_b128 v[{b}:{b+3}], v5 offset:{G_OF + ks*1024}")
            A(f"ds_read_b128 v[{b+4}:{b+7}], v5 offset:{G_OF + 18432 + ks*1024}")
        rd(0,0); rd(1,1)
        for ks in range(18):
            st = ks % 3
            if ks + 2 < 18: rd(ks+2, (ks+2) % 3)
            A(f"s_waitcnt lgkmcnt({4 if ks+2<18 else (2 if ks+1<18 else 0)})")
            b = 16 + 8*st
            for WF, AC in tiles:
                A(f"v_mfma_f32_16x16x32_bf16 v[{AC}:{AC+3}], v[{WF+4*ks}:{WF+4*ks+3}], v[{b}:{b+3}], v[{AC}:{AC+3}]")
                A(f"v_mfma_f32_16x16x32_bf16 v[{AC+4}:{AC+7}], v[{WF+4*ks}:{WF+4*ks+3}], v[{b+4}:{b+7}], v[{AC+4}:{AC+7}]")
    def ifB(fn, tag):
        A("s_cmp_lg_u32 s22, 7")
        A(f"s_cbranch_scc1 {P}NB{tag}")
        fn()
        A.label(f"{P}NB{tag}")
    A("s_cmp_eq_u32 s22, 7")
    A(f"s_cbranch_scc1 {P}ML2")
    mainloop([(WFA, ACA)])
    A(f"s_branch {P}MLD")
    A.label(f"{P}ML2")
    mainloop([(WFA, ACA), (WFB, ACB)])
    A.label(f"{P}MLD")
    A("v_mul_u32_u24 v40, 288, v3")
    A("v_lshl_add_u32 v40, v4, 3, v40")
    A("s_lshl_b32 s33, s22, 5")
    A(f"s_add_u32 s33, s33, {G_XT}")
    A("v_add_u32 v40, s33, v40")
    A("v_lshrrev_b32 v41, 2, v3")
    A("v_lshl_add_u32 v41, v4, 2, v41")
    A("v_lshlrev_b32 v41, 6, v41")
    A("v_and_b32 v42, 3, v1")
    A("v_lshl_add_u32 v41, v42, 3, v41")
    A("s_lshl_b32 s33, s22, 10")
    A(f"s_add_u32 s33, s33, {G_YT}")
    A("v_add_u32 v41, s33, v41")
    XA_, YA_, XB_, YB_ = 44, 48, 216, 220
    def rdxy(X, Y, dx, dy):
        A(f"ds_read_b64 v[{X}:{X+1}], v40 offset:{dx}")
        A(f"ds_read_b64 v[{X+2}:{X+3}], v40 offset:{dx + 16*288}")
        A(f"ds_read_b64_tr_b16 v[{Y}:{Y+1}], v41 offset:{dy}")
        A(f"ds_read_b64_tr_b16 v[{Y+2}:{Y+3}], v41 offset:{dy + 32}")
    rdxy(XA_, YA_, 0, 0)
    ifB(lambda: rdxy(XB_, YB_, 32, 1024), "r")
    A("s_waitcnt lgkmcnt(0)")
    A("s_nop 3")
    def x1(AC, X):
        for rt in range(2):
            x = X+2*rt; a = AC+4*rt
            A(f"v_lshlrev_b32 v52, 16, v{x}")
            A(f"v_and_b32 v53, 0xffff0000, v{x}")
            A(f"v_lshlrev_b32 v54, 16, v{x+1}")
            A(f"v_and_b32 v55, 0xffff0000, v{x+1}")
            for r in range(4): A(f"v_add_f32 v{a+r}, v{a+r}, v{52+r}")
            A(f"v_cvt_pk_bf16_f32 v56, v{a}, v{a+1}")
            A(f"v_cvt_pk_bf16_f32 v57, v{a+2}, v{a+3}")
            A(f"v_lshlrev_b32 v{a}, 16, v56")
            A(f"v_and_b32 v{a+1}, 0xffff0000, v56")
            A(f"v_lshlrev_b32 v{a+2}, 16, v57")
            A(f"v_and_b32 v{a+3}, 0xffff0000, v57")
    x1(ACA, XA_)
    ifB(lambda: x1(ACB, XB_), "x")
    def sums(AC, first):
        for rt in range(2):
            a = AC+4*rt; s1 = 16+2*rt; s2 = s1+1
            if first:
                A(f"v_add_f32 v{s1}, v{a}, v{a+1}")
                A(f"v_mul_f32 v{s2}, v{a}, v{a}")
            else:
                A(f"v_add_f32 v{s1}, v{s1}, v{a}")
                A(f"v_add_f32 v{s1}, v{s1}, v{a+1}")
                A(f"v_fmac_f32 v{s2}, v{a}, v{a}")
            A(f"v_add_f32 v{s1}, v{s1}, v{a+2}")
            A(f"v_add_f32 v{s1}, v{s1}, v{a+3}")
            for r in range(1,4): A(f"v_fmac_f32 v{s2}, v{a+r}, v{a+r}")
    def partial_stats(tag, drain=False):
        sums(ACA, True)
        ifB(lambda: sums(ACB, False), "s"+tag)
        red4x4(A, (16,17,18,19), (52,53,54,55))
        A("s_lshl_b32 s33, s22, 8")
        A("v_lshl_add_u32 v53, v3, 3, s33")
        A("s_mov_b64 exec, 0xffff")
        A(f"ds_write_b64 v53, v[16:17] offset:{G_PS}")
        A(f"ds_write_b64 v53, v[18:19] offset:{G_PS+128}")
        A("s_mov_b64 exec, -1")
        A("s_waitcnt vmcnt(0) lgkmcnt(0)" if drain else "s_waitcnt lgkmcnt(0)")
        A("s_barrier")
    def wg_sum():
        A("v_and_b32 v54, 31, v1")
        A("v_lshlrev_b32 v54, 3, v54")
        for w in range(8): A(f"ds_read_b64 v[{22+2*w}:{23+2*w}], v54 offset:{G_PS + 256*w}")
        A("s_waitcnt lgkmcnt(0)")
        A("v_add_f32 v20, v22, v24")
        A("v_add_f32 v21, v23, v25")
        for w in range(2,8):
            A(f"v_add_f32 v20, v20, v{22+2*w}")
            A(f"v_add_f32 v21, v21, v{23+2*w}")
    partial_stats("a")
    stamps.stamp(A, 10)
    A("s_cmp_lg_u32 s22, 0")
    A(f"s_cbranch_scc1 {P}WAITST")
    wg_sum()
    A(f"s_mul_i32 s33, s{sLAYER}, {EX_SZ}")
    A("s_lshl_b32 s35, s20, 11          ; rb*4*512")
    A("s_add_u32 s33, s33, s35")
    A(f"s_add_u32 s33, s33, {EX0}")
    A("s_lshl_b32 s35, s21, 9")
    A("s_add_u32 s35, s35, s33")
    A("v_mov_b32 v24, v20")
    A(f"v_mov_b32 v25, s{sTAG}")
    A("v_mov_b32 v26, v21")
    A(f"v_mov_b32 v27, s{sTAG}")
    A("v_lshlrev_b32 v55, 1, v54          ; row*16")
    A("s_mov_b32 exec_hi, 0")
    A("buffer_store_dwordx4 v[24:27], v55, s[12:15], s35 offen sc1")
    A("s_mov_b32 exec_hi, -1")
    A("v_lshrrev_b32 v56, 5, v1")
    A("v_lshl_add_u32 v55, v56, 9, v55")
    def ld():
        A("buffer_load_dwordx4 v[24:27], v55, s[12:15], s33 offen sc1")
        A("buffer_load_dwordx4 v[28:31], v55, s[12:15], s33 offen offset:1024 sc1")
    spin(A, P, "EX", ld, lambda: check_regs(A, [25,27,29,31]))
    A("v_add_f32 v22, v24, v28")
    A("v_add_f32 v23, v26, v30")
    for v in (22,23):
        A(f"v_mov_b32 v24, v{v}")
        A("s_nop 1")
        A(f"v_permlane32_swap_b32 v{v}, v24")
        A("s_nop 1")
        A(f"v_add_f32 v{v}, v{v}, v24")
    A(f"v_mul_f32 v22, {hex(f2u(1.0/576))}, v22")
    A(f"v_mul_f32 v23, {hex(f2u(1.0/576))}, v23")
    A("v_fma_f32 v23, -v22, v22, v23")
    A("v_max_f32 v23, 0, v23")
    A(f"v_add_f32 v23, {hex(f2u(1e-5))}, v23")
    A("v_rsq_f32 v23, v23")
    A("s_nop 0")
    A(f"ds_write_b64 v54, v[22:23] offset:{G_MR}")
    A("s_waitcnt lgkmcnt(0)")
    A.label(f"{P}WAITST")
    A("s_barrier")
    stamps.stamp(A, 11)
    A("v_lshlrev_b32 v53, 3, v3")
    A(f"ds_read_b64 v[24:25], v53 offset:{G_MR}")
    A(f"ds_read_b64 v[26:27], v53 offset:{G_MR+128}")
    A("s_waitcnt lgkmcnt(0)")
    def gate(AC, X, Y, dx):
        for rt in range(2):
            a = AC+4*rt; y = Y+2*rt; mu = 24+2*rt; rs = mu+1
            A(f"v_lshlrev_b32 v52, 16, v{y}")
            A(f"v_and_b32 v53, 0xffff0000, v{y}")
            A(f"v_lshlrev_b32 v54, 16, v{y+1}")
            A(f"v_and_b32 v55, 0xffff0000, v{y+1}")
            for r in range(4):
                A(f"v_sub_f32 v56, v{a+r}, v{mu}")
                A(f"v_mul_f32 v56, v56, v{rs}")
                A(f"v_fmac_f32 v{a+r}, v56, v{52+r}")
            A(f"v_cvt_pk_bf16_f32 v{X+2*rt}, v{a}, v{a+1}")
            A(f"v_cvt_pk_bf16_f32 v{X+2*rt+1}, v{a+2}, v{a+3}")
        A(f"ds_write_b64 v40, v[{X}:{X+1}] offset:{dx}")
        A(f"ds_write_b64 v40, v[{X+2}:{X+3}] offset:{dx + 16*288}")
    gate(ACA, XA_, YA_, 0)
    ifB(lambda: gate(ACB, XB_, YB_, 32), "g")
    A("s_waitcnt lgkmcnt(0)")
    A("s_barrier")
    A("v_lshlrev_b32 v53, 4, v0")
    A(f"v_add_u32 v53, {G_XT}, v53")
    A(f"v_add_u32 v54, {G_XT + 8192}, v5")
    A(f"ds_read_b128 v[28:31], v53")
    A(f"ds_read_b128 v[32:35], v54")
    A("s_waitcnt lgkmcnt(0)")
    A("buffer_store_dwordx4 v[28:31], v60, s[16:19], s32 offen sc1")
    A("s_cmp_lg_u32 s22, 0")
    A(f"s_cbranch_scc1 {P}NS2")
    A("buffer_store_dwordx4 v[32:35], v61, s[16:19], s32 offen sc1")
    A.label(f"{P}NS2")
    return dict(partial_stats=partial_stats, wg_sum=wg_sum, ifB=ifB, regs=(XA_, XB_))

def opg_publish(A, P, h):
    stamps.stampfix(A, 19)
    XA_, XB_ = h["regs"]
    def unpack(AC, X):
        for rt in range(2):
            a = AC+4*rt; x = X+2*rt
            A(f"v_lshlrev_b32 v{a}, 16, v{x}")
            A(f"v_and_b32 v{a+1}, 0xffff0000, v{x}")
            A(f"v_lshlrev_b32 v{a+2}, 16, v{x+1}")
            A(f"v_and_b32 v{a+3}, 0xffff0000, v{x+1}")
    unpack(ACA, XA_)
    h["ifB"](lambda: unpack(ACB, XB_), "u")
    h["partial_stats"]("b", drain=True)
    A("s_cmp_lg_u32 s22, 0")
    A(f"s_cbranch_scc1 {P}NST")
    A("s_lshr_b32 s33, s20, 2")
    A("s_lshl_b32 s33, s33, 4")
    A("s_and_b32 s34, s20, 3")
    A("s_lshl_b32 s34, s34, 2")
    A("s_add_u32 s34, s34, s21")
    A("s_add_u32 s33, s33, s34")
    A("s_lshl_b32 s33, s33, 7")
    A(f"s_add_u32 s33, s33, {F3}")
    set_flag(A, 33, 52)
    stamps.stampfix(A, 23)
    h["wg_sum"]()
    A("v_mov_b32 v24, v20")
    A(f"v_mov_b32 v25, s{sTAG}")
    A("v_mov_b32 v26, v21")
    A(f"v_mov_b32 v27, s{sTAG}")
    A("v_and_b32 v54, 31, v1")
    A("v_lshlrev_b32 v54, 6, v54          ; row*64")
    A("s_lshl_b32 s33, s20, 11          ; rb*32*64")
    A("s_lshl_b32 s35, s21, 4")
    A("s_add_u32 s33, s33, s35")
    A(f"s_add_u32 s33, s33, {ST1}")
    A("s_mov_b32 exec_hi, 0")
    A("buffer_store_dwordx4 v[24:27], v54, s[12:15], s33 offen sc1")
    A("s_mov_b32 exec_hi, -1")
    A.label(f"{P}NST")

V_CSUM = 240

def stats_to_lds(A, s1, s2):
    T = Q.T
    A(f"v_mul_f32 v{s1}, {hex(f2u(1.0/576))}, v{s1}")
    A(f"v_mul_f32 v{s2}, {hex(f2u(1.0/576))}, v{s2}")
    A(f"v_fma_f32 v{s2}, -v{s1}, v{s1}, v{s2}")
    A(f"v_max_f32 v{s2}, 0, v{s2}")
    A(f"v_add_f32 v{s2}, {hex(f2u(1e-5))}, v{s2}")
    A(f"v_rsq_f32 v{s2}, v{s2}")
    A("s_lshl_b32 s30, s25, 7")
    A(f"v_lshl_add_u32 v{T}, v{Q.V_R}, 2, s30")
    A(f"ds_write_b32 v{T}, v{s1} offset:{Q.L_MU}")
    A(f"ds_write_b32 v{T}, v{s2} offset:{Q.L_RS}")
    A(f"ds_write_b32 v{T}, v{V_CSUM} offset:{Q.L_CS}")
    A("s_waitcnt lgkmcnt(0)")

def f1_offset(A, layer, sd):
    A("s_lshl_b32 s30, s24, 6")
    A("s_lshl_b32 s31, s23, 2")
    A("s_add_u32 s30, s30, s31")
    A("s_add_u32 s30, s30, s25")
    A("s_lshl_b32 s30, s30, 7")
    A(f"s_add_u32 s{sd}, s30, {F1 + layer*16*64*FS}")

def f1_flag(A, layer):
    f1_offset(A, layer, 30)
    A("s_waitcnt vmcnt(0)")
    set_flag(A, 30, 80)

def qkv_ids(A):
    Q.decode_id(A)
    Q.setup_scalars(A)
    A("v_and_b32 v1, 63, v0")
    Q.lane_consts(A)

def qkv1(A):
    P = "A_"
    Q.ROT = ROT1
    qkv_ids(A)
    A("s_cmp_ge_u32 s22, 4")
    A(f"s_cbranch_scc1 {P}HELP")
    A("s_load_dwordx2 s[8:9], s[0:1], %d" % KA_WQKV)
    A("s_waitcnt lgkmcnt(0)")
    A("s_mov_b32 s10, %d" % SZ_WQKV)
    A(f"s_mov_b32 s11, {hex(SRD_W3)}")
    def kv_issue():
        t_srds(A)
        A("s_lshl_b32 s34, s2, 2")
        A("s_add_u32 s34, s34, s22")
        tjob_issue(A, 34, 100, 54)
    wpack(A, P+"W", after_gathers=kv_issue)
    stamps.stamp(A, 0)
    tjob_finish(A, 100, 54, 52)
    qkv_ids(A)
    A("s_lshl_b32 s34, s24, 13")
    A(f"s_add_u32 s34, s34, {F0}")
    A("v_lshlrev_b32 v2, 7, v1")
    poll_flags(A, P, "F0", 34, 2, 3)
    set_flag(A, 52, 4)
    stamps.stamp(A, 1)
    Q.issue_w(A, NPW1, "sc1")
    Q.consumer(A, P, QM, QE, KV, "sc1", npre_w=NPW1, wflags="sc1", chunk_barriers=False)
    stamps.stamp(A, 2)
    f1_offset(A, 0, 53)
    A(f"s_branch {P}CONV")
    A.label(f"{P}HELP")
    srd(A, 8, 4, SZ_X)
    Q.helper_voffsets(A)
    A("s_cmp_eq_u32 s25, 1")
    A("s_cselect_b32 s53, 1, 0")
    A("s_cmp_lt_u32 s2, 128")
    A("s_cselect_b32 s53, s53, 0")
    A("s_cmp_lg_u32 s25, 0")
    A(f"s_cbranch_scc1 {P}NST0")
    srd(A, 36, 4, SZ_X)
    stats0_issue(A)
    A("s_waitcnt vmcnt(0)")
    stats0_finish(A)
    A.label(f"{P}NST0")
    A("s_cmp_eq_u32 s53, 0")
    A(f"s_cbranch_scc1 {P}NX0")
    t_srds(A)
    A("s_add_u32 s34, s2, 1024")
    tjob_issue(A, 34, 100, 54)
    A.label(f"{P}NX0")
    A("s_barrier")
    for kc in range(9): Q.issue_x(A, kc, 8)
    A("s_cmp_eq_u32 s53, 0")
    A(f"s_cbranch_scc1 {P}NX1")
    A("s_waitcnt vmcnt(36)")
    tjob_finish(A, 100, 54, 52)
    A("s_waitcnt vmcnt(0)")
    set_flag(A, 52, 10)
    A.label(f"{P}NX1")
    A("s_waitcnt vmcnt(0)")
    stamps.stamp(A, 0)
    A("s_barrier")
    stamps.stamp(A, 1)
    qkv_ids(A)
    A("s_lshl_b32 s30, s24, 2")
    A("s_add_u32 s30, s30, s25")
    A("s_lshl_b32 s30, s30, 11")
    A(f"s_add_u32 s30, s30, {CS4}")
    A(f"v_lshlrev_b32 v28, 2, v{Q.V_R}")
    for q in range(16): A(f"buffer_load_dword v{32+q}, v28, s[12:15], s30 offen offset:{128*q} sc1")
    A("s_lshl_b32 s34, s23, 7")
    A("s_lshl_b32 s35, s25, 5")
    A("s_add_u32 s34, s34, s35")
    A("s_lshl_b32 s34, s34, 4")
    A(f"s_add_u32 s34, s34, {ST0}")
    A(f"v_lshlrev_b32 v29, 4, v{Q.V_R}")
    spin(A, P, "ST", lambda: A("buffer_load_dwordx4 v[16:19], v29, s[12:15], s34 offen sc1"), lambda: check_regs(A, [17,19]))
    for q in range(1,16): A(f"v_add_f32 v32, v32, v{32+q}")
    A(f"v_mov_b32 v{V_CSUM}, v32")
    stats_to_lds(A, 16, 18)
    conv_setup_loads(A, P+"C")
    A("s_barrier")
    stamps.stamp(A, 2)
    conv_setup_build(A, P+"C")
    stamps.stamp(A, 3)
    A.label(f"{P}CONV")
    conv_compute(A, P+"C")
    stamps.stamp(A, 4)

def t_srds(A):
    A("s_load_dwordx2 s[40:41], s[0:1], %d" % KA_BK)
    A("s_load_dwordx2 s[44:45], s[0:1], %d" % KA_BV)
    A("s_load_dwordx2 s[48:49], s[0:1], %d" % KA_SHIFT)
    A("s_waitcnt lgkmcnt(0)")
    for b, n in ((40, SZ_X), (44, SZ_X), (48, SZ_SHIFT)):
        A(f"s_mov_b32 s{b+2}, {n}")
        A(f"s_mov_b32 s{b+3}, {hex(SRD_W3)}")

def qkv2(A):
    P = "B_"
    Q.ROT = ROT2
    qkv_ids(A)
    A("s_cmp_ge_u32 s22, 4")
    A(f"s_cbranch_scc1 {P}HELP")
    A("s_barrier")
    Q.issue_w(A, NPW2, WF2, cap=CAPQ)
    stamps.stampfix(A, 28)
    Q.HOOK_EPI = lambda A: stamps.stampfix(A, 29)
    Q.consumer(A, P, QM+QM_SZ, QE+QE_SZ, KV+KV_LSZ, "sc1", npre_w=NPW2, wflags=WF2, chunk_barriers=True)
    Q.HOOK_EPI = None
    stamps.stampfix(A, 30)
    f1_flag(A, 1)
    A(f"s_branch {P}DONE")
    A.label(f"{P}HELP")
    srd(A, 8, 6, X2_SZ, off=X2)
    Q.helper_voffsets(A)
    A("s_lshl_b32 s34, s23, 11")
    A(f"s_add_u32 s34, s34, {F3}")
    A("v_and_b32 v2, 15, v1")
    A("v_lshlrev_b32 v2, 7, v2")
    A("buffer_load_dword v4, v2, s[12:15], s34 offen sc1")
    A("s_waitcnt vmcnt(0)")
    check_regs(A, [4])
    A("s_cselect_b32 s36, 1, 0")
    A("s_barrier")
    A("s_cmp_lg_u32 s36, 0")
    A(f"s_cbranch_scc1 {P}F3_OK2")
    poll_flags(A, P, "F3", 34, 2, 4)
    A.label(f"{P}F3_OK2")
    stamps.stamp(A, 12)
    NPRE = NPX2
    ops = []
    for kc in range(NPRE):
        Q.issue_x(A, kc, 8, XF2); ops += [kc]*4
    A("s_lshl_b32 s34, s23, 7")
    A("s_lshl_b32 s35, s25, 5")
    A("s_add_u32 s34, s34, s35")
    A("s_lshl_b32 s34, s34, 6")
    A(f"s_add_u32 s34, s34, {ST1}")
    A(f"v_lshlrev_b32 v29, 6, v{Q.V_R}")
    A(f"v_lshl_add_u32 v29, v{Q.V_G}, 5, v29")
    def ldst():
        A("buffer_load_dwordx4 v[16:19], v29, s[12:15], s34 offen sc1")
        A("buffer_load_dwordx4 v[20:23], v29, s[12:15], s34 offen offset:16 sc1")
    for kc in range(9):
        last = max(i for i, o in enumerate(ops) if o == kc)
        A(f"s_waitcnt vmcnt({len(ops) - 1 - last})")
        A("s_barrier")
        if kc + NPRE < 9:
            Q.issue_x(A, kc + NPRE, 8, XF2); ops += [kc+NPRE]*4
        if kc == min(4, 8-NPRE+1):
            ldst(); ops += ["s"]*2
        if kc == 0: stamps.stampfix(A, 28)
        if kc == 4: stamps.stampfix(A, 29)
        if kc == 8: stamps.stampfix(A, 30)
    A("s_waitcnt vmcnt(0)")
    check_regs(A, [17,19,21,23])
    A(f"s_cbranch_scc1 {P}STOK")
    spin(A, P, "ST", ldst, lambda: check_regs(A, [17,19,21,23]))
    A.label(f"{P}STOK")
    A("v_add_f32 v16, v16, v20")
    A("v_add_f32 v18, v18, v22")
    for v in (16, 18):
        A(f"v_mov_b32 v20, v{v}")
        A("s_nop 1")
        A(f"v_permlane32_swap_b32 v{v}, v20")
        A("s_nop 1")
        A(f"v_add_f32 v{v}, v{v}, v20")
    stats_to_lds(A, 16, 18)
    A("s_barrier")
    A.label(f"{P}DONE")

def gen_mega(name="interleave_layers__softmax_full_mha__ssm_conv_h3__prompt_kernel", opt=("prio",)):
    A = Asm()
    A("s_cmp_ge_u32 s2, 256")
    A("s_cbranch_scc1 M_END")
    stamps.init(A)
    A("s_load_dwordx2 s[4:5], s[0:1], %d" % KA_X)
    A("s_load_dwordx2 s[6:7], s[0:1], %d" % KA_WS)
    A("v_lshrrev_b32 v2, 6, v0")
    A("v_and_b32 v1, 63, v0")
    A("v_readfirstlane_b32 s22, v2      ; wave")
    A("s_waitcnt lgkmcnt(0)")
    A(f"s_add_u32 s56, s6, {EPOCH}")
    A("s_addc_u32 s57, s7, 0")
    A(f"s_load_dword s{sTAG}, s[56:57], 0")
    srd(A, 12, 6, WS_USED)
    A(f"s_mov_b32 s{sLAYER}, 0")
    A("s_mov_b32 s62, 0")
    A("s_mov_b32 s63, 0")
    A("s_mov_b32 s64, 0")
    A("s_waitcnt lgkmcnt(0)")
    A(f"s_mul_i32 s{sTAG}, s{sTAG}, 0x9e3779b1")
    A(f"s_add_u32 s{sTAG}, s{sTAG}, 0x7f4a7c15")
    stamps.stamp(A, 14)
    stamps.cyc_start(A)
    qkv1(A)
    A.label("M_ATT")
    A("s_and_b32 s20, s2, 7")
    A("s_lshr_b32 s21, s2, 3")
    A("s_lshl_b32 s20, s20, 2")
    A("s_and_b32 s23, s21, 3")
    A("s_add_u32 s20, s20, s23          ; head")
    A("s_lshr_b32 s21, s21, 2           ; qb")
    A("s_cmp_lg_u32 s22, 0")
    A("s_cbranch_scc1 M_F1W")
    A("s_lshr_b32 s34, s20, 1")
    A("s_lshl_b32 s34, s34, 13")
    A(f"s_lshl_b32 s35, s{sLAYER}, 17")
    A("s_add_u32 s34, s34, s35")
    A(f"s_add_u32 s34, s34, {F1}")
    A("v_and_b32 v1, 63, v0")
    A("v_lshlrev_b32 v2, 7, v1")
    poll_flags(A, "M_", "F1", 34, 2, 3)
    A.label("M_F1W")
    A("s_waitcnt lgkmcnt(0)")
    A("s_barrier")
    stamps.stamp(A, 5)
    def after_s0(A):
        A(f"s_cmp_lg_u32 s{sLAYER}, 0")
        A("s_cbranch_scc1 M_NFY")
        A("s_cmp_lg_u32 s22, 0")
        A("s_cbranch_scc1 M_NFY")
        A("s_lshl_b32 s36, s2, 2")
        A(f"s_add_u32 s36, s36, {FY}")
        set_flag(A, 36, 170)
        A.label("M_NFY")
    AT.body(A, "AT_", opt, fused=True, hook_after_s0=after_s0)
    stamps.stamp(A, 6)
    A("s_waitcnt vmcnt(0)")
    A("s_lshl_b32 s34, s25, 5")
    A("s_add_u32 s34, s34, s20")
    A("s_lshl_b32 s34, s34, 7")
    A(f"s_lshl_b32 s35, s{sLAYER}, 18")
    A("s_add_u32 s34, s34, s35")
    A(f"s_add_u32 s34, s34, {F2}")
    set_flag(A, 34, 170)
    A(f"s_cmp_lg_u32 s{sLAYER}, 0")
    A("s_cbranch_scc1 M_L1")
    A("v_and_b32 v1, 63, v0")
    A("v_lshlrev_b32 v2, 4, v1")
    A(f"s_mov_b32 s34, {FY}")
    poll_flags(A, "M_", "FY", 34, 2, 4, nd=4)
    srd(A, 8, 4, SZ_X)
    srd(A, 16, 6, X2_SZ, off=X2)
    A("s_branch M_L2")
    A.label("M_L1")
    A("s_load_dwordx2 s[4:5], s[0:1], %d" % KA_OUT)
    srd(A, 8, 6, X2_SZ, off=X2)
    A("s_waitcnt lgkmcnt(0)")
    srd(A, 16, 4, SZ_X)
    A.label("M_L2")
    opg_ids(A)
    A("s_lshl_b32 s38, s20, 12")
    A(f"s_lshl_b32 s35, s{sLAYER}, 18")
    A("s_add_u32 s38, s38, s35")
    A(f"s_add_u32 s38, s38, {F2}")
    A("v_and_b32 v52, 31, v0")
    A("v_lshlrev_b32 v52, 7, v52")
    A("s_mov_b32 s39, 0")
    A("s_cmp_lg_u32 s22, 0")
    A("s_cbranch_scc1 M_F2A")
    A("buffer_load_dword v53, v52, s[12:15], s38 offen sc1")
    A("s_waitcnt vmcnt(0)")
    check_regs(A, [53])
    A("s_cselect_b32 s39, 1, 0")
    A.label("M_F2A")
    if POLLBAR: A("s_barrier")
    opg_prefetch(A, "G_")
    A("s_cmp_lg_u32 s22, 0")
    A("s_cbranch_scc1 M_F2W")
    A("s_cmp_lg_u32 s39, 0")
    A("s_cbranch_scc1 M_F2W")
    poll_flags(A, "M_", "F2", 38, 52, 53)
    A.label("M_F2W")
    A("s_barrier")
    stamps.stamp(A, 8)
    h = opg_main(A, "G_")
    A(f"s_cmp_lg_u32 s{sLAYER}, 0")
    A("s_cbranch_scc1 M_FIN")
    opg_publish(A, "G_", h)
    A("s_barrier")
    stamps.stamp(A, 7)
    qkv2(A)
    stamps.stamp(A, 13)
    A(f"s_mov_b32 s{sLAYER}, 1")
    A(f"s_mov_b32 s62, {KV_LSZ}")
    A(f"s_mov_b32 s63, {QM_SZ}")
    A(f"s_mov_b32 s64, {QE_SZ}")
    A("s_branch M_ATT")
    A.label("M_FIN")
    A("s_cmp_lg_u32 s2, 0")
    A("s_cbranch_scc1 M_FIN2")
    A("s_cmp_lg_u32 s22, 0")
    A("s_cbranch_scc1 M_FIN2")
    A(f"s_mov_b32 s34, {EPOCH}")
    set_flag(A, 34, 52)
    A.label("M_FIN2")
    A("s_waitcnt vmcnt(0)")
    stamps.stamp(A, 15)
    if stamps.DBG: stamps.flush_debug(A, [0,1,2,4,5,6,8,7,13,21,22,24,27,31,16,18])
    else: stamps.flush(A, 0, 14, 22, vt=52)
    A.label("M_END")
    A("s_endpgm")
    txt = A.text().replace(" lds sc1", " sc1 lds")
    return kernel_header(name) + txt, kernel_desc(name, 256), "; @launch grid=(256,1,1) block=(512,1,1) lds=163840"
```

```python
from layout import *
import os
ENABLED = os.environ.get("STAMPS", "0") == "1"
STAMP_OFF = 64*1024*1024
def init(A):
    if not ENABLED: return
    for i in range(32): A(f"s_mov_b32 s{68+i}, 0")
def stamp(A, idx):
    if not ENABLED: return
    A("s_memrealtime s[66:67]")
    A("s_waitcnt lgkmcnt(0)")
    A("s_cmp_eq_u32 s61, 0")
    A(f"s_cselect_b32 s{68+idx}, s66, s{68+idx}")
    A(f"s_cselect_b32 s{84+idx}, s{84+idx}, s66")
def flush(A, kidx, n, wave_sgpr, vt=52):
    if not ENABLED: return
    A("s_mov_b64 exec, 1")
    A(f"s_add_u32 s8, s6, {STAMP_OFF}")
    A("s_addc_u32 s9, s7, 0")
    A("s_mov_b32 s10, 0x1000000")
    A("s_mov_b32 s11, 0x20000")
    A("s_lshl_b32 s20, s2, 3")
    A(f"s_add_u32 s20, s20, s{wave_sgpr}")
    A("s_lshl_b32 s20, s20, 7")
    for i in range(32):
        A(f"v_mov_b32 v{vt}, s{68+i}")
        A(f"v_mov_b32 v{vt+1}, {4*i}")
        A(f"buffer_store_dword v{vt}, v{vt+1}, s[8:11], s20 offen")
        A("s_nop 1")
    A("s_waitcnt vmcnt(0)")

def stampfix(A, i32):
    if not ENABLED: return
    A("s_memrealtime s[66:67]")
    A("s_waitcnt lgkmcnt(0)")
    A(f"s_mov_b32 s{68+i32}, s66")

def cyc_start(A):
    if not ENABLED: return
    A("s_memtime s[66:67]")
    A("s_waitcnt lgkmcnt(0)")
    A("s_mov_b32 s100, s66")
def cyc_mark(A, i32):
    if not ENABLED: return
    A("s_memtime s[66:67]")
    A("s_waitcnt lgkmcnt(0)")
    A(f"s_sub_u32 s{68+i32}, s66, s100")
```

```python
from layout import *
import os
ENABLED = os.environ.get("STAMPS", "0") == "1"
STAMP_OFF = 64*1024*1024
def init(A):
    if not ENABLED: return
    for i in range(32): A(f"s_mov_b32 s{68+i}, 0")
def stamp(A, idx):
    if not ENABLED: return
    A("s_memrealtime s[66:67]")
    A("s_waitcnt lgkmcnt(0)")
    A("s_cmp_eq_u32 s61, 0")
    A(f"s_cselect_b32 s{68+idx}, s66, s{68+idx}")
    A(f"s_cselect_b32 s{84+idx}, s{84+idx}, s66")
def flush(A, kidx, n, wave_sgpr, vt=52):
    if not ENABLED: return
    A("s_mov_b64 exec, 1")
    A(f"s_add_u32 s8, s6, {STAMP_OFF}")
    A("s_addc_u32 s9, s7, 0")
    A("s_mov_b32 s10, 0x1000000")
    A("s_mov_b32 s11, 0x20000")
    A("s_lshl_b32 s20, s2, 3")
    A(f"s_add_u32 s20, s20, s{wave_sgpr}")
    A("s_lshl_b32 s20, s20, 7")
    for i in range(32):
        A(f"v_mov_b32 v{vt}, s{68+i}")
        A(f"v_mov_b32 v{vt+1}, {4*i}")
        A(f"buffer_store_dword v{vt}, v{vt+1}, s[8:11], s20 offen")
        A("s_nop 1")
    A("s_waitcnt vmcnt(0)")

def stampfix(A, i32):
    if not ENABLED: return
    A("s_memrealtime s[66:67]")
    A("s_waitcnt lgkmcnt(0)")
    A(f"s_mov_b32 s{68+i32}, s66")

def cyc_start(A):
    if not ENABLED: return
    A("s_memtime s[66:67]")
    A("s_waitcnt lgkmcnt(0)")
    A("s_mov_b32 s100, s66")
def cyc_mark(A, i32):
    if not ENABLED: return
    A("s_memtime s[66:67]")
    A("s_waitcnt lgkmcnt(0)")
    A(f"s_sub_u32 s{68+i32}, s66, s100")

DBG = os.environ.get("DBGOUT", "0") == "1"
def flush_debug(A, order):
    if not (ENABLED and DBG): return
    A("s_cmp_lg_u32 s2, 0")
    A("s_cbranch_scc1 M_NODBG")
    A("s_cmp_lg_u32 s22, 0")
    A("s_cbranch_scc1 M_NODBG")
    A("s_load_dwordx2 s[8:9], s[0:1], %d" % KA_DBG)
    A("s_waitcnt lgkmcnt(0)")
    A("s_mov_b32 s10, 256")
    A("s_mov_b32 s11, 0x20000")
    A("s_mov_b64 exec, 1")
    for j, i in enumerate(order):
        A(f"s_sub_u32 s20, s{68+i}, s{68+14}")
        A("v_mov_b32 v52, s20")
        A(f"v_mov_b32 v53, {4*j}")
        A("buffer_store_dword v52, v53, s[8:11], 0 offen")
        A("s_nop 1")
    A("s_waitcnt vmcnt(0)")
    A("s_mov_b64 exec, -1")
    A.label("M_NODBG")
```

```python
from asmlib import *
from layout import *
import stamps as stamps_old, stamps2 as stamps, struct
stamps_old.ENABLED = False
import k_qkv3 as Q
import os
ROT1 = os.environ.get('ROT1','1')=='1'
ROT2 = os.environ.get('ROT2','1')=='1'
ROTO = os.environ.get('ROTO','1')=='1'
import k_att2 as AT
def f2u(x): return struct.unpack("<I", struct.pack("<f", x))[0]

OOB = 0x40000000
SPIN_MAX = 1 << 20
sTAG, sLAYER = 60, 61
FY = EPOCH + 1024

def spin(A, P, name, load, check, cnt=58):
    A(f"s_mov_b32 s{cnt}, 0")
    A.label(f"{P}{name}")
    load()
    A("s_waitcnt vmcnt(0)")
    check()
    A(f"s_cbranch_scc1 {P}{name}_OK")
    if SLEEP: A(f"s_sleep {SLEEP}")
    A(f"s_add_u32 s{cnt}, s{cnt}, 1")
    A(f"s_cmp_lt_u32 s{cnt}, {SPIN_MAX}")
    A(f"s_cbranch_scc1 {P}{name}")
    A.label(f"{P}{name}_OK")

def check_regs(A, regs):
    A(f"v_cmp_eq_u32 vcc, s{sTAG}, v{regs[0]}")
    for i, r in enumerate(regs[1:]):
        A(f"v_cmp_eq_u32 s[56:57], s{sTAG}, v{r}")
        A("s_nop 1")
        A("s_and_b64 vcc, vcc, s[56:57]")
    A("s_nop 1")
    A("s_cmp_eq_u64 vcc, -1")

def poll_flags(A, P, name, soff, vaddr, vdst, nd=1):
    ld = {1:"buffer_load_dword", 2:"buffer_load_dwordx2", 4:"buffer_load_dwordx4"}[nd]
    dst = f"v{vdst}" if nd == 1 else f"v[{vdst}:{vdst+nd-1}]"
    spin(A, P, name, lambda: A(f"{ld} {dst}, v{vaddr}, s[12:15], s{soff} offen sc1"),
         lambda: check_regs(A, list(range(vdst, vdst+nd))))

def set_flag(A, soff, vt):
    A(f"v_mov_b32 v{vt}, s{sTAG}")
    A(f"v_mov_b32 v{vt+1}, 0")
    A("s_mov_b64 exec, 1")
    A(f"buffer_store_dword v{vt}, v{vt+1}, s[12:15], s{soff} offen sc1")
    A("s_mov_b64 exec, -1")

def wpack(A, P, after_gathers=None):
    A("s_lshr_b32 s20, s2, 4            ; cg'")
    A("s_bfe_u32 s21, s2, 0x20002       ; t'")
    A("s_and_b32 s23, s2, 3             ; quarter")
    A("v_and_b32 v3, 31, v1             ; f")
    A("v_lshrrev_b32 v4, 5, v1          ; g")
    A("s_mul_i32 s24, s20, 36           ; a*18")
    A("v_lshrrev_b32 v5, 4, v3")
    A("v_mul_u32_u24 v5, 18, v5")
    A("s_cmp_eq_u32 s21, 3")
    A(f"s_cbranch_scc1 {P}T3")
    A("s_cmp_eq_u32 s21, 2")
    A(f"s_cbranch_scc1 {P}T2")
    A("v_bfe_u32 v6, v3, 2, 1")
    A("v_lshlrev_b32 v6, 3, v6")
    A("v_bfe_u32 v7, v3, 3, 1")
    A("v_lshl_add_u32 v6, v7, 2, v6")
    A("v_and_b32 v7, 3, v3")
    A("v_add3_u32 v6, v6, v7, v5")
    A("s_mul_i32 s25, s21, 576")
    A("s_add_u32 s25, s25, s24")
    A("v_add_u32 v6, s25, v6")
    A("v_lshlrev_b32 v6, 1, v6")
    A(f"s_branch {P}D")
    A.label(f"{P}T2")
    A("v_and_b32 v6, 15, v3")
    A("v_add_u32 v6, v6, v5")
    A("s_add_u32 s25, s24, 1152")
    A("v_add_u32 v6, s25, v6")
    A("v_lshlrev_b32 v6, 1, v6")
    A(f"s_branch {P}D")
    A.label(f"{P}T3")
    A("v_lshrrev_b32 v6, 2, v3")
    A("v_mul_u32_u24 v6, 576, v6")
    A("v_bfe_u32 v7, v3, 1, 1")
    A("v_mul_u32_u24 v7, 18, v7")
    A("v_and_b32 v8, 1, v3")
    A("v_add3_u32 v6, v6, v7, v8")
    A("s_add_u32 s25, s24, 16")
    A("v_add_u32 v6, s25, v6")
    A("v_lshlrev_b32 v6, 1, v6")
    A("v_cmp_gt_u32 vcc, 12, v3")
    A(f"v_mov_b32 v7, {hex(OOB)}")
    A("s_nop 0")
    A("v_cndmask_b32 v6, v7, v6, vcc")
    A.label(f"{P}D")
    A("v_mul_u32_u24 v7, 27648, v4")
    A("v_add_u32 v6, v6, v7")
    A("s_lshl_b32 s25, s22, 1")
    A("s_add_u32 s25, s25, 1")
    A("s_cmp_eq_u32 s22, 0")
    A("s_cselect_b32 s25, 0, s25")
    A("s_mul_i32 s26, s23, 9")
    A("s_add_u32 s25, s25, s26          ; ks0")
    A("s_mul_i32 s26, s25, %d" % (16*3456))
    def loads(j):
        for i in range(8):
            A(f"s_add_u32 s27, s26, {(16*j+i)*3456}")
            A(f"buffer_load_ushort v{16+8*j+i}, v6, s[8:11], s27 offen")
    loads(0); loads(1)
    A("s_cmp_lg_u32 s22, 0")
    A(f"s_cbranch_scc1 {P}L2")
    loads(2)
    A.label(f"{P}L2")
    if after_gathers: after_gathers()

    A("s_lshl_b32 s27, s20, 2")
    A("s_add_u32 s27, s27, s21")
    A("s_mul_i32 s28, s27, 36")
    A("s_add_u32 s28, s28, s25")
    A("s_lshl_b32 s28, s28, 10")
    if WP: A(f"s_add_u32 s28, s28, {WP}")
    A("v_lshlrev_b32 v9, 4, v1")
    A("v_mov_b32 v10, 0")
    A("s_mov_b32 s29, 0x3f803f80")
    A("s_waitcnt vmcnt(20)")
    def pack(j):
        b = 16+8*j; d = 48+4*j
        for q in range(4): A(f"v_lshl_or_b32 v{d+q}, v{b+2*q+1}, 16, v{b+2*q}")
        A(f"buffer_store_dwordx4 v[{d}:{d+3}], v9, s[12:15], s28 offen offset:{1024*j} sc1")
        for q in range(4): A(f"v_dot2_f32_bf16 v10, v{d+q}, s29, v10")
    pack(0); pack(1)
    A("s_cmp_lg_u32 s22, 0")
    A(f"s_cbranch_scc1 {P}P2")
    pack(2)
    A.label(f"{P}P2")
    A("s_nop 2")
    A("v_mov_b32 v11, v10")
    A("s_nop 1")
    A("v_permlane32_swap_b32 v10, v11")
    A("s_nop 1")
    A("v_add_f32 v10, v10, v11")
    A("s_lshl_b32 s28, s27, 4")
    A("s_lshl_b32 s29, s23, 2")
    A("s_add_u32 s28, s28, s29")
    A("s_add_u32 s28, s28, s22")
    A("s_lshl_b32 s28, s28, 7")
    A(f"s_add_u32 s28, s28, {CS4}")
    A("v_lshlrev_b32 v12, 2, v3")
    A("s_mov_b32 exec_hi, 0")
    A("buffer_store_dword v10, v12, s[12:15], s28 offen sc1")
    A("s_mov_b32 exec_hi, -1")
    A("s_waitcnt vmcnt(0)")
    A("s_and_b32 s28, s2, 15")
    A("s_lshl_b32 s28, s28, 2")
    A("s_add_u32 s28, s28, s22")
    A("s_lshl_b32 s29, s20, 6")
    A("s_add_u32 s28, s28, s29")
    A("s_lshl_b32 s28, s28, 7")
    A(f"s_add_u32 s28, s28, {F0}")
    set_flag(A, 28, 10)
    A("s_barrier")

def wopack_issue(A, P):
    A("s_load_dwordx2 s[8:9], s[0:1], %d" % KA_WO)
    A("s_and_b32 s20, s2, 7")
    A("s_mul_i32 s20, s20, 81")
    A("s_lshr_b32 s21, s2, 3")
    A("s_mul_i32 s21, s21, 3")
    A("s_add_u32 s20, s20, s21")
    A("s_add_u32 s20, s20, s22          ; f'")
    A("s_mul_hi_u32 s23, s20, %d        ; ks = f'/36" % ((2**32+35)//36))
    A("s_mul_i32 s21, s23, 36")
    A("s_sub_u32 s21, s20, s21          ; j")
    A("v_and_b32 v208, 15, v1")
    A("v_lshrrev_b32 v209, 4, v1          ; kg")
    A("s_lshl_b32 s24, s21, 4           ; n0")
    A("v_add_u32 v210, s24, v208")
    A("v_lshlrev_b32 v210, 1, v210")
    A("s_mul_i32 s59, s21, 18")
    A("s_add_u32 s59, s59, s23")
    A("s_lshl_b32 s59, s59, 10")
    A(f"s_add_u32 s59, s59, {WOP}       ; destination")
    A("s_waitcnt lgkmcnt(0)")
    A("s_mov_b32 s10, %d" % SZ_WO)
    A(f"s_mov_b32 s11, {hex(SRD_W3)}")
    A("s_cmp_ge_u32 s23, 16")
    A(f"s_cbranch_scc1 {P}EXT")
    A("v_lshrrev_b32 v211, 1, v209")
    A("v_mul_u32_u24 v211, 18, v211")
    A("v_and_b32 v212, 1, v209")
    A("v_lshl_add_u32 v211, v212, 2, v211")
    A("v_mul_u32_u24 v211, 1152, v211")
    A("v_add_u32 v211, v211, v210")
    A("s_mul_i32 s25, s23, %d" % (36*1152))
    for i in range(8):
        A(f"s_add_u32 s26, s25, {((i&3) + 8*(i>>2))*1152}")
        A(f"buffer_load_ushort v{200+i}, v211, s[8:11], s26 offen")
    A(f"s_branch {P}ST")
    A.label(f"{P}EXT")
    A("v_mul_u32_u24 v211, %d, v209" % (72*1152))
    A("v_add_u32 v211, v211, v210")
    A("s_sub_u32 s25, s23, 16")
    A("s_mul_i32 s25, s25, %d" % (288*1152))
    for i in range(8):
        A(f"s_add_u32 s26, s25, {(18*(i>>1)+16+(i&1))*1152}")
        A(f"buffer_load_ushort v{200+i}, v211, s[8:11], s26 offen")
    A.label(f"{P}ST")

def wopack_finish(A):
    A("v_lshlrev_b32 v208, 4, v1")
    for q in range(4): A(f"v_lshl_or_b32 v{212+q}, v{200+2*q+1}, 16, v{200+2*q}")
    A("buffer_store_dwordx4 v[212:215], v208, s[12:15], s59 offen sc1")

def wopack_cond(A, lab):
    A("s_cmp_ge_u32 s22, 3")
    A(f"s_cbranch_scc1 {lab}")
    A("s_cmp_ge_u32 s2, 216")
    A(f"s_cbranch_scc1 {lab}")

def stats0_issue(A):
    A("s_lshl_b32 s20, s2, 3")
    A("v_lshrrev_b32 v141, 3, v1")
    A("v_add_u32 v141, s20, v141          ; row")
    A("v_and_b32 v142, 7, v1             ; c")
    A("v_mul_u32_u24 v143, 1152, v141")
    A("v_lshl_add_u32 v143, v142, 4, v143")
    for m in range(9):
        A(f"buffer_load_dwordx4 v[{100+4*m}:{103+4*m}], v143, s[36:39], 0 offen offset:{128*m}")

def stats0_finish(A):
    A("v_mov_b32 v136, 0")
    A("v_mov_b32 v138, 0")
    A("s_mov_b32 s56, 0x3f803f80")
    for m in range(9):
        for j in range(4):
            A(f"v_dot2_f32_bf16 v136, v{100+4*m+j}, s56, v136")
            A(f"v_dot2_f32_bf16 v138, v{100+4*m+j}, v{100+4*m+j}, v138")
    for v in (136, 138):
        A("s_nop 2")
        A(f"v_add_f32_dpp v{v}, v{v}, v{v} quad_perm:[1,0,3,2] row_mask:0xf bank_mask:0xf")
        A("s_nop 1")
        A(f"v_add_f32_dpp v{v}, v{v}, v{v} quad_perm:[2,3,0,1] row_mask:0xf bank_mask:0xf")
        A("s_nop 1")
        A(f"v_add_f32_dpp v{v}, v{v}, v{v} row_half_mirror row_mask:0xf bank_mask:0xf")
    A(f"v_mov_b32 v137, s{sTAG}")
    A(f"v_mov_b32 v139, s{sTAG}")
    A("v_lshlrev_b32 v140, 4, v141")
    A("v_cmp_eq_u32 vcc, 0, v142")
    A(f"s_mov_b32 s20, {ST0}")
    A("s_and_saveexec_b64 s[30:31], vcc")
    A("buffer_store_dwordx4 v[136:139], v140, s[12:15], s20 offen sc1")
    A("s_mov_b64 exec, -1")

def tjob_issue(A, sJ, R, sS):
    v = lambda n: f"v{R+n}"
    A(f"s_mul_hi_u32 s{sS}, s{sJ}, %d        ; tb" % ((2**32+35)//36))
    A(f"s_mul_i32 s{sS+1}, s{sS}, 36")
    A(f"s_sub_u32 s{sS+1}, s{sJ}, s{sS+1}        ; g16")
    A(f"v_and_b32 {v(2)}, 7, v1              ; tg")
    A(f"v_lshrrev_b32 {v(3)}, 3, v1")
    A(f"s_lshl_b32 s30, s{sS}, 6           ; t0")
    A(f"v_lshl_add_u32 {v(4)}, {v(2)}, 3, s30    ; T")
    A(f"s_lshl_b32 s30, s{sS+1}, 3")
    A(f"v_add_u32 {v(5)}, s30, {v(3)}")
    A(f"v_mul_u32_u24 {v(6)}, 1152, {v(4)}")
    A(f"v_lshl_add_u32 {v(6)}, {v(5)}, 2, {v(6)}")
    A(f"v_cmp_eq_u32 vcc, 0, {v(4)}")
    A(f"v_mov_b32 {v(10)}, {hex(OOB)}")
    for j in range(3):
        A(f"v_subrev_u32 {v(7+j)}, {(3-j)*1152}, {v(6)}")
        A(f"v_cndmask_b32 {v(7+j)}, {v(7+j)}, {v(10)}, vcc")
    A(f"v_lshlrev_b32 {v(10)}, 4, {v(5)}")
    A(f"buffer_load_dwordx4 v[{R+12}:{R+15}], {v(10)}, s[48:51], 0 offen")
    for j in range(3): A(f"buffer_load_dword {v(16+j)}, {v(7+j)}, s[40:43], 0 offen")
    for m in range(8):
        A(f"s_mov_b32 s30, {m*1152}")
        A(f"buffer_load_dword {v(19+m)}, {v(6)}, s[40:43], s30 offen")
    for m in range(8):
        A(f"s_mov_b32 s30, {m*1152}")
        A(f"buffer_load_dword {v(28+m)}, {v(6)}, s[44:47], s30 offen")

def tjob_finish(A, R, sS, sF):
    v = lambda n: f"v{R+n}"
    for c in range(2):
        A(f"v_lshlrev_b32 {v(40+4*c)}, 16, {v(12+2*c)}")
        A(f"v_and_b32 {v(41+4*c)}, 0xffff0000, {v(12+2*c)}")
        A(f"v_lshlrev_b32 {v(42+4*c)}, 16, {v(13+2*c)}")
        A(f"v_and_b32 {v(43+4*c)}, 0xffff0000, {v(13+2*c)}")
    for j in range(11):
        A(f"v_lshlrev_b32 {v(48+j)}, 16, {v(16+j)}")
        A(f"v_and_b32 {v(60+j)}, 0xffff0000, {v(16+j)}")
    for m in range(8):
        A(f"v_lshlrev_b32 {v(72+m)}, 16, {v(28+m)}")
        A(f"v_and_b32 {v(80+m)}, 0xffff0000, {v(28+m)}")
    for c in range(2):
        kb = 48+12*c; wb = 40+4*c; vb = 72+8*c
        for m in range(8):
            t = v(88 + (m & 1))
            A(f"v_mul_f32 {t}, {v(kb+m)}, {v(wb+3)}")
            A(f"v_fmac_f32 {t}, {v(kb+m+1)}, {v(wb+2)}")
            A(f"v_fmac_f32 {t}, {v(kb+m+2)}, {v(wb+1)}")
            A(f"v_fmac_f32 {t}, {v(kb+m+3)}, {v(wb+0)}")
            A(f"v_mul_f32 {v(vb+m)}, {t}, {v(vb+m)}")
        for mm in range(4):
            A(f"v_cvt_pk_bf16_f32 {v(92+4*c+mm)}, {v(vb+7-2*mm)}, {v(vb+6-2*mm)}")
    A(f"v_sub_u32 {v(6)}, 2040, {v(4)}")
    A(f"v_lshlrev_b32 {v(6)}, 1, {v(6)}")
    A(f"v_lshl_add_u32 {v(6)}, {v(5)}, 13, {v(6)}")
    A(f"s_mov_b32 s30, {XR}")
    A(f"buffer_store_dwordx4 v[{R+92}:{R+95}], {v(6)}, s[12:15], s30 offen sc1")
    A(f"v_add_u32 {v(7)}, 4096, {v(6)}")
    A(f"buffer_store_dwordx4 v[{R+96}:{R+99}], {v(7)}, s[12:15], s30 offen sc1")
    A(f"s_lshl_b32 s{sF}, s{sS+1}, 5")
    A(f"s_add_u32 s{sF}, s{sF}, s{sS}")
    A(f"s_lshl_b32 s{sF}, s{sF}, 7")
    A(f"s_add_u32 s{sF}, s{sF}, {FT}")

CP = 4160; XROFF = 4*CP; CPITCH = 21248
CB = Q.XB
L_CRED = CB + 3*CPITCH
assert L_CRED + 8*5120 <= 163840

def conv_setup_loads(A, P):
    A("s_load_dwordx2 s[16:17], s[0:1], %d" % KA_SSMK)
    A("s_lshr_b32 s30, s2, 3")
    A("s_lshr_b32 s31, s2, 6")
    A("s_add_u32 s31, s31, 32")
    A("v_and_b32 v2, 31, v1")
    A("v_lshlrev_b32 v2, 7, v2")
    A("v_mov_b32 v3, s30")
    A("v_mov_b32 v4, s31")
    A("v_cmp_gt_u32 vcc, 32, v1")
    A("s_waitcnt lgkmcnt(0)")
    A(f"s_mov_b32 s34, {FT}")
    A("v_cndmask_b32 v3, v4, v3, vcc")
    A("v_lshl_add_u32 v2, v3, 12, v2")
    A("s_mov_b32 s18, %d" % SZ_SSMK)
    A(f"s_mov_b32 s19, {hex(SRD_W3)}")
    A("v_lshlrev_b32 v3, 4, v1          ; lane*16")
    A("s_lshr_b32 s42, s25, 1")
    A("s_lshl_b32 s43, s2, 1")
    A("s_add_u32 s43, s43, s42          ; channel")
    A("s_lshl_b32 s43, s43, 12")
    A(f"s_mul_i32 s42, s42, {CPITCH}")
    A(f"s_add_u32 s42, s42, {CB}")
    A("s_and_b32 s47, s25, 1")
    A("s_lshl_b32 s47, s47, 11")
    for j in range(2):
        A(f"s_add_u32 s{48+j}, s47, {1024*j}")
        A(f"s_add_u32 s{44+j}, s42, s{48+j}")
        A(f"s_add_u32 s{40+j}, s43, s{48+j}") if j == 0 else A(f"s_add_u32 s41, s43, s49")
    A("s_lshl_b32 s50, s25, 10")
    A(f"s_add_u32 s46, s50, {CB + 2*CPITCH}")
    A("s_lshr_b32 s43, s2, 2")
    A("s_add_u32 s43, s43, 512")
    A("s_lshl_b32 s43, s43, 12")
    A("s_add_u32 s42, s43, s50")
    def kload(j):
        b = 16+8*j
        A(f"buffer_load_dwordx4 v[{b}:{b+3}], v3, s[16:19], s{40+j} offen")
        A(f"buffer_load_dwordx2 v[{b+4}:{b+5}], v3, s[16:19], s{40+j} offen offset:16")
    def xload(j):
        A(f"s_add_u32 s38, s{40+j}, {XR}")
        A(f"buffer_load_dwordx4 v[{64+4*j}:{67+4*j}], v3, s[12:15], s38 offen sc1")
    poll_flags(A, P, "FT", 34, 2, 5)
    for j in range(3): kload(j); xload(j)

def conv_setup_build(A, P):
    A("s_waitcnt vmcnt(0)")
    def build(j):
        b = 16+8*j
        A(f"v_add_u32 v6, s{44+j}, v3")
        A(f"v_add_u32 v7, {XROFF}, v6")
        A(f"ds_write_b128 v7, v[{64+4*j}:{67+4*j}]")
        A(f"ds_write_b128 v6, v[{b}:{b+3}] offset:32")
        A(f"v_alignbit_b32 v40, v{b+1}, v{b}, 16")
        A(f"v_alignbit_b32 v41, v{b+2}, v{b+1}, 16")
        A(f"v_alignbit_b32 v42, v{b+3}, v{b+2}, 16")
        A(f"v_alignbit_b32 v43, v{b+4}, v{b+3}, 16")
        A(f"ds_write_b128 v6, v[40:43] offset:{CP+32}")
        A("v_mov_b32 v44, v41")
        A("v_mov_b32 v45, v42")
        A("v_mov_b32 v46, v43")
        A(f"v_alignbit_b32 v47, v{b+5}, v{b+4}, 16")
        A(f"ds_write_b128 v6, v[44:47] offset:{3*CP+32}")
        A(f"v_mov_b32 v48, v{b+1}")
        A(f"v_mov_b32 v49, v{b+2}")
        A(f"v_mov_b32 v50, v{b+3}")
        A(f"v_mov_b32 v51, v{b+4}")
        A(f"ds_write_b128 v6, v[48:51] offset:{2*CP+32}")
        lab = f"{P}NH{j}"
        A(f"s_cmp_lg_u32 s{48+j}, 0")
        A(f"s_cbranch_scc1 {lab}")
        for q in range(8, 12): A(f"v_mov_b32 v{q}, 0")
        A(f"v_lshlrev_b32 v55, 16, v{b}")
        for q in (52,53,54,56,57,58,60,61): A(f"v_mov_b32 v{q}, 0")
        A(f"v_mov_b32 v59, v{b}")
        A("v_mov_b32 v62, v55")
        A("v_mov_b32 v63, v40")
        A("v_cmp_gt_u32 vcc, 30, v1")
        A("s_and_saveexec_b64 s[56:57], vcc")
        A(f"ds_write_b128 v6, v[8:11] offset:{XROFF+4096}")
        A("s_mov_b64 exec, 1")
        for s_ in range(4): A(f"ds_write_b128 v6, v[8:11] offset:{s_*CP}")
        A(f"ds_write_b128 v6, v[8:11] offset:16")
        A(f"ds_write_b128 v6, v[52:55] offset:{CP+16}")
        A(f"ds_write_b128 v6, v[56:59] offset:{2*CP+16}")
        A(f"ds_write_b128 v6, v[60:63] offset:{3*CP+16}")
        A("s_mov_b64 exec, -1")
        A.label(lab)
    build(0); build(1); build(2)
    A("s_waitcnt lgkmcnt(0)")

SETS = {0: [0,3,4,7], 1: [1,2,5,6]}
class ConvJob:
    BS = [32, 96]; AS = [64, 128]
    def __init__(s, A, P, G, acc, va, sb, red, dreg):
        s.A, s.P, s.G, s.ACC = A, P, G, acc
        s.vA, s.vB, s.vKV, s.vN = va, va+1, va+2, va+3
        s.sC, s.sH, s.sRG, s.sCH, s.sJ = sb, sb+1, sb+2, sb+3, sb+4
        s.red, s.pitch = red, (2048 if G == 2 else 3072)
        s.D = dreg
        s.nk = 4//G
    def setup(s):
        A = s.A
        if s.G == 2:
            A(f"s_lshr_b32 s{s.sC}, s22, 2")
            A(f"s_bfe_u32 s{s.sH}, s22, 0x10001")
            A(f"s_and_b32 s{s.sRG}, s22, 1")
            A(f"s_lshl_b32 s{s.sCH}, s2, 1")
            A(f"s_add_u32 s{s.sCH}, s{s.sCH}, s{s.sC}")
        else:
            A(f"s_mov_b32 s{s.sC}, 2")
            A(f"s_lshr_b32 s{s.sH}, s22, 2")
            A(f"s_and_b32 s{s.sRG}, s22, 3")
            A(f"s_add_u32 s{s.sCH}, s2, 512")
        A(f"s_mul_i32 s34, s{s.sC}, {CPITCH}")
        A(f"s_add_u32 s34, s34, {CB}")
        A(f"s_lshl_b32 s35, s{s.sCH}, 1")
        A(f"v_mov_b32 v28, s35")
        A(f"buffer_load_ushort v{s.D}, v28, s[16:19], 0 offen")
        A("v_and_b32 v2, 15, v1")
        A("v_lshrrev_b32 v3, 4, v1")
        A("v_add_u32 v4, 1, v2")
        A("v_and_b32 v5, 3, v4")
        A("v_sub_u32 v4, v4, v5")
        A("v_lshl_add_u32 v4, v3, 3, v4")
        A("v_lshlrev_b32 v4, 1, v4")
        A(f"v_mul_u32_u24 v5, {CP}, v5")
        A(f"s_lshl_b32 s35, s{s.sRG}, 6")
        A("s_add_u32 s36, s34, s35")
        A(f"v_add3_u32 v{s.vA}, v4, v5, s36")
        A("v_lshlrev_b32 v4, 5, v2")
        A("v_lshlrev_b32 v5, 4, v3")
        A(f"v_sub_u32 v{s.vB}, v5, v4")
        A(f"s_add_u32 s36, s36, {XROFF + 2*2032 - 3584}")
        A(f"v_add_u32 v{s.vB}, s36, v{s.vB}")
        A("v_lshlrev_b32 v5, 3, v3")
        A(f"v_add_u32 v{s.vN}, v4, v5")
        A(f"s_add_u32 s36, s34, {XROFF + 2*2044 - 3584}")
        A(f"v_sub_u32 v{s.vKV}, s36, v{s.vN}")
        for j in range(16): A(f"v_mov_b32 v{s.ACC+j}, 0")
    def compute(s, mid=None, last_extra=()):
        A, G = s.A, s.G
        nres = 8//G
        def variant(h):
            tiles = SETS[h]; J = tiles[-1]
            def loads(rr, st):
                r = G*rr
                L = []
                for mu in range(J+1):
                    L.append(f"ds_read_b128 v[{s.BS[st]+4*mu}:{s.BS[st]+4*mu+3}], v{s.vB} offset:{64*r+512*(7-mu)}")
                    m = 8*mu + r
                    L.append(f"ds_read_b64 v[{s.AS[st]+4*mu}:{s.AS[st]+4*mu+1}], v{s.vA} offset:{64*m}")
                    L.append(f"ds_read_b64 v[{s.AS[st]+4*mu+2}:{s.AS[st]+4*mu+3}], v{s.vA} offset:{64*m+8}")
                return L
            for l in loads(0, 0): A(l)
            for rr in range(nres):
                st = rr & 1
                A("s_waitcnt lgkmcnt(0)")
                nxt = loads(rr+1, st^1) if rr+1 < nres else list(last_extra)
                mf = []
                for mu in range(J+1):
                    for ti, j in enumerate(tiles):
                        if j < mu: continue
                        i = j - mu; d = s.ACC+4*ti
                        mf.append(f"v_mfma_f32_16x16x32_bf16 v[{d}:{d+3}], v[{s.AS[st]+4*mu}:{s.AS[st]+4*mu+3}], v[{s.BS[st]+4*i}:{s.BS[st]+4*i+3}], v[{d}:{d+3}]")
                k = 0
                for m_ in mf:
                    A(m_)
                    for _ in range(2):
                        if k < len(nxt): A(nxt[k]); k += 1
                while k < len(nxt): A(nxt[k]); k += 1
                if mid and rr == 0: mid(h)
        tag = f"{s.P}G{G}"
        A(f"s_cmp_eq_u32 s{s.sH}, 0")
        A(f"s_cbranch_scc0 {tag}H1")
        variant(0)
        A(f"s_branch {tag}HD")
        A.label(f"{tag}H1")
        variant(1)
        A.label(f"{tag}HD")
    def send(s):
        A, G, nk = s.A, s.G, s.nk
        A(f"s_mul_i32 s35, s22, {s.pitch}")
        A(f"s_add_u32 s35, s35, {s.red}")
        A("v_lshlrev_b32 v2, 4, v1")
        A("v_add_u32 v3, s35, v2")
        for rg in range(1, G):
            lab = f"{s.P}G{G}RT{rg}"
            A(f"s_cmp_eq_u32 s{s.sRG}, {rg}")
            A(f"s_cbranch_scc0 {lab}")
            sh = 4*rg*nk
            if G == 2:
                for j in range(8): A(f"v_swap_b32 v{s.ACC+j}, v{s.ACC+8+j}")
            else:
                for j in range(16): A(f"v_mov_b32 v{32+j}, v{s.ACC+(j+sh) % 16}")
                for j in range(16): A(f"v_mov_b32 v{s.ACC+j}, v{32+j}")
            A.label(lab)
        for q in range(4-nk):
            A(f"ds_write_b128 v3, v[{s.ACC+4*(nk+q)}:{s.ACC+4*(nk+q)+3}] offset:{1024*q}")
    def recv(s, R, KVr):
        A, G, nk = s.A, s.G, s.nk
        A("v_lshlrev_b32 v2, 4, v1")
        cnt = 0
        for d in range(1, G):
            A(f"s_add_u32 s36, s{s.sRG}, {d}")
            A(f"s_and_b32 s36, s36, {G-1}")
            A(f"s_andn2_b32 s37, s22, {G-1}")
            A("s_add_u32 s36, s36, s37")
            A(f"s_mul_i32 s36, s36, {s.pitch}")
            A(f"s_add_u32 s36, s36, {s.red}")
            A(f"v_add_u32 v4, s36, v2")
            for k in range(nk):
                q = ((G-d)*nk + k) % 4 - nk
                A(f"ds_read_b128 v[{R+4*cnt}:{R+4*cnt+3}], v4 offset:{1024*q}")
                cnt += 1
        for k in range(nk):
            A(f"s_mul_i32 s36, s{s.sRG}, {nk}")
            A(f"s_add_u32 s36, s36, {k}")
            A("s_lshl_b32 s36, s36, 2")
            A(f"s_mov_b32 s37, {hex(0x7430)}")
            A(f"s_mov_b32 s39, {hex(0x6521)}")
            A(f"s_cmp_eq_u32 s{s.sH}, 0")
            A("s_cselect_b32 s37, s37, s39")
            A("s_lshr_b32 s37, s37, s36")
            A(f"s_and_b32 s{s.sJ+k}, s37, 15")
            A(f"s_sub_u32 s36, 7, s{s.sJ+k}")
            A("s_lshl_b32 s36, s36, 9")
            A(f"v_add_u32 v5, s36, v{s.vKV}")
            A(f"ds_read_b64 v[{KVr+2*k}:{KVr+1+2*k}], v5")
    def finish(s, R, KVr, O):
        A, G, nk = s.A, s.G, s.nk
        A(f"v_lshlrev_b32 v{s.D}, 16, v{s.D}")
        cnt = 0
        for d in range(1, G):
            for k in range(nk):
                for r in range(4): A(f"v_add_f32 v{s.ACC+4*k+r}, v{s.ACC+4*k+r}, v{R+4*cnt+r}")
                cnt += 1
        for k in range(nk):
            r0, r1 = KVr+2*k, KVr+1+2*k; a = s.ACC+4*k
            A(f"v_and_b32 v76, 0xffff0000, v{r1}")
            A(f"v_lshlrev_b32 v77, 16, v{r1}")
            A(f"v_and_b32 v78, 0xffff0000, v{r0}")
            A(f"v_lshlrev_b32 v79, 16, v{r0}")
            for rr in range(4): A(f"v_fmac_f32 v{a+rr}, v{76+rr}, v{s.D}")
            A(f"v_cvt_pk_bf16_f32 v{O+2*k}, v{a}, v{a+1}")
            A(f"v_cvt_pk_bf16_f32 v{O+1+2*k}, v{a+2}, v{a+3}")
            A(f"s_lshl_b32 s36, s{s.sCH}, 12")
            A(f"s_lshl_b32 s37, s{s.sJ+k}, 9")
            A("s_add_u32 s36, s36, s37")
            A(f"s_add_u32 s36, s36, {YT}")
            A(f"buffer_store_dwordx2 v[{O+2*k}:{O+1+2*k}], v{s.vN}, s[12:15], s36 offen sc1")

class QuarterJob:
    B, Aa = 32, 64
    ACC = 160
    vA, vB, vKV, vN = 176, 177, 178, 179
    D = 30
    def __init__(s, A, P, red): s.A, s.P, s.red = A, P, red
    def setup(s):
        A = s.A
        A("s_lshr_b32 s49, s2, 2")
        A("s_add_u32 s49, s49, 512          ; channel")
        A("s_and_b32 s48, s2, 3             ; q")
        A(f"s_mov_b32 s34, {CB + 2*CPITCH}")
        A("s_lshl_b32 s35, s49, 1")
        A("v_mov_b32 v28, s35")
        A(f"buffer_load_ushort v{s.D}, v28, s[16:19], 0 offen")
        A("v_and_b32 v2, 15, v1")
        A("v_lshrrev_b32 v3, 4, v1")
        A("v_add_u32 v4, 1, v2")
        A("v_and_b32 v5, 3, v4")
        A("v_sub_u32 v4, v4, v5")
        A("v_lshl_add_u32 v4, v3, 3, v4")
        A("v_lshlrev_b32 v4, 1, v4")
        A(f"v_mul_u32_u24 v5, {CP}, v5")
        A("s_lshl_b32 s35, s22, 6           ; 64*residue")
        A("s_add_u32 s36, s34, s35")
        A(f"v_add3_u32 v{s.vA}, v4, v5, s36")
        A("v_lshlrev_b32 v4, 5, v2")
        A("v_lshlrev_b32 v5, 4, v3")
        A(f"v_sub_u32 v{s.vB}, v5, v4")
        A(f"s_add_u32 s36, s36, {XROFF + 2*2032 - 3584}")
        A(f"v_add_u32 v{s.vB}, s36, v{s.vB}")
        A("v_lshlrev_b32 v5, 3, v3")
        A(f"v_add_u32 v{s.vN}, v4, v5")
        A(f"s_add_u32 s36, s34, {XROFF + 2*2044 - 3584}")
        A(f"v_sub_u32 v{s.vKV}, s36, v{s.vN}")
        for j in range(8): A(f"v_mov_b32 v{s.ACC+j}, 0")
    def loads(s):
        L = []
        for mu in range(8):
            L.append(f"ds_read_b128 v[{s.B+4*mu}:{s.B+4*mu+3}], v{s.vB} offset:{512*(7-mu)}")
            L.append(f"ds_read_b64 v[{s.Aa+4*mu}:{s.Aa+4*mu+1}], v{s.vA} offset:{512*mu}")
            L.append(f"ds_read_b64 v[{s.Aa+4*mu+2}:{s.Aa+4*mu+3}], v{s.vA} offset:{512*mu+8}")
        return L
    def compute(s):
        A = s.A
        A("s_waitcnt lgkmcnt(0)")
        for q in range(4):
            if q < 3:
                A(f"s_cmp_eq_u32 s48, {q}")
                A(f"s_cbranch_scc0 {s.P}Q{q+1}")
            tiles = (q, 7-q)
            for mu in range(8-q):
                for ti, j in enumerate(tiles):
                    if j < mu: continue
                    d = s.ACC+4*ti
                    A(f"v_mfma_f32_16x16x32_bf16 v[{d}:{d+3}], v[{s.Aa+4*mu}:{s.Aa+4*mu+3}], v[{s.B+4*(j-mu)}:{s.B+4*(j-mu)+3}], v[{d}:{d+3}]")
            if q < 3:
                A(f"s_branch {s.P}QD")
                A.label(f"{s.P}Q{q+1}")
        A.label(f"{s.P}QD")
    def send(s):
        A = s.A
        A("s_lshl_b32 s35, s22, 11")
        A(f"s_add_u32 s35, s35, {s.red}")
        A("v_lshlrev_b32 v2, 4, v1")
        A("v_add_u32 v3, s35, v2")
        for k in range(2): A(f"ds_write_b128 v3, v[{s.ACC+4*k}:{s.ACC+4*k+3}] offset:{1024*k}")
    def recv(s, R, KVr):
        A = s.A
        A("s_lshl_b32 s35, s22, 10")
        A(f"s_add_u32 s35, s35, {s.red}")
        A("v_lshlrev_b32 v2, 4, v1")
        A("v_add_u32 v4, s35, v2")
        for w in range(8): A(f"ds_read_b128 v[{R+4*w}:{R+4*w+3}], v4 offset:{2048*w}")
        A("s_sub_u32 s36, 7, s48")
        A("s_cmp_eq_u32 s22, 0")
        A("s_cselect_b32 s50, s48, s36       ; tile j")
        A("s_sub_u32 s36, 7, s50")
        A("s_lshl_b32 s36, s36, 9")
        A(f"v_add_u32 v5, s36, v{s.vKV}")
        A(f"ds_read_b64 v[{KVr}:{KVr+1}], v5")
    def finish(s, R, KVr, O):
        A = s.A
        A(f"v_lshlrev_b32 v{s.D}, 16, v{s.D}")
        for w in range(1, 8):
            for r in range(4): A(f"v_add_f32 v{R+r}, v{R+r}, v{R+4*w+r}")
        A(f"v_and_b32 v76, 0xffff0000, v{KVr+1}")
        A(f"v_lshlrev_b32 v77, 16, v{KVr+1}")
        A(f"v_and_b32 v78, 0xffff0000, v{KVr}")
        A(f"v_lshlrev_b32 v79, 16, v{KVr}")
        for rr in range(4): A(f"v_fmac_f32 v{R+rr}, v{76+rr}, v{s.D}")
        A(f"v_cvt_pk_bf16_f32 v{O}, v{R}, v{R+1}")
        A(f"v_cvt_pk_bf16_f32 v{O+1}, v{R+2}, v{R+3}")
        A("s_lshl_b32 s36, s49, 12")
        A("s_lshl_b32 s37, s50, 9")
        A("s_add_u32 s36, s36, s37")
        A(f"s_add_u32 s36, s36, {YT}")
        A(f"buffer_store_dwordx2 v[{O}:{O+1}], v{s.vN}, s[12:15], s36 offen sc1")

def conv_compute(A, P):
    ja = ConvJob(A, P, 2, 8, 24, 40, L_CRED, 29)
    jq = QuarterJob(A, P, L_CRED + 8*2048)
    A("s_load_dwordx2 s[16:17], s[0:1], %d" % KA_SSMD)
    A("s_waitcnt lgkmcnt(0)")
    A("s_mov_b32 s18, %d" % SZ_SSMD)
    A(f"s_mov_b32 s19, {hex(SRD_W3)}")
    ja.setup()
    jq.setup()
    A("s_barrier")
    stamps.stampfix(A, 16)
    def mid(h):
        A("s_cmp_ge_u32 s22, 4")
        A(f"s_cbranch_scc1 {P}NF{h}")
        A("s_waitcnt vmcnt(0)")
        set_flag(A, 53, 180)
        wopack_cond(A, f"{P}NF{h}")
        wopack_issue(A, f"{P}O{h}")
        A.label(f"{P}NF{h}")
    ja.compute(mid, last_extra=jq.loads())
    stamps.stampfix(A, 17)
    jq.compute()
    stamps.stampfix(A, 20)
    A("s_nop 7")
    ja.send()
    jq.send()
    A("s_waitcnt lgkmcnt(0)")
    A("s_barrier")
    ja.recv(48, 72)
    A("s_cmp_ge_u32 s22, 2")
    A(f"s_cbranch_scc1 {P}NQR")
    jq.recv(96, 128)
    A.label(f"{P}NQR")
    A("s_waitcnt vmcnt(0) lgkmcnt(0)")
    stamps.stampfix(A, 18)
    ja.finish(48, 72, 80)
    A("s_cmp_ge_u32 s22, 2")
    A(f"s_cbranch_scc1 {P}NQF")
    jq.finish(96, 128, 132)
    A.label(f"{P}NQF")
    wopack_cond(A, f"{P}NWO1")
    wopack_finish(A)
    A.label(f"{P}NWO1")

G_PS, G_MR, G_OF, G_XT, G_YT = 0, 2048, 24576, 61440, 61440+9216
WFA, WFB = 64, 136
ACA, ACB = 8, 208

def red4(A, v, t):
    A(f"v_mov_b32 v{t}, v{v}")
    A("s_nop 1")
    A(f"v_permlane16_swap_b32 v{v}, v{t}")
    A("s_nop 1")
    A(f"v_add_f32 v{v}, v{v}, v{t}")
    A(f"v_mov_b32 v{t}, v{v}")
    A("s_nop 1")
    A(f"v_permlane32_swap_b32 v{v}, v{t}")
    A("s_nop 1")
    A(f"v_add_f32 v{v}, v{v}, v{t}")

def red4x4(A, vs, ts):
    for op in ("v_permlane16_swap_b32", "v_permlane32_swap_b32"):
        for v, t in zip(vs, ts): A(f"v_mov_b32 v{t}, v{v}")
        for v, t in zip(vs, ts): A(f"{op} v{v}, v{t}")
        for v, t in zip(vs, ts): A(f"v_add_f32 v{v}, v{v}, v{t}")

def opg_ids(A):
    A("s_and_b32 s20, s2, 7")
    A("s_lshr_b32 s21, s2, 3")
    A("s_lshl_b32 s20, s20, 3")
    A("s_lshr_b32 s23, s21, 2")
    A("s_add_u32 s20, s20, s23          ; rb (0..63)")
    A("s_and_b32 s21, s21, 3            ; cgo")

def opg_prefetch(A, P):
    opg_ids(A)
    A("v_and_b32 v1, 63, v0")
    A("v_and_b32 v3, 15, v1             ; n")
    A("v_lshrrev_b32 v4, 4, v1          ; kg")
    A("v_lshlrev_b32 v5, 4, v1          ; lane*16")
    A("s_mov_b32 s31, %d" % ((2**32+17)//18))
    A("s_mul_i32 s32, s20, %d" % (32*1152))
    A("s_mul_i32 s33, s21, 288")
    A("s_add_u32 s32, s32, s33")
    def xaddr(vL, vd):
        A(f"v_mul_hi_u32 v7, v{vL}, s31")
        A("v_mul_u32_u24 v8, 18, v7")
        A(f"v_sub_u32 v8, v{vL}, v8")
        A("v_mul_u32_u24 v9, 1152, v7")
        A(f"v_lshl_add_u32 v{vd}, v8, 4, v9")
    xaddr(0, 60)
    A("v_add_u32 v6, 512, v1")
    xaddr(6, 61)
    A("s_lshl_b32 s34, s22, 10")
    A(f"s_add_u32 m0, s34, {G_XT}")
    A("s_nop 0")
    A("buffer_load_dwordx4 v60, s[8:11], s32 offen lds sc1")
    A("s_mul_i32 s33, s21, %d" % (144*4096))
    A("s_lshl_b32 s35, s20, 6")
    A("s_add_u32 s33, s33, s35")
    A(f"s_add_u32 s33, s33, {YT}")
    A("v_lshrrev_b32 v7, 2, v0")
    A("v_lshlrev_b32 v7, 12, v7")
    A("v_and_b32 v8, 3, v0")
    A("v_lshl_add_u32 v7, v8, 4, v7")
    A(f"s_add_u32 m0, s34, {G_YT}")
    A("s_nop 0")
    A("buffer_load_dwordx4 v7, s[12:15], s33 offen lds sc1")
    A("s_cmp_lg_u32 s22, 0")
    A(f"s_cbranch_scc1 {P}NX")
    A(f"s_mov_b32 m0, {G_XT + 8192}")
    A("s_nop 0")
    A("buffer_load_dwordx4 v61, s[8:11], s32 offen lds sc1")
    A(f"v_add_u32 v7, {128*4096}, v7        ; channels 128..143")
    A(f"s_mov_b32 m0, {G_YT + 8192}")
    A("s_nop 0")
    A("buffer_load_dwordx4 v7, s[12:15], s33 offen lds sc1")
    A.label(f"{P}NX")
    A("s_and_b32 s36, s20, 7" if ROTO else "s_mov_b32 s36, 0")
    def wl(base, sct):
        A("s_mul_i32 s33, s21, 9")
        A(f"s_add_u32 s33, s33, {sct}")
        A("s_mul_i32 s33, s33, %d" % (18*1024))
        A(f"s_add_u32 s33, s33, {WOP}")
        for pr in range(9):
            A(f"s_add_u32 s34, s36, {pr}")
            A("s_sub_u32 s35, s34, 9")
            A("s_cmp_ge_u32 s34, 9")
            A("s_cselect_b32 s34, s35, s34")
            A("s_lshl_b32 s34, s34, 11")
            A("s_add_u32 s34, s34, s33")
            for j in range(2):
                ks = 2*pr + j
                if CAPO and ks >= CAPO: A(f"s_waitcnt vmcnt({CAPO-1})")
                A(f"buffer_load_dwordx4 v[{base+4*ks}:{base+4*ks+3}], v5, s[12:15], s34 offen offset:{j*1024} sc1")
    wl(WFA, "s22")
    A("s_cmp_lg_u32 s22, 7")
    A(f"s_cbranch_scc1 {P}NW")
    wl(WFB, "8")
    A.label(f"{P}NW")

def opg_main(A, P):
    A("v_lshrrev_b32 v6, 1, v4")
    A("v_lshlrev_b32 v6, 16, v6")
    A("v_lshl_add_u32 v6, v3, 5, v6")
    A("v_and_b32 v7, 1, v4")
    A("v_lshl_add_u32 v6, v7, 4, v6")
    A("s_lshl_b32 s24, s22, 18")
    A("s_lshl_b32 s25, s20, 10")
    A("s_add_u32 s24, s24, s25")
    A(f"s_add_u32 s24, s24, {OM}")
    A("s_add_u32 s24, s24, s63")
    A("s_and_b32 s36, s20, 7" if ROTO else "s_mov_b32 s36, 0")
    A("s_add_u32 s28, s22, 9")
    A("s_sub_u32 s28, s28, s36")
    A("s_sub_u32 s29, s28, 9")
    A("s_cmp_ge_u32 s28, 9")
    A("s_cselect_b32 s28, s29, s28")
    A("s_lshl_b32 s28, s28, 11")
    for rt in range(2):
        for kk in range(2):
            A(f"s_add_u32 m0, s28, {G_OF + rt*18432 + kk*1024}")
            A(f"s_add_u32 s30, s24, {kk*131072 + rt*512}")
            A("buffer_load_dwordx4 v6, s[12:15], s30 offen lds sc1")
    A("s_cmp_ge_u32 s22, 4")
    A(f"s_cbranch_scc1 {P}NE")
    A("v_lshlrev_b32 v6, 15, v4")
    A("v_lshl_add_u32 v6, v3, 4, v6")
    A("s_lshr_b32 s24, s22, 1           ; rt")
    A("s_and_b32 s25, s22, 1            ; e")
    A("s_lshl_b32 s26, s20, 9")
    A("s_lshl_b32 s27, s24, 8")
    A("s_add_u32 s26, s26, s27")
    A("s_lshl_b32 s27, s25, 17")
    A("s_add_u32 s26, s26, s27")
    A(f"s_add_u32 s26, s26, {OE}")
    A("s_add_u32 s26, s26, s64")
    A("s_mul_i32 s27, s24, 18432")
    A("s_lshl_b32 s28, s25, 10")
    A("s_add_u32 s27, s27, s28")
    A("s_sub_u32 s28, 8, s36")
    A("s_lshl_b32 s28, s28, 11")
    A("s_add_u32 s27, s27, s28")
    A(f"s_add_u32 m0, s27, {G_OF}")
    A("s_nop 0")
    A("buffer_load_dwordx4 v6, s[12:15], s26 offen lds sc1")
    A.label(f"{P}NE")
    for i in range(8):
        A(f"v_mov_b32 v{ACA+i}, 0")
        A(f"v_mov_b32 v{ACB+i}, 0")
    A("s_waitcnt vmcnt(0)")
    A("s_barrier")
    stamps.stamp(A, 9)
    def mainloop(tiles):
        def rd(ks, st):
            b = 16 + 8*st
            A(f"ds_read_b128 v[{b}:{b+3}], v5 offset:{G_OF + ks*1024}")
            A(f"ds_read_b128 v[{b+4}:{b+7}], v5 offset:{G_OF + 18432 + ks*1024}")
        rd(0,0); rd(1,1)
        for ks in range(18):
            st = ks % 3
            if ks + 2 < 18: rd(ks+2, (ks+2) % 3)
            A(f"s_waitcnt lgkmcnt({4 if ks+2<18 else (2 if ks+1<18 else 0)})")
            b = 16 + 8*st
            for WF, AC in tiles:
                A(f"v_mfma_f32_16x16x32_bf16 v[{AC}:{AC+3}], v[{WF+4*ks}:{WF+4*ks+3}], v[{b}:{b+3}], v[{AC}:{AC+3}]")
                A(f"v_mfma_f32_16x16x32_bf16 v[{AC+4}:{AC+7}], v[{WF+4*ks}:{WF+4*ks+3}], v[{b+4}:{b+7}], v[{AC+4}:{AC+7}]")
    def ifB(fn, tag):
        A("s_cmp_lg_u32 s22, 7")
        A(f"s_cbranch_scc1 {P}NB{tag}")
        fn()
        A.label(f"{P}NB{tag}")
    A("s_cmp_eq_u32 s22, 7")
    A(f"s_cbranch_scc1 {P}ML2")
    mainloop([(WFA, ACA)])
    A(f"s_branch {P}MLD")
    A.label(f"{P}ML2")
    mainloop([(WFA, ACA), (WFB, ACB)])
    A.label(f"{P}MLD")
    A("v_mul_u32_u24 v40, 288, v3")
    A("v_lshl_add_u32 v40, v4, 3, v40")
    A("s_lshl_b32 s33, s22, 5")
    A(f"s_add_u32 s33, s33, {G_XT}")
    A("v_add_u32 v40, s33, v40")
    A("v_lshrrev_b32 v41, 2, v3")
    A("v_lshl_add_u32 v41, v4, 2, v41")
    A("v_lshlrev_b32 v41, 6, v41")
    A("v_and_b32 v42, 3, v1")
    A("v_lshl_add_u32 v41, v42, 3, v41")
    A("s_lshl_b32 s33, s22, 10")
    A(f"s_add_u32 s33, s33, {G_YT}")
    A("v_add_u32 v41, s33, v41")
    XA_, YA_, XB_, YB_ = 44, 48, 216, 220
    def rdxy(X, Y, dx, dy):
        A(f"ds_read_b64 v[{X}:{X+1}], v40 offset:{dx}")
        A(f"ds_read_b64 v[{X+2}:{X+3}], v40 offset:{dx + 16*288}")
        A(f"ds_read_b64_tr_b16 v[{Y}:{Y+1}], v41 offset:{dy}")
        A(f"ds_read_b64_tr_b16 v[{Y+2}:{Y+3}], v41 offset:{dy + 32}")
    rdxy(XA_, YA_, 0, 0)
    ifB(lambda: rdxy(XB_, YB_, 32, 1024), "r")
    A("s_waitcnt lgkmcnt(0)")
    A("s_nop 3")
    def x1(AC, X):
        for rt in range(2):
            x = X+2*rt; a = AC+4*rt
            A(f"v_lshlrev_b32 v52, 16, v{x}")
            A(f"v_and_b32 v53, 0xffff0000, v{x}")
            A(f"v_lshlrev_b32 v54, 16, v{x+1}")
            A(f"v_and_b32 v55, 0xffff0000, v{x+1}")
            for r in range(4): A(f"v_add_f32 v{a+r}, v{a+r}, v{52+r}")
            A(f"v_cvt_pk_bf16_f32 v56, v{a}, v{a+1}")
            A(f"v_cvt_pk_bf16_f32 v57, v{a+2}, v{a+3}")
            A(f"v_lshlrev_b32 v{a}, 16, v56")
            A(f"v_and_b32 v{a+1}, 0xffff0000, v56")
            A(f"v_lshlrev_b32 v{a+2}, 16, v57")
            A(f"v_and_b32 v{a+3}, 0xffff0000, v57")
    x1(ACA, XA_)
    ifB(lambda: x1(ACB, XB_), "x")
    def sums(AC, first):
        for rt in range(2):
            a = AC+4*rt; s1 = 16+2*rt; s2 = s1+1
            if first:
                A(f"v_add_f32 v{s1}, v{a}, v{a+1}")
                A(f"v_mul_f32 v{s2}, v{a}, v{a}")
            else:
                A(f"v_add_f32 v{s1}, v{s1}, v{a}")
                A(f"v_add_f32 v{s1}, v{s1}, v{a+1}")
                A(f"v_fmac_f32 v{s2}, v{a}, v{a}")
            A(f"v_add_f32 v{s1}, v{s1}, v{a+2}")
            A(f"v_add_f32 v{s1}, v{s1}, v{a+3}")
            for r in range(1,4): A(f"v_fmac_f32 v{s2}, v{a+r}, v{a+r}")
    def partial_stats(tag, drain=False):
        sums(ACA, True)
        ifB(lambda: sums(ACB, False), "s"+tag)
        red4x4(A, (16,17,18,19), (52,53,54,55))
        A("s_lshl_b32 s33, s22, 8")
        A("v_lshl_add_u32 v53, v3, 3, s33")
        A("s_mov_b64 exec, 0xffff")
        A(f"ds_write_b64 v53, v[16:17] offset:{G_PS}")
        A(f"ds_write_b64 v53, v[18:19] offset:{G_PS+128}")
        A("s_mov_b64 exec, -1")
        A("s_waitcnt vmcnt(0) lgkmcnt(0)" if drain else "s_waitcnt lgkmcnt(0)")
        A("s_barrier")
    def wg_sum():
        A("v_and_b32 v54, 31, v1")
        A("v_lshlrev_b32 v54, 3, v54")
        for w in range(8): A(f"ds_read_b64 v[{22+2*w}:{23+2*w}], v54 offset:{G_PS + 256*w}")
        A("s_waitcnt lgkmcnt(0)")
        A("v_add_f32 v20, v22, v24")
        A("v_add_f32 v21, v23, v25")
        for w in range(2,8):
            A(f"v_add_f32 v20, v20, v{22+2*w}")
            A(f"v_add_f32 v21, v21, v{23+2*w}")
    partial_stats("a")
    stamps.stamp(A, 10)
    A("s_cmp_lg_u32 s22, 0")
    A(f"s_cbranch_scc1 {P}WAITST")
    wg_sum()
    A(f"s_mul_i32 s33, s{sLAYER}, {EX_SZ}")
    A("s_lshl_b32 s35, s20, 11          ; rb*4*512")
    A("s_add_u32 s33, s33, s35")
    A(f"s_add_u32 s33, s33, {EX0}")
    A("s_lshl_b32 s35, s21, 9")
    A("s_add_u32 s35, s35, s33")
    A("v_mov_b32 v24, v20")
    A(f"v_mov_b32 v25, s{sTAG}")
    A("v_mov_b32 v26, v21")
    A(f"v_mov_b32 v27, s{sTAG}")
    A("v_lshlrev_b32 v55, 1, v54          ; row*16")
    A("s_mov_b32 exec_hi, 0")
    A("buffer_store_dwordx4 v[24:27], v55, s[12:15], s35 offen sc1")
    A("s_mov_b32 exec_hi, -1")
    A("v_lshrrev_b32 v56, 5, v1")
    A("v_lshl_add_u32 v55, v56, 9, v55")
    def ld():
        A("buffer_load_dwordx4 v[24:27], v55, s[12:15], s33 offen sc1")
        A("buffer_load_dwordx4 v[28:31], v55, s[12:15], s33 offen offset:1024 sc1")
    spin(A, P, "EX", ld, lambda: check_regs(A, [25,27,29,31]))
    A("v_add_f32 v22, v24, v28")
    A("v_add_f32 v23, v26, v30")
    for v in (22,23):
        A(f"v_mov_b32 v24, v{v}")
        A("s_nop 1")
        A(f"v_permlane32_swap_b32 v{v}, v24")
        A("s_nop 1")
        A(f"v_add_f32 v{v}, v{v}, v24")
    A(f"v_mul_f32 v22, {hex(f2u(1.0/576))}, v22")
    A(f"v_mul_f32 v23, {hex(f2u(1.0/576))}, v23")
    A("v_fma_f32 v23, -v22, v22, v23")
    A("v_max_f32 v23, 0, v23")
    A(f"v_add_f32 v23, {hex(f2u(1e-5))}, v23")
    A("v_rsq_f32 v23, v23")
    A("s_nop 0")
    A(f"ds_write_b64 v54, v[22:23] offset:{G_MR}")
    A("s_waitcnt lgkmcnt(0)")
    A.label(f"{P}WAITST")
    A("s_barrier")
    stamps.stamp(A, 11)
    A("v_lshlrev_b32 v53, 3, v3")
    A(f"ds_read_b64 v[24:25], v53 offset:{G_MR}")
    A(f"ds_read_b64 v[26:27], v53 offset:{G_MR+128}")
    A("s_waitcnt lgkmcnt(0)")
    def gate(AC, X, Y, dx):
        for rt in range(2):
            a = AC+4*rt; y = Y+2*rt; mu = 24+2*rt; rs = mu+1
            A(f"v_lshlrev_b32 v52, 16, v{y}")
            A(f"v_and_b32 v53, 0xffff0000, v{y}")
            A(f"v_lshlrev_b32 v54, 16, v{y+1}")
            A(f"v_and_b32 v55, 0xffff0000, v{y+1}")
            for r in range(4):
                A(f"v_sub_f32 v56, v{a+r}, v{mu}")
                A(f"v_mul_f32 v56, v56, v{rs}")
                A(f"v_fmac_f32 v{a+r}, v56, v{52+r}")
            A(f"v_cvt_pk_bf16_f32 v{X+2*rt}, v{a}, v{a+1}")
            A(f"v_cvt_pk_bf16_f32 v{X+2*rt+1}, v{a+2}, v{a+3}")
        A(f"ds_write_b64 v40, v[{X}:{X+1}] offset:{dx}")
        A(f"ds_write_b64 v40, v[{X+2}:{X+3}] offset:{dx + 16*288}")
    gate(ACA, XA_, YA_, 0)
    ifB(lambda: gate(ACB, XB_, YB_, 32), "g")
    A("s_waitcnt lgkmcnt(0)")
    A("s_barrier")
    A("v_lshlrev_b32 v53, 4, v0")
    A(f"v_add_u32 v53, {G_XT}, v53")
    A(f"v_add_u32 v54, {G_XT + 8192}, v5")
    A(f"ds_read_b128 v[28:31], v53")
    A(f"ds_read_b128 v[32:35], v54")
    A("s_waitcnt lgkmcnt(0)")
    A("buffer_store_dwordx4 v[28:31], v60, s[16:19], s32 offen sc1")
    A("s_cmp_lg_u32 s22, 0")
    A(f"s_cbranch_scc1 {P}NS2")
    A("buffer_store_dwordx4 v[32:35], v61, s[16:19], s32 offen sc1")
    A.label(f"{P}NS2")
    return dict(partial_stats=partial_stats, wg_sum=wg_sum, ifB=ifB, regs=(XA_, XB_))

def opg_publish(A, P, h):
    stamps.stampfix(A, 19)
    XA_, XB_ = h["regs"]
    def unpack(AC, X):
        for rt in range(2):
            a = AC+4*rt; x = X+2*rt
            A(f"v_lshlrev_b32 v{a}, 16, v{x}")
            A(f"v_and_b32 v{a+1}, 0xffff0000, v{x}")
            A(f"v_lshlrev_b32 v{a+2}, 16, v{x+1}")
            A(f"v_and_b32 v{a+3}, 0xffff0000, v{x+1}")
    unpack(ACA, XA_)
    h["ifB"](lambda: unpack(ACB, XB_), "u")
    h["partial_stats"]("b", drain=True)
    A("s_cmp_lg_u32 s22, 0")
    A(f"s_cbranch_scc1 {P}NST")
    A("s_lshr_b32 s33, s20, 2")
    A("s_lshl_b32 s33, s33, 4")
    A("s_and_b32 s34, s20, 3")
    A("s_lshl_b32 s34, s34, 2")
    A("s_add_u32 s34, s34, s21")
    A("s_add_u32 s33, s33, s34")
    A("s_lshl_b32 s33, s33, 7")
    A(f"s_add_u32 s33, s33, {F3}")
    set_flag(A, 33, 52)
    stamps.stampfix(A, 23)
    h["wg_sum"]()
    A("v_mov_b32 v24, v20")
    A(f"v_mov_b32 v25, s{sTAG}")
    A("v_mov_b32 v26, v21")
    A(f"v_mov_b32 v27, s{sTAG}")
    A("v_and_b32 v54, 31, v1")
    A("v_lshlrev_b32 v54, 6, v54          ; row*64")
    A("s_lshl_b32 s33, s20, 11          ; rb*32*64")
    A("s_lshl_b32 s35, s21, 4")
    A("s_add_u32 s33, s33, s35")
    A(f"s_add_u32 s33, s33, {ST1}")
    A("s_mov_b32 exec_hi, 0")
    A("buffer_store_dwordx4 v[24:27], v54, s[12:15], s33 offen sc1")
    A("s_mov_b32 exec_hi, -1")
    A.label(f"{P}NST")

V_CSUM = 240

def stats_to_lds(A, s1, s2):
    T = Q.T
    A(f"v_mul_f32 v{s1}, {hex(f2u(1.0/576))}, v{s1}")
    A(f"v_mul_f32 v{s2}, {hex(f2u(1.0/576))}, v{s2}")
    A(f"v_fma_f32 v{s2}, -v{s1}, v{s1}, v{s2}")
    A(f"v_max_f32 v{s2}, 0, v{s2}")
    A(f"v_add_f32 v{s2}, {hex(f2u(1e-5))}, v{s2}")
    A(f"v_rsq_f32 v{s2}, v{s2}")
    A("s_lshl_b32 s30, s25, 7")
    A(f"v_lshl_add_u32 v{T}, v{Q.V_R}, 2, s30")
    A(f"ds_write_b32 v{T}, v{s1} offset:{Q.L_MU}")
    A(f"ds_write_b32 v{T}, v{s2} offset:{Q.L_RS}")
    A(f"ds_write_b32 v{T}, v{V_CSUM} offset:{Q.L_CS}")
    A("s_waitcnt lgkmcnt(0)")

def f1_offset(A, layer, sd):
    A("s_lshl_b32 s30, s24, 6")
    A("s_lshl_b32 s31, s23, 2")
    A("s_add_u32 s30, s30, s31")
    A("s_add_u32 s30, s30, s25")
    A("s_lshl_b32 s30, s30, 7")
    A(f"s_add_u32 s{sd}, s30, {F1 + layer*16*64*FS}")

def f1_flag(A, layer):
    f1_offset(A, layer, 30)
    A("s_waitcnt vmcnt(0)")
    set_flag(A, 30, 80)

def qkv_ids(A):
    Q.decode_id(A)
    Q.setup_scalars(A)
    A("v_and_b32 v1, 63, v0")
    Q.lane_consts(A)

def qkv1(A):
    P = "A_"
    Q.ROT = ROT1
    qkv_ids(A)
    A("s_cmp_ge_u32 s22, 4")
    A(f"s_cbranch_scc1 {P}HELP")
    A("s_load_dwordx2 s[8:9], s[0:1], %d" % KA_WQKV)
    A("s_waitcnt lgkmcnt(0)")
    A("s_mov_b32 s10, %d" % SZ_WQKV)
    A(f"s_mov_b32 s11, {hex(SRD_W3)}")
    def kv_issue():
        t_srds(A)
        A("s_lshl_b32 s34, s2, 2")
        A("s_add_u32 s34, s34, s22")
        tjob_issue(A, 34, 100, 54)
    wpack(A, P+"W", after_gathers=kv_issue)
    stamps.stamp(A, 0)
    tjob_finish(A, 100, 54, 52)
    qkv_ids(A)
    A("s_lshl_b32 s34, s24, 13")
    A(f"s_add_u32 s34, s34, {F0}")
    A("v_lshlrev_b32 v2, 7, v1")
    poll_flags(A, P, "F0", 34, 2, 3)
    set_flag(A, 52, 4)
    stamps.stamp(A, 1)
    Q.issue_w(A, NPW1, "sc1")
    Q.consumer(A, P, QM, QE, KV, "sc1", npre_w=NPW1, wflags="sc1", chunk_barriers=False)
    stamps.stamp(A, 2)
    f1_offset(A, 0, 53)
    A(f"s_branch {P}CONV")
    A.label(f"{P}HELP")
    srd(A, 8, 4, SZ_X)
    Q.helper_voffsets(A)
    A("s_cmp_eq_u32 s25, 1")
    A("s_cselect_b32 s53, 1, 0")
    A("s_cmp_lt_u32 s2, 128")
    A("s_cselect_b32 s53, s53, 0")
    A("s_cmp_lg_u32 s25, 0")
    A(f"s_cbranch_scc1 {P}NST0")
    srd(A, 36, 4, SZ_X)
    stats0_issue(A)
    A("s_waitcnt vmcnt(0)")
    stats0_finish(A)
    A.label(f"{P}NST0")
    A("s_cmp_eq_u32 s53, 0")
    A(f"s_cbranch_scc1 {P}NX0")
    t_srds(A)
    A("s_add_u32 s34, s2, 1024")
    tjob_issue(A, 34, 100, 54)
    A.label(f"{P}NX0")
    A("s_barrier")
    for kc in range(9): Q.issue_x(A, kc, 8)
    A("s_cmp_eq_u32 s53, 0")
    A(f"s_cbranch_scc1 {P}NX1")
    A("s_waitcnt vmcnt(36)")
    tjob_finish(A, 100, 54, 52)
    A("s_waitcnt vmcnt(0)")
    set_flag(A, 52, 10)
    A.label(f"{P}NX1")
    A("s_waitcnt vmcnt(0)")
    stamps.stamp(A, 0)
    A("s_barrier")
    stamps.stamp(A, 1)
    qkv_ids(A)
    A("s_lshl_b32 s30, s24, 2")
    A("s_add_u32 s30, s30, s25")
    A("s_lshl_b32 s30, s30, 11")
    A(f"s_add_u32 s30, s30, {CS4}")
    A(f"v_lshlrev_b32 v28, 2, v{Q.V_R}")
    for q in range(16): A(f"buffer_load_dword v{32+q}, v28, s[12:15], s30 offen offset:{128*q} sc1")
    A("s_lshl_b32 s34, s23, 7")
    A("s_lshl_b32 s35, s25, 5")
    A("s_add_u32 s34, s34, s35")
    A("s_lshl_b32 s34, s34, 4")
    A(f"s_add_u32 s34, s34, {ST0}")
    A(f"v_lshlrev_b32 v29, 4, v{Q.V_R}")
    spin(A, P, "ST", lambda: A("buffer_load_dwordx4 v[16:19], v29, s[12:15], s34 offen sc1"), lambda: check_regs(A, [17,19]))
    for q in range(1,16): A(f"v_add_f32 v32, v32, v{32+q}")
    A(f"v_mov_b32 v{V_CSUM}, v32")
    stats_to_lds(A, 16, 18)
    conv_setup_loads(A, P+"C")
    A("s_barrier")
    stamps.stamp(A, 2)
    conv_setup_build(A, P+"C")
    stamps.stamp(A, 3)
    A.label(f"{P}CONV")
    conv_compute(A, P+"C")
    stamps.stamp(A, 4)

def t_srds(A):
    A("s_load_dwordx2 s[40:41], s[0:1], %d" % KA_BK)
    A("s_load_dwordx2 s[44:45], s[0:1], %d" % KA_BV)
    A("s_load_dwordx2 s[48:49], s[0:1], %d" % KA_SHIFT)
    A("s_waitcnt lgkmcnt(0)")
    for b, n in ((40, SZ_X), (44, SZ_X), (48, SZ_SHIFT)):
        A(f"s_mov_b32 s{b+2}, {n}")
        A(f"s_mov_b32 s{b+3}, {hex(SRD_W3)}")

def qkv2(A):
    P = "B_"
    Q.ROT = ROT2
    qkv_ids(A)
    A("s_cmp_ge_u32 s22, 4")
    A(f"s_cbranch_scc1 {P}HELP")
    A("s_barrier")
    Q.issue_w(A, NPW2, WF2, cap=CAPQ)
    stamps.stampfix(A, 28)
    Q.HOOK_EPI = lambda A: stamps.stampfix(A, 29)
    Q.consumer(A, P, QM+QM_SZ, QE+QE_SZ, KV+KV_LSZ, "sc1", npre_w=NPW2, wflags=WF2, chunk_barriers=True)
    Q.HOOK_EPI = None
    stamps.stampfix(A, 30)
    f1_flag(A, 1)
    A(f"s_branch {P}DONE")
    A.label(f"{P}HELP")
    srd(A, 8, 6, X2_SZ, off=X2)
    Q.helper_voffsets(A)
    A("s_lshl_b32 s34, s23, 11")
    A(f"s_add_u32 s34, s34, {F3}")
    A("v_and_b32 v2, 15, v1")
    A("v_lshlrev_b32 v2, 7, v2")
    A("buffer_load_dword v4, v2, s[12:15], s34 offen sc1")
    A("s_waitcnt vmcnt(0)")
    check_regs(A, [4])
    A("s_cselect_b32 s36, 1, 0")
    A("s_barrier")
    A("s_cmp_lg_u32 s36, 0")
    A(f"s_cbranch_scc1 {P}F3_OK2")
    poll_flags(A, P, "F3", 34, 2, 4)
    A.label(f"{P}F3_OK2")
    stamps.stamp(A, 12)
    NPRE = NPX2
    ops = []
    for kc in range(NPRE):
        Q.issue_x(A, kc, 8, XF2); ops += [kc]*4
    A("s_lshl_b32 s34, s23, 7")
    A("s_lshl_b32 s35, s25, 5")
    A("s_add_u32 s34, s34, s35")
    A("s_lshl_b32 s34, s34, 6")
    A(f"s_add_u32 s34, s34, {ST1}")
    A(f"v_lshlrev_b32 v29, 6, v{Q.V_R}")
    A(f"v_lshl_add_u32 v29, v{Q.V_G}, 5, v29")
    def ldst():
        A("buffer_load_dwordx4 v[16:19], v29, s[12:15], s34 offen sc1")
        A("buffer_load_dwordx4 v[20:23], v29, s[12:15], s34 offen offset:16 sc1")
    for kc in range(9):
        last = max(i for i, o in enumerate(ops) if o == kc)
        A(f"s_waitcnt vmcnt({len(ops) - 1 - last})")
        A("s_barrier")
        if kc + NPRE < 9:
            Q.issue_x(A, kc + NPRE, 8, XF2); ops += [kc+NPRE]*4
        if kc == min(4, 8-NPRE+1):
            ldst(); ops += ["s"]*2
        if kc == 0: stamps.stampfix(A, 28)
        if kc == 4: stamps.stampfix(A, 29)
        if kc == 8: stamps.stampfix(A, 30)
    A("s_waitcnt vmcnt(0)")
    check_regs(A, [17,19,21,23])
    A(f"s_cbranch_scc1 {P}STOK")
    spin(A, P, "ST", ldst, lambda: check_regs(A, [17,19,21,23]))
    A.label(f"{P}STOK")
    A("v_add_f32 v16, v16, v20")
    A("v_add_f32 v18, v18, v22")
    for v in (16, 18):
        A(f"v_mov_b32 v20, v{v}")
        A("s_nop 1")
        A(f"v_permlane32_swap_b32 v{v}, v20")
        A("s_nop 1")
        A(f"v_add_f32 v{v}, v{v}, v20")
    stats_to_lds(A, 16, 18)
    A("s_barrier")
    A.label(f"{P}DONE")

def gen_mega(name="interleave_layers__softmax_full_mha__ssm_conv_h3__prompt_kernel", opt=("prio",)):
    A = Asm()
    A("s_cmp_ge_u32 s2, 256")
    A("s_cbranch_scc1 M_END")
    if os.environ.get("IDMAP","") == "T":
        A("s_lshr_b32 s3, s2, 3")
        A("s_and_b32 s2, s2, 7")
        A("s_lshl_b32 s2, s2, 5")
        A("s_or_b32 s2, s2, s3")
    stamps.init(A)
    if stamps.ENABLED:
        A("s_memrealtime s[66:67]")
        A("s_waitcnt lgkmcnt(0)")
        A("s_mov_b32 s101, s66")
    A("s_load_dwordx2 s[4:5], s[0:1], %d" % KA_X)
    A("s_load_dwordx2 s[6:7], s[0:1], %d" % KA_WS)
    A("v_lshrrev_b32 v2, 6, v0")
    A("v_and_b32 v1, 63, v0")
    A("v_readfirstlane_b32 s22, v2      ; wave")
    A("s_waitcnt lgkmcnt(0)")
    A(f"s_add_u32 s56, s6, {EPOCH}")
    A("s_addc_u32 s57, s7, 0")
    A(f"s_load_dword s{sTAG}, s[56:57], 0")
    srd(A, 12, 6, WS_USED)
    A(f"s_mov_b32 s{sLAYER}, 0")
    A("s_mov_b32 s62, 0")
    A("s_mov_b32 s63, 0")
    A("s_mov_b32 s64, 0")
    A("s_waitcnt lgkmcnt(0)")
    A(f"s_mul_i32 s{sTAG}, s{sTAG}, 0x9e3779b1")
    A(f"s_add_u32 s{sTAG}, s{sTAG}, 0x7f4a7c15")
    stamps.stamp(A, 14)
    stamps.cyc_start(A)
    qkv1(A)
    A.label("M_ATT")
    A("s_and_b32 s20, s2, 7")
    A("s_lshr_b32 s21, s2, 3")
    A("s_lshl_b32 s20, s20, 2")
    A("s_and_b32 s23, s21, 3")
    A("s_add_u32 s20, s20, s23          ; head")
    A("s_lshr_b32 s21, s21, 2           ; qb")
    A("s_cmp_lg_u32 s22, 0")
    A("s_cbranch_scc1 M_F1W")
    A("s_lshr_b32 s34, s20, 1")
    A("s_lshl_b32 s34, s34, 13")
    A(f"s_lshl_b32 s35, s{sLAYER}, 17")
    A("s_add_u32 s34, s34, s35")
    A(f"s_add_u32 s34, s34, {F1}")
    A("v_and_b32 v1, 63, v0")
    A("v_lshlrev_b32 v2, 7, v1")
    poll_flags(A, "M_", "F1", 34, 2, 3)
    A.label("M_F1W")
    A("s_waitcnt lgkmcnt(0)")
    A("s_barrier")
    stamps.stamp(A, 5)
    def after_s0(A):
        A(f"s_cmp_lg_u32 s{sLAYER}, 0")
        A("s_cbranch_scc1 M_NFY")
        A("s_cmp_lg_u32 s22, 0")
        A("s_cbranch_scc1 M_NFY")
        A("s_lshl_b32 s36, s2, 2")
        A(f"s_add_u32 s36, s36, {FY}")
        set_flag(A, 36, 170)
        A.label("M_NFY")
    AT.body(A, "AT_", opt, fused=True, hook_after_s0=after_s0)
    stamps.stamp(A, 6)
    A("s_waitcnt vmcnt(0)")
    A("s_lshl_b32 s34, s25, 5")
    A("s_add_u32 s34, s34, s20")
    A("s_lshl_b32 s34, s34, 7")
    A(f"s_lshl_b32 s35, s{sLAYER}, 18")
    A("s_add_u32 s34, s34, s35")
    A(f"s_add_u32 s34, s34, {F2}")
    set_flag(A, 34, 170)
    A(f"s_cmp_lg_u32 s{sLAYER}, 0")
    A("s_cbranch_scc1 M_L1")
    A("v_and_b32 v1, 63, v0")
    A("v_lshlrev_b32 v2, 4, v1")
    A(f"s_mov_b32 s34, {FY}")
    poll_flags(A, "M_", "FY", 34, 2, 4, nd=4)
    srd(A, 8, 4, SZ_X)
    srd(A, 16, 6, X2_SZ, off=X2)
    A("s_branch M_L2")
    A.label("M_L1")
    A("s_load_dwordx2 s[4:5], s[0:1], %d" % KA_OUT)
    srd(A, 8, 6, X2_SZ, off=X2)
    A("s_waitcnt lgkmcnt(0)")
    srd(A, 16, 4, SZ_X)
    A.label("M_L2")
    opg_ids(A)
    A("s_lshl_b32 s38, s20, 12")
    A(f"s_lshl_b32 s35, s{sLAYER}, 18")
    A("s_add_u32 s38, s38, s35")
    A(f"s_add_u32 s38, s38, {F2}")
    A("v_and_b32 v52, 31, v0")
    A("v_lshlrev_b32 v52, 7, v52")
    A("s_mov_b32 s39, 0")
    A("s_cmp_lg_u32 s22, 0")
    A("s_cbranch_scc1 M_F2A")
    A("buffer_load_dword v53, v52, s[12:15], s38 offen sc1")
    A("s_waitcnt vmcnt(0)")
    check_regs(A, [53])
    A("s_cselect_b32 s39, 1, 0")
    A.label("M_F2A")
    if POLLBAR: A("s_barrier")
    opg_prefetch(A, "G_")
    A("s_cmp_lg_u32 s22, 0")
    A("s_cbranch_scc1 M_F2W")
    A("s_cmp_lg_u32 s39, 0")
    A("s_cbranch_scc1 M_F2W")
    poll_flags(A, "M_", "F2", 38, 52, 53)
    A.label("M_F2W")
    A("s_barrier")
    stamps.stamp(A, 8)
    h = opg_main(A, "G_")
    A(f"s_cmp_lg_u32 s{sLAYER}, 0")
    A("s_cbranch_scc1 M_FIN")
    opg_publish(A, "G_", h)
    A("s_barrier")
    stamps.stamp(A, 7)
    qkv2(A)
    stamps.stamp(A, 13)
    A(f"s_mov_b32 s{sLAYER}, 1")
    A(f"s_mov_b32 s62, {KV_LSZ}")
    A(f"s_mov_b32 s63, {QM_SZ}")
    A(f"s_mov_b32 s64, {QE_SZ}")
    A("s_branch M_ATT")
    A.label("M_FIN")
    A("s_cmp_lg_u32 s2, 0")
    A("s_cbranch_scc1 M_FIN2")
    A("s_cmp_lg_u32 s22, 0")
    A("s_cbranch_scc1 M_FIN2")
    A(f"s_mov_b32 s34, {EPOCH}")
    set_flag(A, 34, 52)
    A.label("M_FIN2")
    A("s_waitcnt vmcnt(0)")
    stamps.stamp(A, 15)
    if stamps.DBG:
        A("s_sub_u32 s84, s82, s101")
        A("s_add_u32 s84, s84, s82")
        stamps.flush_debug(A, [16,0,1,2,4,5,6,8,7,13,21,22,24,27,31,18])
    else: stamps.flush(A, 0, 14, 22, vt=52)
    A.label("M_END")
    A("s_endpgm")
    txt = A.text().replace(" lds sc1", " sc1 lds")
    return kernel_header(name) + txt, kernel_desc(name, 256), "; @launch grid=(256,1,1) block=(512,1,1) lds=163840"
```

```python
from asmlib import *
from layout import *
import stamps
import struct
def f2u(x): return struct.unpack("<I", struct.pack("<f", x))[0]

HALF = 4*KV_CHUNK
L_FL = 160000
LDS_ATT = L_FL + 64
vK, vKX, vV, vG, vL16, vR = 2, 3, 4, 5, 6, 7
QA, QXA, QXB, QB = 8, 12, 14, 16
KF = [20, 24]; KX = [28, 30]; V0 = [32, 36]; V1 = [40, 44]
PA, PB = 48, 56
OA, OB = 64, 80
SA = [96, 128]; SB = [112, 144]
T = 160

def mf16(A, d, a, b, c=None):
    c = f"v[{d}:{d+15}]" if c is None else c
    A(f"v_mfma_f32_32x32x16_bf16 v[{d}:{d+15}], v[{a}:{a+3}], v[{b}:{b+3}], {c}")
def mf8(A, d, a, b, c="0"):
    A(f"v_mfma_f32_32x32x8_bf16 v[{d}:{d+15}], v[{a}:{a+1}], v[{b}:{b+1}], {c}")
def mf4x2(A, d, a, b):
    A(f"v_mfma_f32_32x32x4_2b_bf16 v[{d}:{d+31}], v[{a}:{a+1}], v[{b}:{b+1}], 0")
def koff(t): return t*KV_TILE + (1024 if t >= 8 else 0)
def kxoff(t): return t*128 if t < 8 else KV_CHUNK + (t-8)*128

def body(A, P, opt, fused=False, hook_after_s0=None, hook_after_iter0=None, hook_loop_end=None, hook_before_loads=None):
    LF = "sc1" if fused else ""
    PRIO_IT, PRIO_T = 3, 4
    for o in opt:
        if o.startswith("pi"): PRIO_IT, PRIO_T = int(o[2]), int(o[3])
    A("v_and_b32 v1, 63, v0             ; lane")
    A(f"v_lshlrev_b32 v{vL16}, 4, v1")
    A(f"v_and_b32 v{vR}, 31, v1")
    A(f"v_lshrrev_b32 v{vG}, 5, v1")
    A("s_and_b32 s23, s22, 3            ; qp")
    A("s_lshr_b32 s24, s22, 2           ; kh")
    A("s_lshl_b32 s25, s21, 3")
    A("s_lshl_b32 s26, s23, 1")
    A("s_add_u32 s25, s25, s26          ; q tile a")
    A(f"s_mul_i32 s27, s20, {KV_HEAD}")
    A("s_lshl_b32 s28, s22, 10")
    A("s_add_u32 s27, s27, s28")
    A(f"s_add_u32 s27, s27, {KV}")
    if fused: A("s_add_u32 s27, s27, s62")
    def slot():
        A("s_mov_b32 m0, s28")
        A(f"s_add_u32 s30, s27, {HALF}")
        A(f"buffer_load_dwordx4 v{vL16}, s[12:15], s27 offen lds {LF}")
        A(f"s_add_u32 m0, s28, {HALF}")
        A("s_add_u32 s27, s27, 8192")
        A(f"buffer_load_dwordx4 v{vL16}, s[12:15], s30 offen lds {LF}")
        A("s_add_u32 s28, s28, 8192")
    A("s_lshl_b32 s31, s20, 16")
    A("s_lshl_b32 s32, s25, 10")
    A("s_add_u32 s31, s31, s32")
    A(f"s_add_u32 s31, s31, {QM}")
    if fused: A("s_add_u32 s31, s31, s63")
    A("s_lshl_b32 s33, s20, 13")
    A("s_lshl_b32 s32, s25, 7")
    A("s_add_u32 s33, s33, s32")
    A(f"s_add_u32 s33, s33, {QE}")
    if fused: A("s_add_u32 s33, s33, s64")
    A(f"v_lshlrev_b32 v{T}, 2, v{vR}      ; r32*4")
    if hook_before_loads: hook_before_loads(A)
    slot()
    A(f"buffer_load_dwordx4 v[{QA}:{QA+3}], v{vL16}, s[12:15], s31 offen {LF}")
    A(f"buffer_load_dwordx4 v[{QB}:{QB+3}], v{vL16}, s[12:15], s31 offen offset:1024 {LF}")
    A(f"v_lshl_add_u32 v{T+3}, v{vG}, 7, v{T}")
    A(f"buffer_load_dword v{QXA}, v{T+3}, s[12:15], s33 offen {LF}")
    slot(); slot()
    A(f"s_mul_i32 s34, s24, {HALF}")
    A(f"s_add_u32 s35, s34, 1024")
    A(f"v_add_u32 v{vK}, s35, v{vL16}")
    A(f"v_add_u32 v{vKX}, s34, v{T}")
    A(f"v_mul_u32_u24 v{T+1}, 320, v{vG}")
    A(f"v_min_u32 v{T+2}, 19, v{vR}")
    A(f"v_lshl_add_u32 v{T+1}, v{T+2}, 4, v{T+1}")
    A(f"s_add_u32 s35, s34, 2048")
    A(f"v_add_u32 v{vV}, s35, v{T+1}")
    for k in KX: A(f"v_mov_b32 v{k+1}, 0x3f803f80")
    A(f"v_mov_b32 v{QXA+1}, 0")
    for i in range(16):
        A(f"v_mov_b32 v{OA+i}, 0")
        A(f"v_mov_b32 v{OB+i}, 0")
    for i in range(4):
        A(f"v_mov_b32 v{PA+4+i}, 0")
        A(f"v_mov_b32 v{PB+4+i}, 0")
        A(f"v_mov_b32 v{V1[1]+i}, 0")
        A(f"v_mov_b32 v{SB[1]+12+i}, 0")
    if "prio" in opt:
        A("s_cmp_eq_u32 s24, 0")
        A(f"s_cbranch_scc1 {P}PR0")
        A("s_setprio 1")
        A("s_mov_b32 s51, 99")
        A(f"s_branch {P}PR1")
        A.label(f"{P}PR0")
        A("s_setprio 2")
        A(f"s_mov_b32 s51, {PRIO_IT}")
        A.label(f"{P}PR1")
    stamps.stamp(A, 0)
    A("s_waitcnt vmcnt(4)               ; slot 0 + Q")
    A("s_barrier")
    if hook_after_s0: hook_after_s0(A)
    A(f"ds_read_b128 v[{KF[0]}:{KF[0]+3}], v{vK}")
    A(f"ds_read_b32 v{KX[0]}, v{vKX}")
    stamps.stamp(A, 1)
    A("s_waitcnt lgkmcnt(0)")
    A(f"ds_read_b128 v[{KF[1]}:{KF[1]+3}], v{vK} offset:{koff(1)}")
    A(f"ds_read_b32 v{KX[1]}, v{vKX} offset:{kxoff(1)}")
    A(f"ds_read_b128 v[{V0[0]}:{V0[0]+3}], v{vV}")
    mf4x2(A, SA[0], KX[0], QXA)
    A("s_nop 15")
    A("s_nop 3")
    mf16(A, SA[0], KF[0], QA)
    mf16(A, SB[0], KF[0], QB)
    A("s_mov_b32 s41, 0                 ; iteration")
    A("s_nop 15")
    A_real = A
    class Filt:
        def __call__(self, x):
            if "nopv" in opt and "v_mfma" in x and (x.split()[1].startswith(f"v[{OA}:") or x.split()[1].startswith(f"v[{OB}:")): return
            if "noexp" in opt and "v_exp" in x: x = x.replace("v_exp_f32", "v_mov_b32")
            A_real(x)
        def label(self, n): A_real.label(n)
    F = Filt()
    E = lambda X, j: [F(f"v_exp_f32 v{X+4*j+i}, v{X+4*j+i}") for i in range(4)]
    def C(Pp, X, j):
        F(f"v_cvt_pk_bf16_f32 v{Pp+2*j}, v{X+4*j}, v{X+4*j+1}")
        F(f"v_cvt_pk_bf16_f32 v{Pp+2*j+1}, v{X+4*j+2}, v{X+4*j+3}")
    def step(t, first):
        p = t & 1; q = p ^ 1
        if first and t == 1:
            A("s_waitcnt vmcnt(0)           ; slots 1,2")
            A("s_barrier")
        F("s_waitcnt lgkmcnt(0)")
        F(f"ds_read_b128 v[{KF[p]}:{KF[p]+3}], v{vK} offset:{koff(t+2)}")
        F(f"ds_read_b32 v{KX[p]}, v{vKX} offset:{kxoff(t+2)}")
        F(f"ds_read_b128 v[{V0[q]}:{V0[q]+3}], v{vV} offset:{koff(t+1)}")
        F(f"ds_read_b128 v[{V1[p]}:{V1[p]+3}], v{vV} offset:{koff(t)+640}")
        if first and t >= 1: slot()
        XA, YA, XB, YB = SA[p], SA[q], SB[p], SB[q]
        C(PB, YB, 3)
        mf4x2(F, YA, KX[q], QXA); E(XA, 0)
        E(XA, 1); C(PA, XA, 0)
        mf16(F, OA, V1[q], PA+4); C(PA, XA, 1); E(XA, 2)
        mf16(F, OB, V1[q], PB+4); C(PA, XA, 2); E(XA, 3)
        mf16(F, YA, KF[q], QA);   C(PA, XA, 3); E(XB, 0)
        mf16(F, OA, V0[p], PA);   C(PB, XB, 0); E(XB, 1)
        mf16(F, YB, KF[q], QB);   C(PB, XB, 1); E(XB, 2)
        mf16(F, OB, V0[p], PB);   C(PB, XB, 2); E(XB, 3)
    def advance():
        A(f"v_add_u32 v{vK}, {KV_CHUNK}, v{vK}")
        A(f"v_add_u32 v{vKX}, {KV_CHUNK}, v{vKX}")
        A(f"v_add_u32 v{vV}, {KV_CHUNK}, v{vV}")
    def istamp():
        if stamps.ENABLED and "iters" in opt:
            A("s_memtime s[94:95]")
            A("s_waitcnt lgkmcnt(0)")
            for i in range(4):
                A(f"s_cmp_eq_u32 s41, {i}")
                A(f"s_cselect_b32 s{74+i}, s94, s{74+i}")
    for t in range(8): step(t, True)
    advance()
    istamp()
    A("s_mov_b32 s41, 1")
    A("s_waitcnt vmcnt(0)")
    A("s_barrier")
    if hook_after_iter0: hook_after_iter0(A)
    A.label(f"{P}LOOP")
    for t in range(8):
        step(t, False)
        if "prio" in opt and t == PRIO_T:
            A(f"s_cmp_eq_u32 s41, s51")
            A(f"s_cbranch_scc0 {P}NP")
            A("s_setprio 0")
            A.label(f"{P}NP")
    advance()
    istamp()
    A("s_add_u32 s41, s41, 1")
    A("s_cmp_lt_u32 s41, 4")
    A(f"s_cbranch_scc1 {P}LOOP")
    C = lambda Pp, X, j: (A(f"v_cvt_pk_bf16_f32 v{Pp+2*j}, v{X+4*j}, v{X+4*j+1}"), A(f"v_cvt_pk_bf16_f32 v{Pp+2*j+1}, v{X+4*j+2}, v{X+4*j+3}"))
    A("s_nop 0")
    C(PB, SB[1], 3)
    A("s_waitcnt lgkmcnt(0)")
    mf16(A, OA, V1[1], PA+4)
    A("s_nop 0")
    mf16(A, OB, V1[1], PB+4)
    if "prio" in opt: A("s_setprio 0")
    if hook_loop_end: hook_loop_end(A)
    stamps.stamp(A, 2)
    A("s_barrier                         ; nobody reads the K/V image any more")
    A("s_mul_i32 s47, s22, 3072")
    A(f"v_add_u32 v{T+1}, s47, v{vL16}")
    A("s_xor_b32 s47, s22, 4")
    A("s_mul_i32 s47, s47, 3072")
    A(f"v_add_u32 v{T+2}, s47, v{vL16}")
    A("s_nop 7")
    A("s_cmp_eq_u32 s24, 0")
    A(f"s_cbranch_scc0 {P}SND1")
    for j in range(3): A(f"ds_write_b128 v{T+1}, v[{OB+4*j}:{OB+4*j+3}] offset:{1024*j}")
    A(f"s_branch {P}SND2")
    A.label(f"{P}SND1")
    for j in range(3): A(f"ds_write_b128 v{T+1}, v[{OA+4*j}:{OA+4*j+3}] offset:{1024*j}")
    for i in range(11): A(f"v_mov_b32 v{OA+i}, v{OB+i}") if False else None
    A("s_add_u32 s25, s25, 1")
    A.label(f"{P}SND2")
    A("s_waitcnt lgkmcnt(0)")
    A("s_barrier")
    R = SA[0]
    for j in range(3): A(f"ds_read_b128 v[{R+4*j}:{R+4*j+3}], v{T+2} offset:{1024*j}")
    A(f"s_mov_b32 s42, {hex(f2u(2.0**-40))}")
    A(f"s_mov_b32 s43, {hex(f2u(2.0**60))}")
    A(f"s_mov_b32 s50, {hex(f2u(2.0**120))}")
    A(f"v_cmp_eq_u32 vcc, 0, v{vG}")
    A("s_cmp_eq_u32 s24, 0")
    A(f"s_cbranch_scc0 {P}ADD1")
    A("s_waitcnt lgkmcnt(0)")
    for i in range(11): A(f"v_add_f32 v{OA+i}, v{OA+i}, v{R+i}")
    A(f"s_branch {P}ADD2")
    A.label(f"{P}ADD1")
    A("s_waitcnt lgkmcnt(0)")
    for i in range(11): A(f"v_add_f32 v{OA+i}, v{OB+i}, v{R+i}")
    A.label(f"{P}ADD2")
    A(f"v_mov_b32 v{T}, v{OA+10}")
    A(f"v_mov_b32 v{T+1}, v{OA+10}")
    A(f"v_add_f32 v{T+2}, |v{OA+0}|, |v{OA+1}|")
    A(f"v_add_f32 v{T+3}, |v{OA+8}|, |v{OA+9}|")
    A(f"v_permlane32_swap_b32 v{T}, v{T+1}")
    for r in range(2,8): A(f"v_add_f32 v{T+2}, v{T+2}, |v{OA+r}|")
    A(f"v_cndmask_b32 v{T+3}, 0, v{T+3}, vcc")
    A(f"v_cmp_le_f32 s[46:47], s42, v{T}")
    A(f"v_add_f32 v{T+2}, v{T+2}, v{T+3}")
    A(f"v_cmp_ge_f32 s[48:49], s43, v{T}")
    A(f"v_cmp_ge_f32 s[52:53], s50, v{T+2}")
    A("s_nop 1")
    A("s_and_b64 s[46:47], s[46:47], s[48:49]")
    A("s_and_b64 s[46:47], s[46:47], s[52:53]")
    A("s_cmp_eq_u64 s[46:47], -1")
    if any(o.startswith("no") for o in opt): A(f"s_branch {P}NORM")
    A(f"s_cbranch_scc1 {P}NORM")
    A("s_cmp_eq_u32 s24, 0")
    A(f"s_cbranch_scc1 {P}SLQ")
    for i in range(4): A(f"v_mov_b32 v{QA+i}, v{QB+i}")
    A(f"v_mov_b32 v{T+7}, v{QXA}")
    A("s_nop 1")
    A(f"v_permlane32_swap_b32 v{T+7}, v{QXA}")
    A.label(f"{P}SLQ")
    A(f"v_cmp_eq_u32 vcc, 0, v{vG}")
    A("s_nop 1")
    A(f"v_cndmask_b32 v{QXA}, 0, v{QXA}, vcc")
    A(f"s_mul_i32 s46, s20, {KV_HEAD}")
    A(f"s_add_u32 s46, s46, {KV}")
    if fused: A("s_add_u32 s46, s46, s62")
    A(f"v_mov_b32 v{T+4}, 0xff800000")
    A(f"v_mov_b32 v{QXA+1}, 0")
    A(f"v_lshlrev_b32 v{T}, 2, v{vR}")
    A(f"v_mul_u32_u24 v{T+1}, 320, v{vG}")
    A(f"v_min_u32 v{T+2}, 19, v{vR}")
    A(f"v_lshl_add_u32 v{T+1}, v{T+2}, 4, v{T+1}")
    for pas in range(2):
        A(f"v_add_u32 v{vK}, 1024, v{vL16}")
        A(f"v_mov_b32 v{vKX}, v{T}")
        A(f"v_add_u32 v{vV}, 2048, v{T+1}")
        if pas == 1:
            for i in range(16): A(f"v_mov_b32 v{OA+i}, 0")
        A("s_mov_b32 s41, 0")
        A.label(f"{P}SL{pas}")
        A(f"buffer_load_dwordx4 v[{KF[0]}:{KF[0]+3}], v{vK}, s[12:15], s46 offen {LF}")
        A(f"buffer_load_dword v{KX[0]}, v{vKX}, s[12:15], s46 offen {LF}")
        if pas == 1:
            A(f"buffer_load_dwordx4 v[{V0[0]}:{V0[0]+3}], v{vV}, s[12:15], s46 offen {LF}")
            A(f"buffer_load_dwordx4 v[{V1[0]}:{V1[0]+3}], v{vV}, s[12:15], s46 offen offset:640 {LF}")
        A("s_waitcnt vmcnt(0)")
        mf8(A, SA[0], KX[0], QXA)
        mf16(A, SA[0], KF[0], QA)
        A("s_and_b32 s47, s41, 7")
        A("s_cmp_eq_u32 s47, 7")
        A(f"s_cselect_b32 s47, {KV_TILE+1024}, {0}")
        A(f"s_cselect_b32 s48, 1, 0")
        A(f"s_max_u32 s47, s47, {KV_TILE}")
        A(f"s_mul_i32 s48, s48, {KV_CHUNK-1024}")
        A("s_add_u32 s48, s48, 128")
        A(f"v_add_u32 v{vK}, s47, v{vK}")
        A(f"v_add_u32 v{vV}, s47, v{vV}")
        A(f"v_add_u32 v{vKX}, s48, v{vKX}")
        A("s_nop 15")
        if pas == 0:
            for i in range(0,16,2): A(f"v_max3_f32 v{T+4}, v{SA[0]+i}, v{SA[0]+i+1}, v{T+4}")
        else:
            for i in range(16): A(f"v_exp_f32 v{SA[0]+i}, v{SA[0]+i}")
            A("s_nop 0")
            for j in range(8): A(f"v_cvt_pk_bf16_f32 v{PA+j}, v{SA[0]+2*j}, v{SA[0]+2*j+1}")
            A("s_nop 1")
            mf16(A, OA, V0[0], PA)
            mf16(A, OA, V1[0], PA+4)
        A("s_add_u32 s41, s41, 1")
        A("s_cmp_lt_u32 s41, 64")
        A(f"s_cbranch_scc1 {P}SL{pas}")
        if pas == 0:
            A(f"v_mov_b32 v{T+5}, v{T+4}")
            A("s_nop 1")
            A(f"v_permlane32_swap_b32 v{T+4}, v{T+5}")
            A("s_nop 1")
            A(f"v_max_f32 v{T+4}, v{T+4}, v{T+5}")
            A(f"v_sub_f32 v{T+4}, 0, v{T+4}")
            A(f"v_and_b32 v{T+5}, 0xffff0000, v{T+4}")
            A(f"v_sub_f32 v{T+6}, v{T+4}, v{T+5}")
            A(f"v_cmp_eq_u32 vcc, 0, v{vG}")
            A(f"v_lshrrev_b32 v{T+5}, 16, v{T+5}")
            A(f"v_and_b32 v{T+6}, 0xffff0000, v{T+6}")
            A(f"v_or_b32 v{T+5}, v{T+5}, v{T+6}")
            A(f"v_cndmask_b32 v{QXA+1}, 0, v{T+5}, vcc")
    A("s_nop 15")
    A(f"v_mov_b32 v{T}, v{OA+10}")
    A(f"v_mov_b32 v{T+1}, v{OA+10}")
    A("s_nop 1")
    A(f"v_permlane32_swap_b32 v{T}, v{T+1}")
    A.label(f"{P}NORM")
    A("s_nop 0")
    A(f"v_rcp_f32 v{T}, v{T}")
    A("s_nop 0")
    for r in range(10): A(f"v_mul_f32 v{OA+r}, v{T}, v{OA+r}")
    for j in range(5): A(f"v_cvt_pk_bf16_f32 v{PA+j}, v{OA+2*j}, v{OA+2*j+1}")
    A(f"v_lshlrev_b32 v{T+1}, 5, v{vR}")
    A(f"v_lshl_add_u32 v{T+1}, v{vG}, 4, v{T+1}")
    A("s_lshl_b32 s26, s20, 16")
    A("s_lshl_b32 s27, s25, 10")
    A("s_add_u32 s26, s26, s27")
    A(f"s_add_u32 s26, s26, {OM}")
    if fused: A("s_add_u32 s26, s26, s63")
    A(f"buffer_store_dwordx4 v[{PA}:{PA+3}], v{T+1}, s[12:15], s26 offen {LF}")
    A("s_lshr_b32 s26, s20, 2")
    A("s_lshl_b32 s26, s26, 15")
    A("s_and_b32 s27, s20, 3")
    A("s_lshl_b32 s27, s27, 2")
    A("s_add_u32 s26, s26, s27")
    A("s_lshl_b32 s27, s25, 9")
    A("s_add_u32 s26, s26, s27")
    A(f"s_add_u32 s26, s26, {OE}")
    if fused: A("s_add_u32 s26, s26, s64")
    A(f"v_lshlrev_b32 v{T+2}, 4, v{vR}")
    A("s_mov_b32 exec_hi, 0")
    A(f"buffer_store_dword v{PA+4}, v{T+2}, s[12:15], s26 offen {LF}")
    A("s_mov_b32 exec_hi, -1")

def gen_att(name="att_kernel", P="AT_", kidx=3, opt=()):
    A = Asm()
    A("s_cmp_ge_u32 s2, 256")
    A(f"s_cbranch_scc1 {P}END")
    stamps.init(A)
    A("s_load_dwordx2 s[6:7], s[0:1], %d" % KA_WS)
    A("v_lshrrev_b32 v5, 6, v0")
    A("s_and_b32 s20, s2, 7")
    A("v_readfirstlane_b32 s22, v5      ; wave")
    A("s_lshr_b32 s21, s2, 3")
    A("s_lshl_b32 s20, s20, 2")
    A("s_and_b32 s23, s21, 3")
    A("s_add_u32 s20, s20, s23          ; head")
    A("s_lshr_b32 s21, s21, 2           ; qb")
    A("s_waitcnt lgkmcnt(0)")
    srd(A, 12, 6, WS_USED)
    body(A, P, opt)
    A("s_waitcnt vmcnt(0)")
    stamps.stamp(A, 3)
    stamps.flush(A, kidx, 8 if "iters" in opt else 4, 22, vt=160)
    A.label(f"{P}END")
    A("s_endpgm")
    return kernel_header(name) + A.text(), kernel_desc(name, 176), f"; @launch kernel={name} grid=(256,1,1) block=(512,1,1) lds={LDS_ATT}"
```

```python
from asmlib import *
from layout import *
import stamps as stamps_old, stamps2 as stamps, struct
stamps_old.ENABLED = False
import k_qkv3 as Q
import os
ROT1 = os.environ.get('ROT1','1')=='1'
ROT2 = os.environ.get('ROT2','1')=='1'
ROTO = os.environ.get('ROTO','1')=='1'
import k_att2 as AT
def f2u(x): return struct.unpack("<I", struct.pack("<f", x))[0]

OOB = 0x40000000
SPIN_MAX = 1 << 20
sTAG, sLAYER = 60, 61
FY = EPOCH + 1024

def spin(A, P, name, load, check, cnt=58):
    A(f"s_mov_b32 s{cnt}, 0")
    A.label(f"{P}{name}")
    load()
    A("s_waitcnt vmcnt(0)")
    check()
    A(f"s_cbranch_scc1 {P}{name}_OK")
    if SLEEP: A(f"s_sleep {SLEEP}")
    A(f"s_add_u32 s{cnt}, s{cnt}, 1")
    A(f"s_cmp_lt_u32 s{cnt}, {SPIN_MAX}")
    A(f"s_cbranch_scc1 {P}{name}")
    A.label(f"{P}{name}_OK")

def check_regs(A, regs):
    A(f"v_cmp_eq_u32 vcc, s{sTAG}, v{regs[0]}")
    for i, r in enumerate(regs[1:]):
        A(f"v_cmp_eq_u32 s[56:57], s{sTAG}, v{r}")
        A("s_nop 1")
        A("s_and_b64 vcc, vcc, s[56:57]")
    A("s_nop 1")
    A("s_cmp_eq_u64 vcc, -1")

def poll_flags(A, P, name, soff, vaddr, vdst, nd=1):
    ld = {1:"buffer_load_dword", 2:"buffer_load_dwordx2", 4:"buffer_load_dwordx4"}[nd]
    dst = f"v{vdst}" if nd == 1 else f"v[{vdst}:{vdst+nd-1}]"
    spin(A, P, name, lambda: A(f"{ld} {dst}, v{vaddr}, s[12:15], s{soff} offen sc1"),
         lambda: check_regs(A, list(range(vdst, vdst+nd))))

def set_flag(A, soff, vt):
    A(f"v_mov_b32 v{vt}, s{sTAG}")
    A(f"v_mov_b32 v{vt+1}, 0")
    A("s_mov_b64 exec, 1")
    A(f"buffer_store_dword v{vt}, v{vt+1}, s[12:15], s{soff} offen sc1")
    A("s_mov_b64 exec, -1")

def wpack(A, P, after_gathers=None):
    A("s_lshr_b32 s20, s2, 4            ; cg'")
    A("s_bfe_u32 s21, s2, 0x20002       ; t'")
    A("s_and_b32 s23, s2, 3             ; quarter")
    A("v_and_b32 v3, 31, v1             ; f")
    A("v_lshrrev_b32 v4, 5, v1          ; g")
    A("s_mul_i32 s24, s20, 36           ; a*18")
    A("v_lshrrev_b32 v5, 4, v3")
    A("v_mul_u32_u24 v5, 18, v5")
    A("s_cmp_eq_u32 s21, 3")
    A(f"s_cbranch_scc1 {P}T3")
    A("s_cmp_eq_u32 s21, 2")
    A(f"s_cbranch_scc1 {P}T2")
    A("v_bfe_u32 v6, v3, 2, 1")
    A("v_lshlrev_b32 v6, 3, v6")
    A("v_bfe_u32 v7, v3, 3, 1")
    A("v_lshl_add_u32 v6, v7, 2, v6")
    A("v_and_b32 v7, 3, v3")
    A("v_add3_u32 v6, v6, v7, v5")
    A("s_mul_i32 s25, s21, 576")
    A("s_add_u32 s25, s25, s24")
    A("v_add_u32 v6, s25, v6")
    A("v_lshlrev_b32 v6, 1, v6")
    A(f"s_branch {P}D")
    A.label(f"{P}T2")
    A("v_and_b32 v6, 15, v3")
    A("v_add_u32 v6, v6, v5")
    A("s_add_u32 s25, s24, 1152")
    A("v_add_u32 v6, s25, v6")
    A("v_lshlrev_b32 v6, 1, v6")
    A(f"s_branch {P}D")
    A.label(f"{P}T3")
    A("v_lshrrev_b32 v6, 2, v3")
    A("v_mul_u32_u24 v6, 576, v6")
    A("v_bfe_u32 v7, v3, 1, 1")
    A("v_mul_u32_u24 v7, 18, v7")
    A("v_and_b32 v8, 1, v3")
    A("v_add3_u32 v6, v6, v7, v8")
    A("s_add_u32 s25, s24, 16")
    A("v_add_u32 v6, s25, v6")
    A("v_lshlrev_b32 v6, 1, v6")
    A("v_cmp_gt_u32 vcc, 12, v3")
    A(f"v_mov_b32 v7, {hex(OOB)}")
    A("s_nop 0")
    A("v_cndmask_b32 v6, v7, v6, vcc")
    A.label(f"{P}D")
    A("v_mul_u32_u24 v7, 27648, v4")
    A("v_add_u32 v6, v6, v7")
    A("s_lshl_b32 s25, s22, 1")
    A("s_add_u32 s25, s25, 1")
    A("s_cmp_eq_u32 s22, 0")
    A("s_cselect_b32 s25, 0, s25")
    A("s_mul_i32 s26, s23, 9")
    A("s_add_u32 s25, s25, s26          ; ks0")
    A("s_mul_i32 s26, s25, %d" % (16*3456))
    def loads(j):
        for i in range(8):
            A(f"s_add_u32 s27, s26, {(16*j+i)*3456}")
            A(f"buffer_load_ushort v{16+8*j+i}, v6, s[8:11], s27 offen")
    loads(0); loads(1)
    A("s_cmp_lg_u32 s22, 0")
    A(f"s_cbranch_scc1 {P}L2")
    loads(2)
    A.label(f"{P}L2")
    if B0POS == 0: A("s_barrier")
    if after_gathers: after_gathers()

    A("s_lshl_b32 s27, s20, 2")
    A("s_add_u32 s27, s27, s21")
    A("s_mul_i32 s28, s27, 36")
    A("s_add_u32 s28, s28, s25")
    A("s_lshl_b32 s28, s28, 10")
    if WP: A(f"s_add_u32 s28, s28, {WP}")
    A("v_lshlrev_b32 v9, 4, v1")
    A("v_mov_b32 v10, 0")
    A("s_mov_b32 s29, 0x3f803f80")
    A("s_waitcnt vmcnt(20)")
    if B0POS == 1: A("s_barrier")
    def pack(j):
        b = 16+8*j; d = 48+4*j
        for q in range(4): A(f"v_lshl_or_b32 v{d+q}, v{b+2*q+1}, 16, v{b+2*q}")
        A(f"buffer_store_dwordx4 v[{d}:{d+3}], v9, s[12:15], s28 offen offset:{1024*j} sc1")
        for q in range(4): A(f"v_dot2_f32_bf16 v10, v{d+q}, s29, v10")
    pack(0); pack(1)
    A("s_cmp_lg_u32 s22, 0")
    A(f"s_cbranch_scc1 {P}P2")
    pack(2)
    A.label(f"{P}P2")
    A("s_nop 2")
    A("v_mov_b32 v11, v10")
    A("s_nop 1")
    A("v_permlane32_swap_b32 v10, v11")
    A("s_nop 1")
    A("v_add_f32 v10, v10, v11")
    A("s_lshl_b32 s28, s27, 4")
    A("s_lshl_b32 s29, s23, 2")
    A("s_add_u32 s28, s28, s29")
    A("s_add_u32 s28, s28, s22")
    A("s_lshl_b32 s28, s28, 7")
    A(f"s_add_u32 s28, s28, {CS4}")
    A("v_lshlrev_b32 v12, 2, v3")
    A("s_mov_b32 exec_hi, 0")
    A("buffer_store_dword v10, v12, s[12:15], s28 offen sc1")
    A("s_mov_b32 exec_hi, -1")
    A("s_waitcnt vmcnt(0)")
    A("s_and_b32 s28, s2, 15")
    A("s_lshl_b32 s28, s28, 2")
    A("s_add_u32 s28, s28, s22")
    A("s_lshl_b32 s29, s20, 6")
    A("s_add_u32 s28, s28, s29")
    A("s_lshl_b32 s28, s28, 7")
    A(f"s_add_u32 s28, s28, {F0}")
    set_flag(A, 28, 10)
    if B0POS == 2: A("s_barrier")

def wopack_issue(A, P):
    A("s_load_dwordx2 s[8:9], s[0:1], %d" % KA_WO)
    A("s_and_b32 s20, s2, 7")
    A("s_mul_i32 s20, s20, 81")
    A("s_lshr_b32 s21, s2, 3")
    A("s_mul_i32 s21, s21, 3")
    A("s_add_u32 s20, s20, s21")
    A("s_add_u32 s20, s20, s22          ; f'")
    A("s_mul_hi_u32 s23, s20, %d        ; ks = f'/36" % ((2**32+35)//36))
    A("s_mul_i32 s21, s23, 36")
    A("s_sub_u32 s21, s20, s21          ; j")
    A("v_and_b32 v208, 15, v1")
    A("v_lshrrev_b32 v209, 4, v1          ; kg")
    A("s_lshl_b32 s24, s21, 4           ; n0")
    A("v_add_u32 v210, s24, v208")
    A("v_lshlrev_b32 v210, 1, v210")
    A("s_mul_i32 s59, s21, 18")
    A("s_add_u32 s59, s59, s23")
    A("s_lshl_b32 s59, s59, 10")
    A(f"s_add_u32 s59, s59, {WOP}       ; destination")
    A("s_waitcnt lgkmcnt(0)")
    A("s_mov_b32 s10, %d" % SZ_WO)
    A(f"s_mov_b32 s11, {hex(SRD_W3)}")
    A("s_cmp_ge_u32 s23, 16")
    A(f"s_cbranch_scc1 {P}EXT")
    A("v_lshrrev_b32 v211, 1, v209")
    A("v_mul_u32_u24 v211, 18, v211")
    A("v_and_b32 v212, 1, v209")
    A("v_lshl_add_u32 v211, v212, 2, v211")
    A("v_mul_u32_u24 v211, 1152, v211")
    A("v_add_u32 v211, v211, v210")
    A("s_mul_i32 s25, s23, %d" % (36*1152))
    for i in range(8):
        A(f"s_add_u32 s26, s25, {((i&3) + 8*(i>>2))*1152}")
        A(f"buffer_load_ushort v{200+i}, v211, s[8:11], s26 offen")
    A(f"s_branch {P}ST")
    A.label(f"{P}EXT")
    A("v_mul_u32_u24 v211, %d, v209" % (72*1152))
    A("v_add_u32 v211, v211, v210")
    A("s_sub_u32 s25, s23, 16")
    A("s_mul_i32 s25, s25, %d" % (288*1152))
    for i in range(8):
        A(f"s_add_u32 s26, s25, {(18*(i>>1)+16+(i&1))*1152}")
        A(f"buffer_load_ushort v{200+i}, v211, s[8:11], s26 offen")
    A.label(f"{P}ST")

def wopack_finish(A):
    A("v_lshlrev_b32 v208, 4, v1")
    for q in range(4): A(f"v_lshl_or_b32 v{212+q}, v{200+2*q+1}, 16, v{200+2*q}")
    A("buffer_store_dwordx4 v[212:215], v208, s[12:15], s59 offen sc1")

def wopack_cond(A, lab):
    A("s_cmp_ge_u32 s22, 3")
    A(f"s_cbranch_scc1 {lab}")
    A("s_cmp_ge_u32 s2, 216")
    A(f"s_cbranch_scc1 {lab}")

def stats0_issue(A):
    A("s_lshl_b32 s20, s2, 3")
    A("v_lshrrev_b32 v141, 3, v1")
    A("v_add_u32 v141, s20, v141          ; row")
    A("v_and_b32 v142, 7, v1             ; c")
    A("v_mul_u32_u24 v143, 1152, v141")
    A("v_lshl_add_u32 v143, v142, 4, v143")
    for m in range(9):
        A(f"buffer_load_dwordx4 v[{100+4*m}:{103+4*m}], v143, s[36:39], 0 offen offset:{128*m}")

def stats0_finish(A):
    A("v_mov_b32 v136, 0")
    A("v_mov_b32 v138, 0")
    A("s_mov_b32 s56, 0x3f803f80")
    for m in range(9):
        for j in range(4):
            A(f"v_dot2_f32_bf16 v136, v{100+4*m+j}, s56, v136")
            A(f"v_dot2_f32_bf16 v138, v{100+4*m+j}, v{100+4*m+j}, v138")
    for v in (136, 138):
        A("s_nop 2")
        A(f"v_add_f32_dpp v{v}, v{v}, v{v} quad_perm:[1,0,3,2] row_mask:0xf bank_mask:0xf")
        A("s_nop 1")
        A(f"v_add_f32_dpp v{v}, v{v}, v{v} quad_perm:[2,3,0,1] row_mask:0xf bank_mask:0xf")
        A("s_nop 1")
        A(f"v_add_f32_dpp v{v}, v{v}, v{v} row_half_mirror row_mask:0xf bank_mask:0xf")
    A(f"v_mov_b32 v137, s{sTAG}")
    A(f"v_mov_b32 v139, s{sTAG}")
    A("v_lshlrev_b32 v140, 4, v141")
    A("v_cmp_eq_u32 vcc, 0, v142")
    A(f"s_mov_b32 s20, {ST0}")
    A("s_and_saveexec_b64 s[30:31], vcc")
    A("buffer_store_dwordx4 v[136:139], v140, s[12:15], s20 offen sc1")
    A("s_mov_b64 exec, -1")

def tjob_issue(A, sJ, R, sS):
    v = lambda n: f"v{R+n}"
    A(f"s_mul_hi_u32 s{sS}, s{sJ}, %d        ; tb" % ((2**32+35)//36))
    A(f"s_mul_i32 s{sS+1}, s{sS}, 36")
    A(f"s_sub_u32 s{sS+1}, s{sJ}, s{sS+1}        ; g16")
    A(f"v_and_b32 {v(2)}, 7, v1              ; tg")
    A(f"v_lshrrev_b32 {v(3)}, 3, v1")
    A(f"s_lshl_b32 s30, s{sS}, 6           ; t0")
    A(f"v_lshl_add_u32 {v(4)}, {v(2)}, 3, s30    ; T")
    A(f"s_lshl_b32 s30, s{sS+1}, 3")
    A(f"v_add_u32 {v(5)}, s30, {v(3)}")
    A(f"v_mul_u32_u24 {v(6)}, 1152, {v(4)}")
    A(f"v_lshl_add_u32 {v(6)}, {v(5)}, 2, {v(6)}")
    A(f"v_cmp_eq_u32 vcc, 0, {v(4)}")
    A(f"v_mov_b32 {v(10)}, {hex(OOB)}")
    for j in range(3):
        A(f"v_subrev_u32 {v(7+j)}, {(3-j)*1152}, {v(6)}")
        A(f"v_cndmask_b32 {v(7+j)}, {v(7+j)}, {v(10)}, vcc")
    A(f"v_lshlrev_b32 {v(10)}, 4, {v(5)}")
    A(f"buffer_load_dwordx4 v[{R+12}:{R+15}], {v(10)}, s[48:51], 0 offen")
    for j in range(3): A(f"buffer_load_dword {v(16+j)}, {v(7+j)}, s[40:43], 0 offen")
    for m in range(8):
        A(f"s_mov_b32 s30, {m*1152}")
        A(f"buffer_load_dword {v(19+m)}, {v(6)}, s[40:43], s30 offen")
    for m in range(8):
        A(f"s_mov_b32 s30, {m*1152}")
        A(f"buffer_load_dword {v(28+m)}, {v(6)}, s[44:47], s30 offen")

def tjob_finish(A, R, sS, sF):
    v = lambda n: f"v{R+n}"
    for c in range(2):
        A(f"v_lshlrev_b32 {v(40+4*c)}, 16, {v(12+2*c)}")
        A(f"v_and_b32 {v(41+4*c)}, 0xffff0000, {v(12+2*c)}")
        A(f"v_lshlrev_b32 {v(42+4*c)}, 16, {v(13+2*c)}")
        A(f"v_and_b32 {v(43+4*c)}, 0xffff0000, {v(13+2*c)}")
    for j in range(11):
        A(f"v_lshlrev_b32 {v(48+j)}, 16, {v(16+j)}")
        A(f"v_and_b32 {v(60+j)}, 0xffff0000, {v(16+j)}")
    for m in range(8):
        A(f"v_lshlrev_b32 {v(72+m)}, 16, {v(28+m)}")
        A(f"v_and_b32 {v(80+m)}, 0xffff0000, {v(28+m)}")
    for c in range(2):
        kb = 48+12*c; wb = 40+4*c; vb = 72+8*c
        for m in range(8):
            t = v(88 + (m & 1))
            A(f"v_mul_f32 {t}, {v(kb+m)}, {v(wb+3)}")
            A(f"v_fmac_f32 {t}, {v(kb+m+1)}, {v(wb+2)}")
            A(f"v_fmac_f32 {t}, {v(kb+m+2)}, {v(wb+1)}")
            A(f"v_fmac_f32 {t}, {v(kb+m+3)}, {v(wb+0)}")
            A(f"v_mul_f32 {v(vb+m)}, {t}, {v(vb+m)}")
        for mm in range(4):
            A(f"v_cvt_pk_bf16_f32 {v(92+4*c+mm)}, {v(vb+7-2*mm)}, {v(vb+6-2*mm)}")
    A(f"v_sub_u32 {v(6)}, 2040, {v(4)}")
    A(f"v_lshlrev_b32 {v(6)}, 1, {v(6)}")
    A(f"v_lshl_add_u32 {v(6)}, {v(5)}, 13, {v(6)}")
    A(f"s_mov_b32 s30, {XR}")
    A(f"buffer_store_dwordx4 v[{R+92}:{R+95}], {v(6)}, s[12:15], s30 offen sc1")
    A(f"v_add_u32 {v(7)}, 4096, {v(6)}")
    A(f"buffer_store_dwordx4 v[{R+96}:{R+99}], {v(7)}, s[12:15], s30 offen sc1")
    A(f"s_lshl_b32 s{sF}, s{sS+1}, 5")
    A(f"s_add_u32 s{sF}, s{sF}, s{sS}")
    A(f"s_lshl_b32 s{sF}, s{sF}, 7")
    A(f"s_add_u32 s{sF}, s{sF}, {FT}")

CP = 4160; XROFF = 4*CP; CPITCH = 21248
CB = Q.XB
L_CRED = CB + 3*CPITCH
assert L_CRED + 8*5120 <= 163840

def conv_setup_loads(A, P):
    A("s_load_dwordx2 s[16:17], s[0:1], %d" % KA_SSMK)
    A("s_lshr_b32 s30, s2, 3")
    A("s_lshr_b32 s31, s2, 6")
    A("s_add_u32 s31, s31, 32")
    A("v_and_b32 v2, 31, v1")
    A("v_lshlrev_b32 v2, 7, v2")
    A("v_mov_b32 v3, s30")
    A("v_mov_b32 v4, s31")
    A("v_cmp_gt_u32 vcc, 32, v1")
    A("s_waitcnt lgkmcnt(0)")
    A(f"s_mov_b32 s34, {FT}")
    A("v_cndmask_b32 v3, v4, v3, vcc")
    A("v_lshl_add_u32 v2, v3, 12, v2")
    A("s_mov_b32 s18, %d" % SZ_SSMK)
    A(f"s_mov_b32 s19, {hex(SRD_W3)}")
    A("v_lshlrev_b32 v3, 4, v1          ; lane*16")
    A("s_lshr_b32 s42, s25, 1")
    A("s_lshl_b32 s43, s2, 1")
    A("s_add_u32 s43, s43, s42          ; channel")
    A("s_lshl_b32 s43, s43, 12")
    A(f"s_mul_i32 s42, s42, {CPITCH}")
    A(f"s_add_u32 s42, s42, {CB}")
    A("s_and_b32 s47, s25, 1")
    A("s_lshl_b32 s47, s47, 11")
    for j in range(2):
        A(f"s_add_u32 s{48+j}, s47, {1024*j}")
        A(f"s_add_u32 s{44+j}, s42, s{48+j}")
        A(f"s_add_u32 s{40+j}, s43, s{48+j}") if j == 0 else A(f"s_add_u32 s41, s43, s49")
    A("s_lshl_b32 s50, s25, 10")
    A(f"s_add_u32 s46, s50, {CB + 2*CPITCH}")
    A("s_lshr_b32 s43, s2, 2")
    A("s_add_u32 s43, s43, 512")
    A("s_lshl_b32 s43, s43, 12")
    A("s_add_u32 s42, s43, s50")
    def kload(j):
        b = 16+8*j
        A(f"buffer_load_dwordx4 v[{b}:{b+3}], v3, s[16:19], s{40+j} offen")
        A(f"buffer_load_dwordx2 v[{b+4}:{b+5}], v3, s[16:19], s{40+j} offen offset:16")
    def xload(j):
        A(f"s_add_u32 s38, s{40+j}, {XR}")
        A(f"buffer_load_dwordx4 v[{64+4*j}:{67+4*j}], v3, s[12:15], s38 offen sc1")
    poll_flags(A, P, "FT", 34, 2, 5)
    for j in range(3): kload(j); xload(j)

def conv_setup_build(A, P):
    A("s_waitcnt vmcnt(0)")
    def build(j):
        b = 16+8*j
        A(f"v_add_u32 v6, s{44+j}, v3")
        A(f"v_add_u32 v7, {XROFF}, v6")
        A(f"ds_write_b128 v7, v[{64+4*j}:{67+4*j}]")
        A(f"ds_write_b128 v6, v[{b}:{b+3}] offset:32")
        A(f"v_alignbit_b32 v40, v{b+1}, v{b}, 16")
        A(f"v_alignbit_b32 v41, v{b+2}, v{b+1}, 16")
        A(f"v_alignbit_b32 v42, v{b+3}, v{b+2}, 16")
        A(f"v_alignbit_b32 v43, v{b+4}, v{b+3}, 16")
        A(f"ds_write_b128 v6, v[40:43] offset:{CP+32}")
        A("v_mov_b32 v44, v41")
        A("v_mov_b32 v45, v42")
        A("v_mov_b32 v46, v43")
        A(f"v_alignbit_b32 v47, v{b+5}, v{b+4}, 16")
        A(f"ds_write_b128 v6, v[44:47] offset:{3*CP+32}")
        A(f"v_mov_b32 v48, v{b+1}")
        A(f"v_mov_b32 v49, v{b+2}")
        A(f"v_mov_b32 v50, v{b+3}")
        A(f"v_mov_b32 v51, v{b+4}")
        A(f"ds_write_b128 v6, v[48:51] offset:{2*CP+32}")
        lab = f"{P}NH{j}"
        A(f"s_cmp_lg_u32 s{48+j}, 0")
        A(f"s_cbranch_scc1 {lab}")
        for q in range(8, 12): A(f"v_mov_b32 v{q}, 0")
        A(f"v_lshlrev_b32 v55, 16, v{b}")
        for q in (52,53,54,56,57,58,60,61): A(f"v_mov_b32 v{q}, 0")
        A(f"v_mov_b32 v59, v{b}")
        A("v_mov_b32 v62, v55")
        A("v_mov_b32 v63, v40")
        A("v_cmp_gt_u32 vcc, 30, v1")
        A("s_and_saveexec_b64 s[56:57], vcc")
        A(f"ds_write_b128 v6, v[8:11] offset:{XROFF+4096}")
        A("s_mov_b64 exec, 1")
        for s_ in range(4): A(f"ds_write_b128 v6, v[8:11] offset:{s_*CP}")
        A(f"ds_write_b128 v6, v[8:11] offset:16")
        A(f"ds_write_b128 v6, v[52:55] offset:{CP+16}")
        A(f"ds_write_b128 v6, v[56:59] offset:{2*CP+16}")
        A(f"ds_write_b128 v6, v[60:63] offset:{3*CP+16}")
        A("s_mov_b64 exec, -1")
        A.label(lab)
    build(0); build(1); build(2)
    A("s_waitcnt lgkmcnt(0)")

SETS = {0: [0,3,4,7], 1: [1,2,5,6]}
class ConvJob:
    BS = [32, 96]; AS = [64, 128]
    def __init__(s, A, P, G, acc, va, sb, red, dreg):
        s.A, s.P, s.G, s.ACC = A, P, G, acc
        s.vA, s.vB, s.vKV, s.vN = va, va+1, va+2, va+3
        s.sC, s.sH, s.sRG, s.sCH, s.sJ = sb, sb+1, sb+2, sb+3, sb+4
        s.red, s.pitch = red, (2048 if G == 2 else 3072)
        s.D = dreg
        s.nk = 4//G
    def setup(s):
        A = s.A
        if s.G == 2:
            A(f"s_lshr_b32 s{s.sC}, s22, 2")
            A(f"s_bfe_u32 s{s.sH}, s22, 0x10001")
            A(f"s_and_b32 s{s.sRG}, s22, 1")
            A(f"s_lshl_b32 s{s.sCH}, s2, 1")
            A(f"s_add_u32 s{s.sCH}, s{s.sCH}, s{s.sC}")
        else:
            A(f"s_mov_b32 s{s.sC}, 2")
            A(f"s_lshr_b32 s{s.sH}, s22, 2")
            A(f"s_and_b32 s{s.sRG}, s22, 3")
            A(f"s_add_u32 s{s.sCH}, s2, 512")
        A(f"s_mul_i32 s34, s{s.sC}, {CPITCH}")
        A(f"s_add_u32 s34, s34, {CB}")
        A(f"s_lshl_b32 s35, s{s.sCH}, 1")
        A(f"v_mov_b32 v28, s35")
        A(f"buffer_load_ushort v{s.D}, v28, s[16:19], 0 offen")
        A("v_and_b32 v2, 15, v1")
        A("v_lshrrev_b32 v3, 4, v1")
        A("v_add_u32 v4, 1, v2")
        A("v_and_b32 v5, 3, v4")
        A("v_sub_u32 v4, v4, v5")
        A("v_lshl_add_u32 v4, v3, 3, v4")
        A("v_lshlrev_b32 v4, 1, v4")
        A(f"v_mul_u32_u24 v5, {CP}, v5")
        A(f"s_lshl_b32 s35, s{s.sRG}, 6")
        A("s_add_u32 s36, s34, s35")
        A(f"v_add3_u32 v{s.vA}, v4, v5, s36")
        A("v_lshlrev_b32 v4, 5, v2")
        A("v_lshlrev_b32 v5, 4, v3")
        A(f"v_sub_u32 v{s.vB}, v5, v4")
        A(f"s_add_u32 s36, s36, {XROFF + 2*2032 - 3584}")
        A(f"v_add_u32 v{s.vB}, s36, v{s.vB}")
        A("v_lshlrev_b32 v5, 3, v3")
        A(f"v_add_u32 v{s.vN}, v4, v5")
        A(f"s_add_u32 s36, s34, {XROFF + 2*2044 - 3584}")
        A(f"v_sub_u32 v{s.vKV}, s36, v{s.vN}")
        for j in range(16): A(f"v_mov_b32 v{s.ACC+j}, 0")
    def compute(s, mid=None, last_extra=()):
        A, G = s.A, s.G
        nres = 8//G
        def variant(h):
            tiles = SETS[h]; J = tiles[-1]
            def loads(rr, st):
                r = G*rr
                L = []
                for mu in range(J+1):
                    L.append(f"ds_read_b128 v[{s.BS[st]+4*mu}:{s.BS[st]+4*mu+3}], v{s.vB} offset:{64*r+512*(7-mu)}")
                    m = 8*mu + r
                    L.append(f"ds_read_b64 v[{s.AS[st]+4*mu}:{s.AS[st]+4*mu+1}], v{s.vA} offset:{64*m}")
                    L.append(f"ds_read_b64 v[{s.AS[st]+4*mu+2}:{s.AS[st]+4*mu+3}], v{s.vA} offset:{64*m+8}")
                return L
            for l in loads(0, 0): A(l)
            for rr in range(nres):
                st = rr & 1
                A("s_waitcnt lgkmcnt(0)")
                nxt = loads(rr+1, st^1) if rr+1 < nres else list(last_extra)
                mf = []
                for mu in range(J+1):
                    for ti, j in enumerate(tiles):
                        if j < mu: continue
                        i = j - mu; d = s.ACC+4*ti
                        mf.append(f"v_mfma_f32_16x16x32_bf16 v[{d}:{d+3}], v[{s.AS[st]+4*mu}:{s.AS[st]+4*mu+3}], v[{s.BS[st]+4*i}:{s.BS[st]+4*i+3}], v[{d}:{d+3}]")
                k = 0
                for m_ in mf:
                    A(m_)
                    for _ in range(2):
                        if k < len(nxt): A(nxt[k]); k += 1
                while k < len(nxt): A(nxt[k]); k += 1
                if mid and rr == 0: mid(h)
        tag = f"{s.P}G{G}"
        A(f"s_cmp_eq_u32 s{s.sH}, 0")
        A(f"s_cbranch_scc0 {tag}H1")
        variant(0)
        A(f"s_branch {tag}HD")
        A.label(f"{tag}H1")
        variant(1)
        A.label(f"{tag}HD")
    def send(s):
        A, G, nk = s.A, s.G, s.nk
        A(f"s_mul_i32 s35, s22, {s.pitch}")
        A(f"s_add_u32 s35, s35, {s.red}")
        A("v_lshlrev_b32 v2, 4, v1")
        A("v_add_u32 v3, s35, v2")
        for rg in range(1, G):
            lab = f"{s.P}G{G}RT{rg}"
            A(f"s_cmp_eq_u32 s{s.sRG}, {rg}")
            A(f"s_cbranch_scc0 {lab}")
            sh = 4*rg*nk
            if G == 2:
                for j in range(8): A(f"v_swap_b32 v{s.ACC+j}, v{s.ACC+8+j}")
            else:
                for j in range(16): A(f"v_mov_b32 v{32+j}, v{s.ACC+(j+sh) % 16}")
                for j in range(16): A(f"v_mov_b32 v{s.ACC+j}, v{32+j}")
            A.label(lab)
        for q in range(4-nk):
            A(f"ds_write_b128 v3, v[{s.ACC+4*(nk+q)}:{s.ACC+4*(nk+q)+3}] offset:{1024*q}")
    def recv(s, R, KVr):
        A, G, nk = s.A, s.G, s.nk
        A("v_lshlrev_b32 v2, 4, v1")
        cnt = 0
        for d in range(1, G):
            A(f"s_add_u32 s36, s{s.sRG}, {d}")
            A(f"s_and_b32 s36, s36, {G-1}")
            A(f"s_andn2_b32 s37, s22, {G-1}")
            A("s_add_u32 s36, s36, s37")
            A(f"s_mul_i32 s36, s36, {s.pitch}")
            A(f"s_add_u32 s36, s36, {s.red}")
            A(f"v_add_u32 v4, s36, v2")
            for k in range(nk):
                q = ((G-d)*nk + k) % 4 - nk
                A(f"ds_read_b128 v[{R+4*cnt}:{R+4*cnt+3}], v4 offset:{1024*q}")
                cnt += 1
        for k in range(nk):
            A(f"s_mul_i32 s36, s{s.sRG}, {nk}")
            A(f"s_add_u32 s36, s36, {k}")
            A("s_lshl_b32 s36, s36, 2")
            A(f"s_mov_b32 s37, {hex(0x7430)}")
            A(f"s_mov_b32 s39, {hex(0x6521)}")
            A(f"s_cmp_eq_u32 s{s.sH}, 0")
            A("s_cselect_b32 s37, s37, s39")
            A("s_lshr_b32 s37, s37, s36")
            A(f"s_and_b32 s{s.sJ+k}, s37, 15")
            A(f"s_sub_u32 s36, 7, s{s.sJ+k}")
            A("s_lshl_b32 s36, s36, 9")
            A(f"v_add_u32 v5, s36, v{s.vKV}")
            A(f"ds_read_b64 v[{KVr+2*k}:{KVr+1+2*k}], v5")
    def finish(s, R, KVr, O):
        A, G, nk = s.A, s.G, s.nk
        A(f"v_lshlrev_b32 v{s.D}, 16, v{s.D}")
        cnt = 0
        for d in range(1, G):
            for k in range(nk):
                for r in range(4): A(f"v_add_f32 v{s.ACC+4*k+r}, v{s.ACC+4*k+r}, v{R+4*cnt+r}")
                cnt += 1
        for k in range(nk):
            r0, r1 = KVr+2*k, KVr+1+2*k; a = s.ACC+4*k
            A(f"v_and_b32 v76, 0xffff0000, v{r1}")
            A(f"v_lshlrev_b32 v77, 16, v{r1}")
            A(f"v_and_b32 v78, 0xffff0000, v{r0}")
            A(f"v_lshlrev_b32 v79, 16, v{r0}")
            for rr in range(4): A(f"v_fmac_f32 v{a+rr}, v{76+rr}, v{s.D}")
            A(f"v_cvt_pk_bf16_f32 v{O+2*k}, v{a}, v{a+1}")
            A(f"v_cvt_pk_bf16_f32 v{O+1+2*k}, v{a+2}, v{a+3}")
            A(f"s_lshl_b32 s36, s{s.sCH}, 12")
            A(f"s_lshl_b32 s37, s{s.sJ+k}, 9")
            A("s_add_u32 s36, s36, s37")
            A(f"s_add_u32 s36, s36, {YT}")
            A(f"buffer_store_dwordx2 v[{O+2*k}:{O+1+2*k}], v{s.vN}, s[12:15], s36 offen sc1")

class QuarterJob:
    B, Aa = 32, 64
    ACC = 160
    vA, vB, vKV, vN = 176, 177, 178, 179
    D = 30
    def __init__(s, A, P, red): s.A, s.P, s.red = A, P, red
    def setup(s):
        A = s.A
        A("s_lshr_b32 s49, s2, 2")
        A("s_add_u32 s49, s49, 512          ; channel")
        A("s_and_b32 s48, s2, 3             ; q")
        A(f"s_mov_b32 s34, {CB + 2*CPITCH}")
        A("s_lshl_b32 s35, s49, 1")
        A("v_mov_b32 v28, s35")
        A(f"buffer_load_ushort v{s.D}, v28, s[16:19], 0 offen")
        A("v_and_b32 v2, 15, v1")
        A("v_lshrrev_b32 v3, 4, v1")
        A("v_add_u32 v4, 1, v2")
        A("v_and_b32 v5, 3, v4")
        A("v_sub_u32 v4, v4, v5")
        A("v_lshl_add_u32 v4, v3, 3, v4")
        A("v_lshlrev_b32 v4, 1, v4")
        A(f"v_mul_u32_u24 v5, {CP}, v5")
        A("s_lshl_b32 s35, s22, 6           ; 64*residue")
        A("s_add_u32 s36, s34, s35")
        A(f"v_add3_u32 v{s.vA}, v4, v5, s36")
        A("v_lshlrev_b32 v4, 5, v2")
        A("v_lshlrev_b32 v5, 4, v3")
        A(f"v_sub_u32 v{s.vB}, v5, v4")
        A(f"s_add_u32 s36, s36, {XROFF + 2*2032 - 3584}")
        A(f"v_add_u32 v{s.vB}, s36, v{s.vB}")
        A("v_lshlrev_b32 v5, 3, v3")
        A(f"v_add_u32 v{s.vN}, v4, v5")
        A(f"s_add_u32 s36, s34, {XROFF + 2*2044 - 3584}")
        A(f"v_sub_u32 v{s.vKV}, s36, v{s.vN}")
        for j in range(8): A(f"v_mov_b32 v{s.ACC+j}, 0")
    def loads(s):
        L = []
        for mu in range(8):
            L.append(f"ds_read_b128 v[{s.B+4*mu}:{s.B+4*mu+3}], v{s.vB} offset:{512*(7-mu)}")
            L.append(f"ds_read_b64 v[{s.Aa+4*mu}:{s.Aa+4*mu+1}], v{s.vA} offset:{512*mu}")
            L.append(f"ds_read_b64 v[{s.Aa+4*mu+2}:{s.Aa+4*mu+3}], v{s.vA} offset:{512*mu+8}")
        return L
    def compute(s):
        A = s.A
        A("s_waitcnt lgkmcnt(0)")
        for q in range(4):
            if q < 3:
                A(f"s_cmp_eq_u32 s48, {q}")
                A(f"s_cbranch_scc0 {s.P}Q{q+1}")
            tiles = (q, 7-q)
            for mu in range(8-q):
                for ti, j in enumerate(tiles):
                    if j < mu: continue
                    d = s.ACC+4*ti
                    A(f"v_mfma_f32_16x16x32_bf16 v[{d}:{d+3}], v[{s.Aa+4*mu}:{s.Aa+4*mu+3}], v[{s.B+4*(j-mu)}:{s.B+4*(j-mu)+3}], v[{d}:{d+3}]")
            if q < 3:
                A(f"s_branch {s.P}QD")
                A.label(f"{s.P}Q{q+1}")
        A.label(f"{s.P}QD")
    def send(s):
        A = s.A
        A("s_lshl_b32 s35, s22, 11")
        A(f"s_add_u32 s35, s35, {s.red}")
        A("v_lshlrev_b32 v2, 4, v1")
        A("v_add_u32 v3, s35, v2")
        for k in range(2): A(f"ds_write_b128 v3, v[{s.ACC+4*k}:{s.ACC+4*k+3}] offset:{1024*k}")
    def recv(s, R, KVr):
        A = s.A
        A("s_lshl_b32 s35, s22, 10")
        A(f"s_add_u32 s35, s35, {s.red}")
        A("v_lshlrev_b32 v2, 4, v1")
        A("v_add_u32 v4, s35, v2")
        for w in range(8): A(f"ds_read_b128 v[{R+4*w}:{R+4*w+3}], v4 offset:{2048*w}")
        A("s_sub_u32 s36, 7, s48")
        A("s_cmp_eq_u32 s22, 0")
        A("s_cselect_b32 s50, s48, s36       ; tile j")
        A("s_sub_u32 s36, 7, s50")
        A("s_lshl_b32 s36, s36, 9")
        A(f"v_add_u32 v5, s36, v{s.vKV}")
        A(f"ds_read_b64 v[{KVr}:{KVr+1}], v5")
    def finish(s, R, KVr, O):
        A = s.A
        A(f"v_lshlrev_b32 v{s.D}, 16, v{s.D}")
        for w in range(1, 8):
            for r in range(4): A(f"v_add_f32 v{R+r}, v{R+r}, v{R+4*w+r}")
        A(f"v_and_b32 v76, 0xffff0000, v{KVr+1}")
        A(f"v_lshlrev_b32 v77, 16, v{KVr+1}")
        A(f"v_and_b32 v78, 0xffff0000, v{KVr}")
        A(f"v_lshlrev_b32 v79, 16, v{KVr}")
        for rr in range(4): A(f"v_fmac_f32 v{R+rr}, v{76+rr}, v{s.D}")
        A(f"v_cvt_pk_bf16_f32 v{O}, v{R}, v{R+1}")
        A(f"v_cvt_pk_bf16_f32 v{O+1}, v{R+2}, v{R+3}")
        A("s_lshl_b32 s36, s49, 12")
        A("s_lshl_b32 s37, s50, 9")
        A("s_add_u32 s36, s36, s37")
        A(f"s_add_u32 s36, s36, {YT}")
        A(f"buffer_store_dwordx2 v[{O}:{O+1}], v{s.vN}, s[12:15], s36 offen sc1")

def conv_compute(A, P):
    ja = ConvJob(A, P, 2, 8, 24, 40, L_CRED, 29)
    jq = QuarterJob(A, P, L_CRED + 8*2048)
    A("s_load_dwordx2 s[16:17], s[0:1], %d" % KA_SSMD)
    A("s_waitcnt lgkmcnt(0)")
    A("s_mov_b32 s18, %d" % SZ_SSMD)
    A(f"s_mov_b32 s19, {hex(SRD_W3)}")
    ja.setup()
    jq.setup()
    A("s_barrier")
    stamps.stampfix(A, 16)
    def mid(h):
        A("s_cmp_ge_u32 s22, 4")
        A(f"s_cbranch_scc1 {P}NF{h}")
        A("s_waitcnt vmcnt(0)")
        set_flag(A, 53, 180)
        wopack_cond(A, f"{P}NF{h}")
        wopack_issue(A, f"{P}O{h}")
        A.label(f"{P}NF{h}")
    ja.compute(mid, last_extra=jq.loads())
    stamps.stampfix(A, 17)
    jq.compute()
    stamps.stampfix(A, 20)
    A("s_nop 7")
    ja.send()
    jq.send()
    A("s_waitcnt lgkmcnt(0)")
    A("s_barrier")
    ja.recv(48, 72)
    A("s_cmp_ge_u32 s22, 2")
    A(f"s_cbranch_scc1 {P}NQR")
    jq.recv(96, 128)
    A.label(f"{P}NQR")
    A("s_waitcnt vmcnt(0) lgkmcnt(0)")
    stamps.stampfix(A, 18)
    ja.finish(48, 72, 80)
    A("s_cmp_ge_u32 s22, 2")
    A(f"s_cbranch_scc1 {P}NQF")
    jq.finish(96, 128, 132)
    A.label(f"{P}NQF")
    wopack_cond(A, f"{P}NWO1")
    wopack_finish(A)
    A.label(f"{P}NWO1")

G_PS, G_MR, G_OF, G_XT, G_YT = 0, 2048, 24576, 61440, 61440+9216
WFA, WFB = 64, 136
ACA, ACB = 8, 208

def red4(A, v, t):
    A(f"v_mov_b32 v{t}, v{v}")
    A("s_nop 1")
    A(f"v_permlane16_swap_b32 v{v}, v{t}")
    A("s_nop 1")
    A(f"v_add_f32 v{v}, v{v}, v{t}")
    A(f"v_mov_b32 v{t}, v{v}")
    A("s_nop 1")
    A(f"v_permlane32_swap_b32 v{v}, v{t}")
    A("s_nop 1")
    A(f"v_add_f32 v{v}, v{v}, v{t}")

def red4x4(A, vs, ts):
    for op in ("v_permlane16_swap_b32", "v_permlane32_swap_b32"):
        for v, t in zip(vs, ts): A(f"v_mov_b32 v{t}, v{v}")
        for v, t in zip(vs, ts): A(f"{op} v{v}, v{t}")
        for v, t in zip(vs, ts): A(f"v_add_f32 v{v}, v{v}, v{t}")

def opg_ids(A):
    A("s_and_b32 s20, s2, 7")
    A("s_lshr_b32 s21, s2, 3")
    A("s_lshl_b32 s20, s20, 3")
    A("s_lshr_b32 s23, s21, 2")
    A("s_add_u32 s20, s20, s23          ; rb (0..63)")
    A("s_and_b32 s21, s21, 3            ; cgo")

NP1 = int(os.environ.get('NP1','7'))
def opg_wloads(A, P, pairs, tag):
    def one(base, sb, pr):
        A(f"s_add_u32 s34, s36, {pr}")
        A("s_sub_u32 s35, s34, 9")
        A("s_cmp_ge_u32 s34, 9")
        A("s_cselect_b32 s34, s35, s34")
        A("s_lshl_b32 s34, s34, 11")
        A(f"s_add_u32 s34, s34, s{sb}")
        for j in range(2):
            ks = 2*pr + j
            A(f"buffer_load_dwordx4 v[{base+4*ks}:{base+4*ks+3}], v5, s[12:15], s34 offen offset:{j*1024} sc1")
    A("s_cmp_eq_u32 s22, 7")
    A(f"s_cbranch_scc1 {P}W7{tag}")
    for pr in pairs: one(WFA, 40, pr)
    A(f"s_branch {P}WD{tag}")
    A.label(f"{P}W7{tag}")
    for pr in pairs:
        one(WFA, 40, pr); one(WFB, 41, pr)
    A.label(f"{P}WD{tag}")

def opg_prefetch(A, P):
    opg_ids(A)
    A("v_and_b32 v1, 63, v0")
    A("v_and_b32 v3, 15, v1             ; n")
    A("v_lshrrev_b32 v4, 4, v1          ; kg")
    A("v_lshlrev_b32 v5, 4, v1          ; lane*16")
    A("s_and_b32 s36, s20, 7" if ROTO else "s_mov_b32 s36, 0")
    A("s_mul_i32 s40, s21, 9")
    A("s_add_u32 s41, s40, 8")
    A("s_add_u32 s40, s40, s22")
    for r in (40, 41):
        A(f"s_mul_i32 s{r}, s{r}, %d" % (18*1024))
        A(f"s_add_u32 s{r}, s{r}, {WOP}")
    opg_wloads(A, P, range(NP1), "a")
    A("s_mov_b32 s31, %d" % ((2**32+17)//18))
    A("s_mul_i32 s32, s20, %d" % (32*1152))
    A("s_mul_i32 s33, s21, 288")
    A("s_add_u32 s32, s32, s33")
    def xaddr(vL, vd):
        A(f"v_mul_hi_u32 v7, v{vL}, s31")
        A("v_mul_u32_u24 v8, 18, v7")
        A(f"v_sub_u32 v8, v{vL}, v8")
        A("v_mul_u32_u24 v9, 1152, v7")
        A(f"v_lshl_add_u32 v{vd}, v8, 4, v9")
    xaddr(0, 60)
    A("v_add_u32 v6, 512, v1")
    xaddr(6, 61)

def opg_xy_loads(A, P):
    A("s_lshl_b32 s34, s22, 10")
    A(f"s_add_u32 m0, s34, {G_XT}")
    A("s_nop 0")
    A("buffer_load_dwordx4 v60, s[8:11], s32 offen lds sc1")
    A("s_mul_i32 s33, s21, %d" % (144*4096))
    A("s_lshl_b32 s35, s20, 6")
    A("s_add_u32 s33, s33, s35")
    A(f"s_add_u32 s33, s33, {YT}")
    A("v_lshrrev_b32 v63, 2, v0")
    A("v_lshlrev_b32 v63, 12, v63")
    A("v_and_b32 v62, 3, v0")
    A("v_lshl_add_u32 v63, v62, 4, v63")
    A(f"s_add_u32 m0, s34, {G_YT}")
    A("s_nop 0")
    A("buffer_load_dwordx4 v63, s[12:15], s33 offen lds sc1")
    A("s_cmp_lg_u32 s22, 0")
    A(f"s_cbranch_scc1 {P}NX")
    A(f"s_mov_b32 m0, {G_XT + 8192}")
    A("s_nop 0")
    A("buffer_load_dwordx4 v61, s[8:11], s32 offen lds sc1")
    A(f"v_add_u32 v63, {128*4096}, v63        ; channels 128..143")
    A(f"s_mov_b32 m0, {G_YT + 8192}")
    A("s_nop 0")
    A("buffer_load_dwordx4 v63, s[12:15], s33 offen lds sc1")
    A.label(f"{P}NX")

def opg_main(A, P):
    A("v_lshrrev_b32 v6, 1, v4")
    A("v_lshlrev_b32 v6, 16, v6")
    A("v_lshl_add_u32 v6, v3, 5, v6")
    A("v_and_b32 v7, 1, v4")
    A("v_lshl_add_u32 v6, v7, 4, v6")
    A("s_lshl_b32 s24, s22, 18")
    A("s_lshl_b32 s25, s20, 10")
    A("s_add_u32 s24, s24, s25")
    A(f"s_add_u32 s24, s24, {OM}")
    A("s_add_u32 s24, s24, s63")
    A("s_and_b32 s36, s20, 7" if ROTO else "s_mov_b32 s36, 0")
    A("s_add_u32 s28, s22, 9")
    A("s_sub_u32 s28, s28, s36")
    A("s_sub_u32 s29, s28, 9")
    A("s_cmp_ge_u32 s28, 9")
    A("s_cselect_b32 s28, s29, s28")
    A("s_lshl_b32 s28, s28, 11")
    for rt in range(2):
        for kk in range(2):
            A(f"s_add_u32 m0, s28, {G_OF + rt*18432 + kk*1024}")
            A(f"s_add_u32 s30, s24, {kk*131072 + rt*512}")
            A("buffer_load_dwordx4 v6, s[12:15], s30 offen lds sc1")
    A("s_cmp_ge_u32 s22, 4")
    A(f"s_cbranch_scc1 {P}NE")
    A("v_lshlrev_b32 v6, 15, v4")
    A("v_lshl_add_u32 v6, v3, 4, v6")
    A("s_lshr_b32 s24, s22, 1           ; rt")
    A("s_and_b32 s25, s22, 1            ; e")
    A("s_lshl_b32 s26, s20, 9")
    A("s_lshl_b32 s27, s24, 8")
    A("s_add_u32 s26, s26, s27")
    A("s_lshl_b32 s27, s25, 17")
    A("s_add_u32 s26, s26, s27")
    A(f"s_add_u32 s26, s26, {OE}")
    A("s_add_u32 s26, s26, s64")
    A("s_mul_i32 s27, s24, 18432")
    A("s_lshl_b32 s28, s25, 10")
    A("s_add_u32 s27, s27, s28")
    A("s_sub_u32 s28, 8, s36")
    A("s_lshl_b32 s28, s28, 11")
    A("s_add_u32 s27, s27, s28")
    A(f"s_add_u32 m0, s27, {G_OF}")
    A("s_nop 0")
    A("buffer_load_dwordx4 v6, s[12:15], s26 offen lds sc1")
    A.label(f"{P}NE")
    for i in range(8):
        A(f"v_mov_b32 v{ACA+i}, 0")
        A(f"v_mov_b32 v{ACB+i}, 0")
    A("s_waitcnt vmcnt(0)")
    A("s_barrier")
    if NP1 < 9: opg_wloads(A, P, range(NP1, 9), "b")
    opg_xy_loads(A, P)
    stamps.stamp(A, 9)
    def mainloop(tiles):
        nt = len(tiles)
        def rd(ks, st):
            b = 16 + 8*st
            A(f"ds_read_b128 v[{b}:{b+3}], v5 offset:{G_OF + ks*1024}")
            A(f"ds_read_b128 v[{b+4}:{b+7}], v5 offset:{G_OF + 18432 + ks*1024}")
        rd(0,0); rd(1,1)
        for ks in range(18):
            st = ks % 3
            if ks + 2 < 18: rd(ks+2, (ks+2) % 3)
            lg = 4 if ks+2<18 else (2 if ks+1<18 else 0)
            if ks >= 2*NP1 and (ks & 1) == 0:
                pr = ks//2
                A(f"s_waitcnt vmcnt({2*nt*(8 - pr) + 2}) lgkmcnt({lg})")
            else:
                A(f"s_waitcnt lgkmcnt({lg})")
            b = 16 + 8*st
            for WF, AC in tiles:
                A(f"v_mfma_f32_16x16x32_bf16 v[{AC}:{AC+3}], v[{WF+4*ks}:{WF+4*ks+3}], v[{b}:{b+3}], v[{AC}:{AC+3}]")
                A(f"v_mfma_f32_16x16x32_bf16 v[{AC+4}:{AC+7}], v[{WF+4*ks}:{WF+4*ks+3}], v[{b+4}:{b+7}], v[{AC+4}:{AC+7}]")
    def ifB(fn, tag):
        A("s_cmp_lg_u32 s22, 7")
        A(f"s_cbranch_scc1 {P}NB{tag}")
        fn()
        A.label(f"{P}NB{tag}")
    A("s_cmp_eq_u32 s22, 7")
    A(f"s_cbranch_scc1 {P}ML2")
    mainloop([(WFA, ACA)])
    A(f"s_branch {P}MLD")
    A.label(f"{P}ML2")
    mainloop([(WFA, ACA), (WFB, ACB)])
    A.label(f"{P}MLD")
    A("s_waitcnt vmcnt(0)")
    A("s_barrier")
    A("v_mul_u32_u24 v40, 288, v3")
    A("v_lshl_add_u32 v40, v4, 3, v40")
    A("s_lshl_b32 s33, s22, 5")
    A(f"s_add_u32 s33, s33, {G_XT}")
    A("v_add_u32 v40, s33, v40")
    A("v_lshrrev_b32 v41, 2, v3")
    A("v_lshl_add_u32 v41, v4, 2, v41")
    A("v_lshlrev_b32 v41, 6, v41")
    A("v_and_b32 v42, 3, v1")
    A("v_lshl_add_u32 v41, v42, 3, v41")
    A("s_lshl_b32 s33, s22, 10")
    A(f"s_add_u32 s33, s33, {G_YT}")
    A("v_add_u32 v41, s33, v41")
    XA_, YA_, XB_, YB_ = 44, 48, 216, 220
    def rdxy(X, Y, dx, dy):
        A(f"ds_read_b64 v[{X}:{X+1}], v40 offset:{dx}")
        A(f"ds_read_b64 v[{X+2}:{X+3}], v40 offset:{dx + 16*288}")
        A(f"ds_read_b64_tr_b16 v[{Y}:{Y+1}], v41 offset:{dy}")
        A(f"ds_read_b64_tr_b16 v[{Y+2}:{Y+3}], v41 offset:{dy + 32}")
    rdxy(XA_, YA_, 0, 0)
    ifB(lambda: rdxy(XB_, YB_, 32, 1024), "r")
    A("s_waitcnt lgkmcnt(0)")
    A("s_nop 3")
    def x1(AC, X):
        for rt in range(2):
            x = X+2*rt; a = AC+4*rt
            A(f"v_lshlrev_b32 v52, 16, v{x}")
            A(f"v_and_b32 v53, 0xffff0000, v{x}")
            A(f"v_lshlrev_b32 v54, 16, v{x+1}")
            A(f"v_and_b32 v55, 0xffff0000, v{x+1}")
            for r in range(4): A(f"v_add_f32 v{a+r}, v{a+r}, v{52+r}")
            A(f"v_cvt_pk_bf16_f32 v56, v{a}, v{a+1}")
            A(f"v_cvt_pk_bf16_f32 v57, v{a+2}, v{a+3}")
            A(f"v_lshlrev_b32 v{a}, 16, v56")
            A(f"v_and_b32 v{a+1}, 0xffff0000, v56")
            A(f"v_lshlrev_b32 v{a+2}, 16, v57")
            A(f"v_and_b32 v{a+3}, 0xffff0000, v57")
    x1(ACA, XA_)
    ifB(lambda: x1(ACB, XB_), "x")
    def sums(AC, first):
        for rt in range(2):
            a = AC+4*rt; s1 = 16+2*rt; s2 = s1+1
            if first:
                A(f"v_add_f32 v{s1}, v{a}, v{a+1}")
                A(f"v_mul_f32 v{s2}, v{a}, v{a}")
            else:
                A(f"v_add_f32 v{s1}, v{s1}, v{a}")
                A(f"v_add_f32 v{s1}, v{s1}, v{a+1}")
                A(f"v_fmac_f32 v{s2}, v{a}, v{a}")
            A(f"v_add_f32 v{s1}, v{s1}, v{a+2}")
            A(f"v_add_f32 v{s1}, v{s1}, v{a+3}")
            for r in range(1,4): A(f"v_fmac_f32 v{s2}, v{a+r}, v{a+r}")
    def partial_stats(tag, drain=False):
        sums(ACA, True)
        ifB(lambda: sums(ACB, False), "s"+tag)
        red4x4(A, (16,17,18,19), (52,53,54,55))
        A("s_lshl_b32 s33, s22, 8")
        A("v_lshl_add_u32 v53, v3, 3, s33")
        A("s_mov_b64 exec, 0xffff")
        A(f"ds_write_b64 v53, v[16:17] offset:{G_PS}")
        A(f"ds_write_b64 v53, v[18:19] offset:{G_PS+128}")
        A("s_mov_b64 exec, -1")
        A("s_waitcnt vmcnt(0) lgkmcnt(0)" if drain else "s_waitcnt lgkmcnt(0)")
        A("s_barrier")
    def wg_sum():
        A("v_and_b32 v54, 31, v1")
        A("v_lshlrev_b32 v54, 3, v54")
        for w in range(8): A(f"ds_read_b64 v[{22+2*w}:{23+2*w}], v54 offset:{G_PS + 256*w}")
        A("s_waitcnt lgkmcnt(0)")
        A("v_add_f32 v20, v22, v24")
        A("v_add_f32 v21, v23, v25")
        for w in range(2,8):
            A(f"v_add_f32 v20, v20, v{22+2*w}")
            A(f"v_add_f32 v21, v21, v{23+2*w}")
    partial_stats("a")
    stamps.stamp(A, 10)
    A("s_cmp_lg_u32 s22, 0")
    A(f"s_cbranch_scc1 {P}WAITST")
    wg_sum()
    A(f"s_mul_i32 s33, s{sLAYER}, {EX_SZ}")
    A("s_lshl_b32 s35, s20, 11          ; rb*4*512")
    A("s_add_u32 s33, s33, s35")
    A(f"s_add_u32 s33, s33, {EX0}")
    A("s_lshl_b32 s35, s21, 9")
    A("s_add_u32 s35, s35, s33")
    A("v_mov_b32 v24, v20")
    A(f"v_mov_b32 v25, s{sTAG}")
    A("v_mov_b32 v26, v21")
    A(f"v_mov_b32 v27, s{sTAG}")
    A("v_lshlrev_b32 v55, 1, v54          ; row*16")
    A("s_mov_b32 exec_hi, 0")
    A("buffer_store_dwordx4 v[24:27], v55, s[12:15], s35 offen sc1")
    A("s_mov_b32 exec_hi, -1")
    A("v_lshrrev_b32 v56, 5, v1")
    A("v_lshl_add_u32 v55, v56, 9, v55")
    def ld():
        A("buffer_load_dwordx4 v[24:27], v55, s[12:15], s33 offen sc1")
        A("buffer_load_dwordx4 v[28:31], v55, s[12:15], s33 offen offset:1024 sc1")
    spin(A, P, "EX", ld, lambda: check_regs(A, [25,27,29,31]))
    A("v_add_f32 v22, v24, v28")
    A("v_add_f32 v23, v26, v30")
    for v in (22,23):
        A(f"v_mov_b32 v24, v{v}")
        A("s_nop 1")
        A(f"v_permlane32_swap_b32 v{v}, v24")
        A("s_nop 1")
        A(f"v_add_f32 v{v}, v{v}, v24")
    A(f"v_mul_f32 v22, {hex(f2u(1.0/576))}, v22")
    A(f"v_mul_f32 v23, {hex(f2u(1.0/576))}, v23")
    A("v_fma_f32 v23, -v22, v22, v23")
    A("v_max_f32 v23, 0, v23")
    A(f"v_add_f32 v23, {hex(f2u(1e-5))}, v23")
    A("v_rsq_f32 v23, v23")
    A("s_nop 0")
    A(f"ds_write_b64 v54, v[22:23] offset:{G_MR}")
    A("s_waitcnt lgkmcnt(0)")
    A.label(f"{P}WAITST")
    A("s_barrier")
    stamps.stamp(A, 11)
    A("v_lshlrev_b32 v53, 3, v3")
    A(f"ds_read_b64 v[24:25], v53 offset:{G_MR}")
    A(f"ds_read_b64 v[26:27], v53 offset:{G_MR+128}")
    A("s_waitcnt lgkmcnt(0)")
    def gate(AC, X, Y, dx):
        for rt in range(2):
            a = AC+4*rt; y = Y+2*rt; mu = 24+2*rt; rs = mu+1
            A(f"v_lshlrev_b32 v52, 16, v{y}")
            A(f"v_and_b32 v53, 0xffff0000, v{y}")
            A(f"v_lshlrev_b32 v54, 16, v{y+1}")
            A(f"v_and_b32 v55, 0xffff0000, v{y+1}")
            for r in range(4):
                A(f"v_sub_f32 v56, v{a+r}, v{mu}")
                A(f"v_mul_f32 v56, v56, v{rs}")
                A(f"v_fmac_f32 v{a+r}, v56, v{52+r}")
            A(f"v_cvt_pk_bf16_f32 v{X+2*rt}, v{a}, v{a+1}")
            A(f"v_cvt_pk_bf16_f32 v{X+2*rt+1}, v{a+2}, v{a+3}")
        A(f"ds_write_b64 v40, v[{X}:{X+1}] offset:{dx}")
        A(f"ds_write_b64 v40, v[{X+2}:{X+3}] offset:{dx + 16*288}")
    gate(ACA, XA_, YA_, 0)
    ifB(lambda: gate(ACB, XB_, YB_, 32), "g")
    A("s_waitcnt lgkmcnt(0)")
    A("s_barrier")
    A("v_lshlrev_b32 v53, 4, v0")
    A(f"v_add_u32 v53, {G_XT}, v53")
    A(f"v_add_u32 v54, {G_XT + 8192}, v5")
    A(f"ds_read_b128 v[28:31], v53")
    A(f"ds_read_b128 v[32:35], v54")
    A("s_waitcnt lgkmcnt(0)")
    A("buffer_store_dwordx4 v[28:31], v60, s[16:19], s32 offen sc1")
    A("s_cmp_lg_u32 s22, 0")
    A(f"s_cbranch_scc1 {P}NS2")
    A("buffer_store_dwordx4 v[32:35], v61, s[16:19], s32 offen sc1")
    A.label(f"{P}NS2")
    return dict(partial_stats=partial_stats, wg_sum=wg_sum, ifB=ifB, regs=(XA_, XB_))

def opg_publish(A, P, h):
    stamps.stampfix(A, 19)
    XA_, XB_ = h["regs"]
    def unpack(AC, X):
        for rt in range(2):
            a = AC+4*rt; x = X+2*rt
            A(f"v_lshlrev_b32 v{a}, 16, v{x}")
            A(f"v_and_b32 v{a+1}, 0xffff0000, v{x}")
            A(f"v_lshlrev_b32 v{a+2}, 16, v{x+1}")
            A(f"v_and_b32 v{a+3}, 0xffff0000, v{x+1}")
    unpack(ACA, XA_)
    h["ifB"](lambda: unpack(ACB, XB_), "u")
    h["partial_stats"]("b", drain=True)
    A("s_cmp_lg_u32 s22, 0")
    A(f"s_cbranch_scc1 {P}NST")
    A("s_lshr_b32 s33, s20, 2")
    A("s_lshl_b32 s33, s33, 4")
    A("s_and_b32 s34, s20, 3")
    A("s_lshl_b32 s34, s34, 2")
    A("s_add_u32 s34, s34, s21")
    A("s_add_u32 s33, s33, s34")
    A("s_lshl_b32 s33, s33, 7")
    A(f"s_add_u32 s33, s33, {F3}")
    set_flag(A, 33, 52)
    stamps.stampfix(A, 23)
    h["wg_sum"]()
    A("v_mov_b32 v24, v20")
    A(f"v_mov_b32 v25, s{sTAG}")
    A("v_mov_b32 v26, v21")
    A(f"v_mov_b32 v27, s{sTAG}")
    A("v_and_b32 v54, 31, v1")
    A("v_lshlrev_b32 v54, 6, v54          ; row*64")
    A("s_lshl_b32 s33, s20, 11          ; rb*32*64")
    A("s_lshl_b32 s35, s21, 4")
    A("s_add_u32 s33, s33, s35")
    A(f"s_add_u32 s33, s33, {ST1}")
    A("s_mov_b32 exec_hi, 0")
    A("buffer_store_dwordx4 v[24:27], v54, s[12:15], s33 offen sc1")
    A("s_mov_b32 exec_hi, -1")
    A.label(f"{P}NST")

V_CSUM = 240

def stats_to_lds(A, s1, s2):
    T = Q.T
    A(f"v_mul_f32 v{s1}, {hex(f2u(1.0/576))}, v{s1}")
    A(f"v_mul_f32 v{s2}, {hex(f2u(1.0/576))}, v{s2}")
    A(f"v_fma_f32 v{s2}, -v{s1}, v{s1}, v{s2}")
    A(f"v_max_f32 v{s2}, 0, v{s2}")
    A(f"v_add_f32 v{s2}, {hex(f2u(1e-5))}, v{s2}")
    A(f"v_rsq_f32 v{s2}, v{s2}")
    A("s_lshl_b32 s30, s25, 7")
    A(f"v_lshl_add_u32 v{T}, v{Q.V_R}, 2, s30")
    A(f"ds_write_b32 v{T}, v{s1} offset:{Q.L_MU}")
    A(f"ds_write_b32 v{T}, v{s2} offset:{Q.L_RS}")
    A(f"ds_write_b32 v{T}, v{V_CSUM} offset:{Q.L_CS}")
    A("s_waitcnt lgkmcnt(0)")

def f1_offset(A, layer, sd):
    A("s_lshl_b32 s30, s24, 6")
    A("s_lshl_b32 s31, s23, 2")
    A("s_add_u32 s30, s30, s31")
    A("s_add_u32 s30, s30, s25")
    A("s_lshl_b32 s30, s30, 7")
    A(f"s_add_u32 s{sd}, s30, {F1 + layer*16*64*FS}")

def f1_flag(A, layer):
    f1_offset(A, layer, 30)
    A("s_waitcnt vmcnt(0)")
    set_flag(A, 30, 80)

def qkv_ids(A):
    Q.decode_id(A)
    Q.setup_scalars(A)
    A("v_and_b32 v1, 63, v0")
    Q.lane_consts(A)

def qkv1(A):
    P = "A_"
    Q.ROT = ROT1
    qkv_ids(A)
    A("s_cmp_ge_u32 s22, 4")
    A(f"s_cbranch_scc1 {P}HELP")
    A("s_load_dwordx2 s[8:9], s[0:1], %d" % KA_WQKV)
    A("s_waitcnt lgkmcnt(0)")
    A("s_mov_b32 s10, %d" % SZ_WQKV)
    A(f"s_mov_b32 s11, {hex(SRD_W3)}")
    def kv_issue():
        t_srds(A)
        A("s_lshl_b32 s34, s2, 2")
        A("s_add_u32 s34, s34, s22")
        tjob_issue(A, 34, 100, 54)
    wpack(A, P+"W", after_gathers=kv_issue)
    stamps.stamp(A, 0)
    tjob_finish(A, 100, 54, 52)
    qkv_ids(A)
    A("s_lshl_b32 s34, s24, 13")
    A(f"s_add_u32 s34, s34, {F0}")
    A("v_lshlrev_b32 v2, 7, v1")
    poll_flags(A, P, "F0", 34, 2, 3)
    set_flag(A, 52, 4)
    stamps.stamp(A, 1)
    Q.issue_w(A, NPW1, "sc1")
    Q.consumer(A, P, QM, QE, KV, "sc1", npre_w=NPW1, wflags="sc1", chunk_barriers=False)
    stamps.stamp(A, 2)
    f1_offset(A, 0, 53)
    A(f"s_branch {P}CONV")
    A.label(f"{P}HELP")
    srd(A, 8, 4, SZ_X)
    Q.helper_voffsets(A)
    A("s_cmp_eq_u32 s25, 1")
    A("s_cselect_b32 s53, 1, 0")
    A("s_cmp_lt_u32 s2, 128")
    A("s_cselect_b32 s53, s53, 0")
    A("s_cmp_lg_u32 s25, 0")
    A(f"s_cbranch_scc1 {P}NST0")
    srd(A, 36, 4, SZ_X)
    stats0_issue(A)
    A("s_waitcnt vmcnt(0)")
    stats0_finish(A)
    A.label(f"{P}NST0")
    A("s_cmp_eq_u32 s53, 0")
    A(f"s_cbranch_scc1 {P}NX0")
    t_srds(A)
    A("s_add_u32 s34, s2, 1024")
    tjob_issue(A, 34, 100, 54)
    A.label(f"{P}NX0")
    A("s_barrier")
    for kc in range(9): Q.issue_x(A, kc, 8)
    A("s_cmp_eq_u32 s53, 0")
    A(f"s_cbranch_scc1 {P}NX1")
    A("s_waitcnt vmcnt(36)")
    tjob_finish(A, 100, 54, 52)
    A("s_waitcnt vmcnt(0)")
    set_flag(A, 52, 10)
    A.label(f"{P}NX1")
    A("s_waitcnt vmcnt(0)")
    stamps.stamp(A, 0)
    A("s_barrier")
    stamps.stamp(A, 1)
    qkv_ids(A)
    A("s_lshl_b32 s30, s24, 2")
    A("s_add_u32 s30, s30, s25")
    A("s_lshl_b32 s30, s30, 11")
    A(f"s_add_u32 s30, s30, {CS4}")
    A(f"v_lshlrev_b32 v28, 2, v{Q.V_R}")
    for q in range(16): A(f"buffer_load_dword v{32+q}, v28, s[12:15], s30 offen offset:{128*q} sc1")
    A("s_lshl_b32 s34, s23, 7")
    A("s_lshl_b32 s35, s25, 5")
    A("s_add_u32 s34, s34, s35")
    A("s_lshl_b32 s34, s34, 4")
    A(f"s_add_u32 s34, s34, {ST0}")
    A(f"v_lshlrev_b32 v29, 4, v{Q.V_R}")
    spin(A, P, "ST", lambda: A("buffer_load_dwordx4 v[16:19], v29, s[12:15], s34 offen sc1"), lambda: check_regs(A, [17,19]))
    for q in range(1,16): A(f"v_add_f32 v32, v32, v{32+q}")
    A(f"v_mov_b32 v{V_CSUM}, v32")
    stats_to_lds(A, 16, 18)
    conv_setup_loads(A, P+"C")
    A("s_barrier")
    stamps.stamp(A, 2)
    conv_setup_build(A, P+"C")
    stamps.stamp(A, 3)
    A.label(f"{P}CONV")
    conv_compute(A, P+"C")
    stamps.stamp(A, 4)

def t_srds(A):
    A("s_load_dwordx2 s[40:41], s[0:1], %d" % KA_BK)
    A("s_load_dwordx2 s[44:45], s[0:1], %d" % KA_BV)
    A("s_load_dwordx2 s[48:49], s[0:1], %d" % KA_SHIFT)
    A("s_waitcnt lgkmcnt(0)")
    for b, n in ((40, SZ_X), (44, SZ_X), (48, SZ_SHIFT)):
        A(f"s_mov_b32 s{b+2}, {n}")
        A(f"s_mov_b32 s{b+3}, {hex(SRD_W3)}")

def qkv2(A):
    P = "B_"
    Q.ROT = ROT2
    qkv_ids(A)
    A("s_cmp_ge_u32 s22, 4")
    A(f"s_cbranch_scc1 {P}HELP")
    A("s_barrier")
    Q.issue_w(A, NPW2, WF2, cap=CAPQ)
    stamps.stampfix(A, 28)
    Q.HOOK_EPI = lambda A: stamps.stampfix(A, 29)
    Q.consumer(A, P, QM+QM_SZ, QE+QE_SZ, KV+KV_LSZ, "sc1", npre_w=NPW2, wflags=WF2, chunk_barriers=True)
    Q.HOOK_EPI = None
    stamps.stampfix(A, 30)
    f1_flag(A, 1)
    A(f"s_branch {P}DONE")
    A.label(f"{P}HELP")
    srd(A, 8, 6, X2_SZ, off=X2)
    Q.helper_voffsets(A)
    A("s_lshl_b32 s34, s23, 11")
    A(f"s_add_u32 s34, s34, {F3}")
    A("v_and_b32 v2, 15, v1")
    A("v_lshlrev_b32 v2, 7, v2")
    A("buffer_load_dword v4, v2, s[12:15], s34 offen sc1")
    A("s_waitcnt vmcnt(0)")
    check_regs(A, [4])
    A("s_cselect_b32 s36, 1, 0")
    A("s_barrier")
    A("s_cmp_lg_u32 s36, 0")
    A(f"s_cbranch_scc1 {P}F3_OK2")
    poll_flags(A, P, "F3", 34, 2, 4)
    A.label(f"{P}F3_OK2")
    stamps.stamp(A, 12)
    NPRE = NPX2
    ops = []
    for kc in range(NPRE):
        Q.issue_x(A, kc, 8, XF2); ops += [kc]*4
    A("s_lshl_b32 s34, s23, 7")
    A("s_lshl_b32 s35, s25, 5")
    A("s_add_u32 s34, s34, s35")
    A("s_lshl_b32 s34, s34, 6")
    A(f"s_add_u32 s34, s34, {ST1}")
    A(f"v_lshlrev_b32 v29, 6, v{Q.V_R}")
    A(f"v_lshl_add_u32 v29, v{Q.V_G}, 5, v29")
    def ldst():
        A("buffer_load_dwordx4 v[16:19], v29, s[12:15], s34 offen sc1")
        A("buffer_load_dwordx4 v[20:23], v29, s[12:15], s34 offen offset:16 sc1")
    for kc in range(9):
        last = max(i for i, o in enumerate(ops) if o == kc)
        A(f"s_waitcnt vmcnt({len(ops) - 1 - last})")
        A("s_barrier")
        if kc + NPRE < 9:
            Q.issue_x(A, kc + NPRE, 8, XF2); ops += [kc+NPRE]*4
        if kc == min(4, 8-NPRE+1):
            ldst(); ops += ["s"]*2
        if kc == 0: stamps.stampfix(A, 28)
        if kc == 4: stamps.stampfix(A, 29)
        if kc == 8: stamps.stampfix(A, 30)
    A("s_waitcnt vmcnt(0)")
    check_regs(A, [17,19,21,23])
    A(f"s_cbranch_scc1 {P}STOK")
    spin(A, P, "ST", ldst, lambda: check_regs(A, [17,19,21,23]))
    A.label(f"{P}STOK")
    A("v_add_f32 v16, v16, v20")
    A("v_add_f32 v18, v18, v22")
    for v in (16, 18):
        A(f"v_mov_b32 v20, v{v}")
        A("s_nop 1")
        A(f"v_permlane32_swap_b32 v{v}, v20")
        A("s_nop 1")
        A(f"v_add_f32 v{v}, v{v}, v20")
    stats_to_lds(A, 16, 18)
    A("s_barrier")
    A.label(f"{P}DONE")

def gen_mega(name="interleave_layers__softmax_full_mha__ssm_conv_h3__prompt_kernel", opt=("prio",)):
    A = Asm()
    A("s_cmp_ge_u32 s2, 256")
    A("s_cbranch_scc1 M_END")
    if os.environ.get("IDMAP","") == "T":
        A("s_lshr_b32 s3, s2, 3")
        A("s_and_b32 s2, s2, 7")
        A("s_lshl_b32 s2, s2, 5")
        A("s_or_b32 s2, s2, s3")
    stamps.init(A)
    if stamps.ENABLED:
        A("s_memrealtime s[66:67]")
        A("s_waitcnt lgkmcnt(0)")
        A("s_mov_b32 s101, s66")
    A("s_load_dwordx2 s[4:5], s[0:1], %d" % KA_X)
    A("s_load_dwordx2 s[6:7], s[0:1], %d" % KA_WS)
    A("v_lshrrev_b32 v2, 6, v0")
    A("v_and_b32 v1, 63, v0")
    A("v_readfirstlane_b32 s22, v2      ; wave")
    A("s_waitcnt lgkmcnt(0)")
    A(f"s_add_u32 s56, s6, {EPOCH}")
    A("s_addc_u32 s57, s7, 0")
    A(f"s_load_dword s{sTAG}, s[56:57], 0")
    srd(A, 12, 6, WS_USED)
    A(f"s_mov_b32 s{sLAYER}, 0")
    A("s_mov_b32 s62, 0")
    A("s_mov_b32 s63, 0")
    A("s_mov_b32 s64, 0")
    A("s_waitcnt lgkmcnt(0)")
    A(f"s_mul_i32 s{sTAG}, s{sTAG}, 0x9e3779b1")
    A(f"s_add_u32 s{sTAG}, s{sTAG}, 0x7f4a7c15")
    stamps.stamp(A, 14)
    stamps.cyc_start(A)
    qkv1(A)
    A.label("M_ATT")
    A("s_and_b32 s20, s2, 7")
    A("s_lshr_b32 s21, s2, 3")
    A("s_lshl_b32 s20, s20, 2")
    A("s_and_b32 s23, s21, 3")
    A("s_add_u32 s20, s20, s23          ; head")
    A("s_lshr_b32 s21, s21, 2           ; qb")
    def before_loads(A):
        A("s_cmp_lg_u32 s22, 0")
        A("s_cbranch_scc1 M_F1W")
        A("s_lshr_b32 s36, s20, 1")
        A("s_lshl_b32 s36, s36, 13")
        A(f"s_lshl_b32 s35, s{sLAYER}, 17")
        A("s_add_u32 s36, s36, s35")
        A(f"s_add_u32 s36, s36, {F1}")
        A("v_lshlrev_b32 v170, 7, v1")
        poll_flags(A, "M_", "F1", 36, 170, 171)
        A.label("M_F1W")
        A("s_waitcnt lgkmcnt(0)")
        A("s_barrier")
        stamps.stamp(A, 5)
    def after_s0(A):
        A(f"s_cmp_lg_u32 s{sLAYER}, 0")
        A("s_cbranch_scc1 M_NFY")
        A("s_cmp_lg_u32 s22, 0")
        A("s_cbranch_scc1 M_NFY")
        A("s_lshl_b32 s36, s2, 2")
        A(f"s_add_u32 s36, s36, {FY}")
        set_flag(A, 36, 170)
        A.label("M_NFY")
    AT.body(A, "AT_", opt, fused=True, hook_after_s0=after_s0, hook_before_loads=before_loads)
    stamps.stamp(A, 6)
    A("s_waitcnt vmcnt(0)")
    A("s_lshl_b32 s34, s25, 5")
    A("s_add_u32 s34, s34, s20")
    A("s_lshl_b32 s34, s34, 7")
    A(f"s_lshl_b32 s35, s{sLAYER}, 18")
    A("s_add_u32 s34, s34, s35")
    A(f"s_add_u32 s34, s34, {F2}")
    set_flag(A, 34, 170)
    A(f"s_cmp_lg_u32 s{sLAYER}, 0")
    A("s_cbranch_scc1 M_L1")
    A("v_and_b32 v1, 63, v0")
    A("v_lshlrev_b32 v2, 4, v1")
    A(f"s_mov_b32 s34, {FY}")
    poll_flags(A, "M_", "FY", 34, 2, 4, nd=4)
    srd(A, 8, 4, SZ_X)
    srd(A, 16, 6, X2_SZ, off=X2)
    A("s_branch M_L2")
    A.label("M_L1")
    A("s_load_dwordx2 s[4:5], s[0:1], %d" % KA_OUT)
    srd(A, 8, 6, X2_SZ, off=X2)
    A("s_waitcnt lgkmcnt(0)")
    srd(A, 16, 4, SZ_X)
    A.label("M_L2")
    opg_prefetch(A, "G_")
    A("s_cmp_lg_u32 s22, 0")
    A("s_cbranch_scc1 M_F2W")
    A("s_lshl_b32 s38, s20, 12")
    A(f"s_lshl_b32 s35, s{sLAYER}, 18")
    A("s_add_u32 s38, s38, s35")
    A(f"s_add_u32 s38, s38, {F2}")
    A("v_and_b32 v52, 31, v0")
    A("v_lshlrev_b32 v52, 7, v52")
    poll_flags(A, "M_", "F2", 38, 52, 53)
    A.label("M_F2W")
    A("s_barrier")
    stamps.stamp(A, 8)
    h = opg_main(A, "G_")
    A(f"s_cmp_lg_u32 s{sLAYER}, 0")
    A("s_cbranch_scc1 M_FIN")
    opg_publish(A, "G_", h)
    A("s_barrier")
    stamps.stamp(A, 7)
    qkv2(A)
    stamps.stamp(A, 13)
    A(f"s_mov_b32 s{sLAYER}, 1")
    A(f"s_mov_b32 s62, {KV_LSZ}")
    A(f"s_mov_b32 s63, {QM_SZ}")
    A(f"s_mov_b32 s64, {QE_SZ}")
    A("s_branch M_ATT")
    A.label("M_FIN")
    A("s_cmp_lg_u32 s2, 0")
    A("s_cbranch_scc1 M_FIN2")
    A("s_cmp_lg_u32 s22, 0")
    A("s_cbranch_scc1 M_FIN2")
    A(f"s_mov_b32 s34, {EPOCH}")
    set_flag(A, 34, 52)
    A.label("M_FIN2")
    A("s_waitcnt vmcnt(0)")
    stamps.stamp(A, 15)
    if stamps.DBG:
        A("s_sub_u32 s84, s82, s101")
        A("s_add_u32 s84, s84, s82")
        stamps.flush_debug(A, [16,0,1,2,4,5,6,8,7,13,21,22,24,27,31,18])
    else: stamps.flush(A, 0, 14, 22, vt=52)
    A.label("M_END")
    A("s_endpgm")
    txt = A.text().replace(" lds sc1", " sc1 lds")
    return kernel_header(name) + txt, kernel_desc(name, 256), "; @launch grid=(256,1,1) block=(512,1,1) lds=163840"
```
